```python
import torch

def _softmax(x, axis=-1):
    return torch.softmax(x, dim=axis)
def _gelu(x):
    return torch.nn.functional.gelu(x, approximate="tanh")
def _silu(x):
    return torch.nn.functional.silu(x)
def _sigmoid(x):
    return torch.sigmoid(x)
def _layernorm(x, axis=-1, eps=1e-5):
    m = x.mean(dim=axis, keepdim=True)
    v = x.var(dim=axis, keepdim=True, unbiased=False)
    return (x - m) / torch.sqrt(v + eps)
def _scatter_add(tgt, idx, src, axis=0):
    return tgt.clone().index_add_(axis, idx, src)
def _segment_sum(src, seg, n):
    out = torch.zeros((n,) + src.shape[1:], dtype=src.dtype)
    return out.index_add_(0, seg, src)
def _pad(x, pw):
    flat = tuple(v for pair in reversed(pw) for v in pair)
    return torch.nn.functional.pad(x, flat)

kernel_name = 'standalone__gqa_block_cached__near_ridge'

def setup_inputs():

    _w = (lambda a: (lambda t: t.to(torch.bfloat16) if t.is_floating_point() else t)(torch.as_tensor(a)))
    B, Sq, D = 8, 96, 512
    Hq, Hkv, Sk, Dh = 32, 32, 512, 128
    assert Hq % Hkv == 0, (Hq, Hkv)
    return {
        "x": _w((lambda *s: torch.randn(*s, dtype=torch.bfloat16) * 0.8)(B, Sq, D)),
        "k_cache": _w((lambda *s: torch.randn(*s, dtype=torch.bfloat16) * 0.8)(B, Hkv, Sk, Dh)),
        "v_cache": _w((lambda *s: torch.randn(*s, dtype=torch.bfloat16) * 0.05)(B, Hkv, Sk, Dh)),
        "wq": _w((lambda *s: torch.randn(*s, dtype=torch.bfloat16) * 0.8)(D, Hq * Dh) * (D ** -0.5)),
        "wo": _w((lambda *s: torch.randn(*s, dtype=torch.bfloat16) * 0.05)(Hq * Dh, D) * ((Hq * Dh) ** -0.5)),
    }

def reference(x, k_cache, v_cache, wq, wo):
    B, Sq, D = x.shape
    Hq, Dh = 32, 128
    Hkv = k_cache.shape[1]
    rep = Hq // Hkv
    q = (lambda x, *d: x.permute(*d))((x @ wq).reshape(B, Sq, Hq, Dh), 0, 2, 1, 3)
    k = (lambda x, n, axis: torch.repeat_interleave(x, n, dim=axis))(k_cache, rep, axis=1)
    v = (lambda x, n, axis: torch.repeat_interleave(x, n, dim=axis))(v_cache, rep, axis=1)
    scores = torch.einsum("bhqd,bhkd->bhqk", q, k) * (Dh ** -0.5)
    p = _softmax(scores, axis=-1)
    o = torch.einsum("bhqk,bhkd->bhqd", p, v)
    return (lambda x, *d: x.permute(*d))(o, 0, 2, 1, 3).reshape(B, Sq, Hq * Dh) @ wo
```

```python
import sys
L = []
def e(s): L.append("    " + s)
def lab(s): L.append(s + ":")
def c(s): L.append("    ; " + s)
def nop(n):
    while n > 0:
        k = min(n, 16); e(f"s_nop {k-1}"); n -= k

NAME = "standalone__gqa_block_cached__near_ridge"
XOFF = 0
STG = 98304
QOFF = 131072
EXTRA = 131072
MAXOFF = 155648
SUMOFF = 159744 - 2048
SUMOFF = 159744 - 0
SUMOFF = 160*1024 - 2048
SX, SK, SV, SWQ, SWO, SOUT, SWS, SDBG = 8, 12, 16, 20, 24, 28, 32, 36
sW, sB, sH, sT0, sT1, sT2, sT3 = 40, 41, 42, 43, 44, 45, 46
sKV = 47
sXB = 48
sC = 49
sB2, sQH, sCT = 50, 51, 52
sOB = 53
sWN = 54
sCNT = 55
def srd(r): return f"s[{r}:{r+3}]"
vLane = 1
vKo = 2
vXo = [3,4,5,6]
vWq = 7
vL16 = 8
vStW = 9
vStR = 10
vXa = list(range(11,19))
vQw = 19
vVo = 20
vVr = [21,22]
vSl = [23,24]
vSr = [25,26]
vSt = 27
vStr = 28
vWo = 29
vT = [30,31]
def S(a,j): return 32 + (a*6+j)*4
vM = 224; vLs = 230; vTmp = 236
def vr(b,n): return f"v[{b}:{b+n-1}]"
def ar(b,n): return f"a[{b}:{b+n-1}]"

def gen(fused=True):
    e("s_cmp_ge_u32 s2, 256")
    e("s_cbranch_scc1 L_end")
    e("s_load_dwordx16 s[56:71], s[0:1], 0")
    e("v_and_b32 v1, 63, v0")
    e("v_lshrrev_b32 v30, 6, v0")
    e("s_nop 0")
    e(f"v_readfirstlane_b32 s{sW}, v30")
    e(f"s_and_b32 s{sT0}, s2, 7")
    e(f"s_lshr_b32 s{sT1}, s2, 3")
    e(f"s_and_b32 s{sT2}, s{sT1}, 3")
    e(f"s_lshl_b32 s{sH}, s{sT0}, 2")
    e(f"s_add_u32 s{sH}, s{sH}, s{sT2}")
    e(f"s_lshr_b32 s{sB}, s{sT1}, 2")
    e(f"s_lshr_b32 s{sB2}, s{sT0}, 1")
    e(f"s_lshl_b32 s{sB2}, s{sB2}, 1")
    e(f"s_lshr_b32 s{sT3}, s{sT2}, 1")
    e(f"s_add_u32 s{sB2}, s{sB2}, s{sT3}")
    e(f"s_and_b32 s{sQH}, s{sT2}, 1")
    e(f"s_and_b32 s{sCT}, s{sT0}, 1")
    e(f"s_lshl_b32 s{sCT}, s{sCT}, 3")
    e(f"s_add_u32 s{sCT}, s{sCT}, s{sB}")
    e(f"s_lshl_b32 s{sKV}, s{sB}, 5")
    e(f"s_add_u32 s{sKV}, s{sKV}, s{sH}")
    e(f"s_lshl_b32 s{sKV}, s{sKV}, 17")
    e(f"s_lshl_b32 s{sT3}, s{sW}, 15")
    e(f"s_add_u32 s{sKV}, s{sKV}, s{sT3}")
    e(f"s_mul_i32 s{sXB}, s{sB}, 98304")
    e(f"s_add_u32 s{sWN}, s{sW}, 1")
    e(f"s_and_b32 s{sWN}, s{sWN}, 3")
    e(f"s_mov_b32 s{sC}, 0x3e0293ee")
    e(f"v_and_b32 v30, 15, v1")
    e(f"v_lshrrev_b32 v31, 4, v1")
    e(f"v_lshlrev_b32 v{vKo}, 8, v30")
    e(f"v_lshl_add_u32 v{vKo}, v31, 4, v{vKo}")
    e(f"v_lshlrev_b32 v{vL16}, 4, v1")
    e("s_waitcnt lgkmcnt(0)")
    sizes = [786432, 33554432, 33554432, 4194304, 4194304, 786432, 256, 6291456]
    regs = [SX, SK, SV, SWQ, SWO, SOUT, SDBG, SWS]
    for i,(r,sz) in enumerate(zip(regs,sizes)):
        e(f"s_mov_b32 s{r}, s{56+2*i}")
        e(f"s_and_b32 s{r+1}, s{57+2*i}, 0xffff")
        e(f"s_mov_b32 s{r+2}, {sz}")
        e(f"s_mov_b32 s{r+3}, 0x00020000")
    def kload(a):
        e(f"s_add_u32 s{sT0}, s{sKV}, {a*4096}")
        for s in range(4):
            e(f"buffer_load_dwordx4 {ar((a*4+s)*4,4)}, v{vKo}, {srd(SK)}, s{sT0} offen offset:{s*64}")
    c("K tiles 0,1")
    kload(0); kload(1)
    c("x DMA")
    e(f"s_lshl_b32 s{sT1}, s{sW}, 2")
    for ee in range(4):
        e(f"s_add_u32 s{sT2}, s{sT1}, {ee}")
        e(f"v_xor_b32 v30, s{sT2}, v1")
        e(f"v_lshlrev_b32 v30, 4, v30")
        e(f"s_lshl_b32 s{sT3}, s{sT2}, 10")
        e(f"v_add_u32 v{vXo[ee]}, s{sT3}, v30")
    e(f"s_lshl_b32 s{sT1}, s{sW}, 12")
    for blk in range(6):
        e(f"s_add_u32 s{sT0}, s{sXB}, {blk*16384}")
        for ee in range(4):
            e(f"s_add_u32 m0, s{sT1}, {XOFF + blk*16384 + ee*1024}")
            e("s_nop 0")
            e(f"buffer_load_dwordx4 v{vXo[ee]}, {srd(SX)}, s{sT0} offen lds")
    c("wq raw -> a128..255")
    e(f"v_lshrrev_b32 v30, 2, v1")
    e(f"v_and_b32 v31, 3, v1")
    e(f"v_lshlrev_b32 v{vWq}, 13, v30")
    e(f"v_lshl_add_u32 v{vWq}, v31, 4, v{vWq}")
    e(f"s_lshl_b32 s{sT0}, s{sH}, 8")
    e(f"s_lshl_b32 s{sT1}, s{sW}, 6")
    e(f"s_add_u32 s{sT0}, s{sT0}, s{sT1}")
    for i in range(32):
        e(f"buffer_load_dwordx4 {ar(128+4*i,4)}, v{vWq}, {srd(SWQ)}, s{sT0} offen")
        if i < 31: e(f"s_add_u32 s{sT0}, s{sT0}, 131072")
    c("address setup (overlaps load latency)")
    e(f"s_lshl_b32 s{sT1}, s{sW}, 14")
    e(f"s_add_u32 s{sT1}, s{sT1}, {STG}")
    e(f"v_add_u32 v{vStW}, s{sT1}, v{vL16}")
    e("v_lshrrev_b32 v30, 5, v1")
    e("v_lshlrev_b32 v30, 3, v30")
    e("v_bfe_u32 v31, v1, 2, 2")
    e("v_add_u32 v30, v30, v31")
    e(f"v_lshlrev_b32 v{vStR}, 6, v30")
    e("v_bfe_u32 v30, v1, 4, 1")
    e(f"v_lshl_add_u32 v{vStR}, v30, 5, v{vStR}")
    e("v_and_b32 v30, 1, v1")
    e(f"v_lshl_add_u32 v{vStR}, v30, 4, v{vStR}")
    e("v_bfe_u32 v30, v1, 1, 1")
    e(f"v_lshl_add_u32 v{vStR}, v30, 3, v{vStR}")
    e(f"v_add_u32 v{vStR}, s{sT1}, v{vStR}")
    e("v_and_b32 v30, 31, v1")
    e("v_lshlrev_b32 v30, 10, v30")
    e("v_lshrrev_b32 v31, 5, v1")
    for lo in range(8):
        e(f"v_add_u32 v{vXa[lo]}, {2*lo}, v31")
        e(f"v_xor_b32 v{vXa[lo]}, v{vXa[lo]}, v1")
        e(f"v_and_b32 v{vXa[lo]}, 15, v{vXa[lo]}")
        e(f"v_lshl_add_u32 v{vXa[lo]}, v{vXa[lo]}, 4, v30")
        e(f"v_add_u32 v{112+lo}, 0x10000, v{vXa[lo]}")
    e("v_bfe_u32 v30, v1, 4, 1")
    e(f"v_lshlrev_b32 v{vQw}, 12, v30")
    e("v_and_b32 v30, 15, v1")
    e(f"v_lshl_add_u32 v{vQw}, v30, 4, v{vQw}")
    e("v_lshrrev_b32 v30, 5, v1")
    e(f"v_lshl_add_u32 v{vQw}, v30, 8, v{vQw}")
    e(f"s_lshl_b32 s{sT1}, s{sW}, 10")
    e(f"s_add_u32 s{sT1}, s{sT1}, {QOFF}")
    e(f"v_add_u32 v{vQw}, s{sT1}, v{vQw}")
    e("v_bfe_u32 v30, v1, 4, 1")
    e("v_lshlrev_b32 v30, 1, v30")
    e("v_xor_b32 v30, v30, v1")
    e("v_and_b32 v30, 3, v30")
    e("v_lshrrev_b32 v31, 2, v1")
    e(f"v_lshlrev_b32 v{vVo}, 8, v31")
    e(f"v_lshl_add_u32 v{vVo}, v30, 4, v{vVo}")
    e(f"v_lshlrev_b32 v{vVr[0]}, 6, v31")
    e("v_and_b32 v30, 3, v1")
    e(f"v_lshl_add_u32 v{vVr[0]}, v30, 3, v{vVr[0]}")
    e("v_bfe_u32 v30, v1, 4, 1")
    e(f"v_lshl_add_u32 v{vVr[0]}, v30, 5, v{vVr[0]}")
    e(f"s_lshl_b32 s{sT1}, s{sW}, 15")
    e(f"v_add_u32 v{vVr[0]}, s{sT1}, v{vVr[0]}")
    e(f"v_xor_b32 v{vVr[1]}, 32, v{vVr[0]}")
    e(f"v_add_u32 v{vSl[0]}, s{sT1}, v{vL16}")
    e(f"s_lshl_b32 s{sT1}, s{sW}, 13")
    e(f"s_add_u32 s{sT1}, s{sT1}, {EXTRA}")
    e(f"v_add_u32 v{vSl[1]}, s{sT1}, v{vL16}")
    e(f"s_lshl_b32 s{sT1}, s{sWN}, 15")
    e(f"v_add_u32 v{vSr[0]}, s{sT1}, v{vL16}")
    e(f"s_lshl_b32 s{sT1}, s{sWN}, 13")
    e(f"s_add_u32 s{sT1}, s{sT1}, {EXTRA}")
    e(f"v_add_u32 v{vSr[1]}, s{sT1}, v{vL16}")
    e("v_and_b32 v30, 15, v1")
    e(f"v_lshlrev_b32 v{vStr}, 4, v30")
    e(f"v_add_u32 v{vStr}, {MAXOFF}, v{vStr}")
    e(f"s_lshl_b32 s{sT1}, s{sW}, 2")
    e(f"v_add_u32 v{vSt}, s{sT1}, v{vStr}")
    c("K tiles 2..7")
    for a in range(2,8): kload(a)
    c("---- Q projection")
    e("s_waitcnt vmcnt(56)")
    e("s_barrier")
    ACC = 32; XF = 80; WF = 104
    def rd_frags(S_, buf):
        ch, s = S_//8, S_%8
        hi, lo = S_//8, S_%8
        for u in range(2):
            e(f"ds_read_b64_tr_b16 {vr(WF+buf*4+u*2,2)}, v{vStR} offset:{(ch&1)*8192 + s*1024 + u*256}")
        for t3 in range(3):
            if t3 < 2: e(f"ds_read_b128 {vr(XF+buf*12+t3*4,4)}, v{vXa[lo]} offset:{t3*32768 + hi*256}")
            else: e(f"ds_read_b128 {vr(XF+buf*12+t3*4,4)}, v{112+lo} offset:{hi*256}")
    def stage(ch):
        e(f"s_waitcnt vmcnt({24 + 8*(3-ch)})")
        for i in range(8):
            e(f"ds_write_b128 v{vStW}, {ar(128+(ch*8+i)*4,4)} offset:{(ch&1)*8192 + i*1024}")
    stage(0)
    stage(1)
    e("s_waitcnt lgkmcnt(0)")
    rd_frags(0, 0)
    for S_ in range(32):
        buf = S_ & 1
        restage = (S_ % 8 == 7) and (S_//8 + 2 <= 3)
        if S_ + 1 < 32:
            rd_frags(S_+1, buf^1)
            e("s_waitcnt lgkmcnt(5)")
        else:
            e("s_waitcnt lgkmcnt(0)")
        for t3 in range(3):
            cin = "0" if S_ == 0 else vr(ACC+t3*16,16)
            e(f"v_mfma_f32_32x32x16_bf16 {vr(ACC+t3*16,16)}, {vr(WF+buf*4,4)}, {vr(XF+buf*12+t3*4,4)}, {cin}")
        if restage:
            stage(S_//8 + 2)
            e("s_waitcnt lgkmcnt(0)")
    e("s_barrier")
    c("V DMA (order o -> dgroup (w+1+o)&3)")
    e(f"s_lshl_b32 s{sT2}, s{sW}, 15")
    for o in range(4):
        e(f"s_add_u32 s{sT0}, s{sW}, {1+o}")
        e(f"s_and_b32 s{sT0}, s{sT0}, 3")
        e(f"s_lshl_b32 s{sT0}, s{sT0}, 6")
        e(f"s_add_u32 s{sT0}, s{sT0}, s{sKV}")
        for i in range(8):
            e(f"s_add_u32 m0, s{sT2}, {o*8192 + i*1024}")
            e(f"s_add_u32 s{sT1}, s{sT0}, {i*4096}")
            e(f"buffer_load_dwordx4 v{vVo}, {srd(SV)}, s{sT1} offen lds")
    c("Q -> bf16 frags in LDS")
    for t3 in range(3):
        for t in range(2):
            b0 = ACC + t3*16 + t*8
            for k in range(4):
                e(f"v_cvt_pk_bf16_f32 v{XF+(t3*2+t)*4+k}, v{b0+2*k}, v{b0+2*k+1}")
            e(f"ds_write_b128 v{vQw}, {vr(XF+(t3*2+t)*4,4)} offset:{t3*8192 + t*512}")
    e("s_waitcnt lgkmcnt(0)")
    e("s_barrier")
    e(f"v_add_u32 v30, {QOFF}, v{vL16}")
    for j in range(6):
        for s in range(4):
            e(f"ds_read_b128 {ar(128+(j*4+s)*4,4)}, v30 offset:{(j*4+s)*1024}")
    c("---- S = K Q^T")
    for a in range(8):
        n = (7-a)*4 + 32
        e(f"s_waitcnt vmcnt({n})" + (" lgkmcnt(0)" if a == 0 else ""))
        for s in range(4):
            for j in range(6):
                cin = "0" if s == 0 else vr(S(a,j),4)
                e(f"v_mfma_f32_16x16x32_bf16 {vr(S(a,j),4)}, {ar((a*4+s)*4,4)}, {ar(128+(j*4+s)*4,4)}, {cin}")
    nop(8)
    c("---- softmax: max")
    for j in range(6):
        vals = [S(a,j)+i for a in range(8) for i in range(4)]
        e(f"v_max3_f32 v{vM+j}, v{vals[0]}, v{vals[1]}, v{vals[2]}")
        k = 3
        while k + 1 < 32:
            e(f"v_max3_f32 v{vM+j}, v{vM+j}, v{vals[k]}, v{vals[k+1]}"); k += 2
        e(f"v_max_f32 v{vM+j}, v{vM+j}, v{vals[31]}")
    def xreduce(base, op):
        for sw in ("v_permlane32_swap_b32", "v_permlane16_swap_b32"):
            for j in range(6): e(f"v_mov_b32 v{vTmp+j}, v{base+j}")
            nop(2)
            for j in range(6): e(f"{sw} v{base+j}, v{vTmp+j}")
            nop(2)
            for j in range(6): e(f"{op} v{base+j}, v{base+j}, v{vTmp+j}")
    xreduce(vM, "v_max_f32")
    for j in range(6):
        e(f"ds_write_b32 v{vSt}, v{vM+j} offset:{j*256}")
    e("s_waitcnt lgkmcnt(0)")
    e("s_barrier")
    for j in range(5):
        e(f"ds_read_b128 {vr(vTmp+j*4,4)}, v{vStr} offset:{j*256}")
    e(f"ds_read_b128 {vr(vXa[1],4)}, v{vStr} offset:{5*256}")
    e("s_waitcnt lgkmcnt(0)")
    for j in range(6):
        b0 = vTmp + j*4 if j < 5 else vXa[1]
        e(f"v_max3_f32 v{vM+j}, v{b0}, v{b0+1}, v{b0+2}")
        e(f"v_max_f32 v{vM+j}, v{vM+j}, v{b0+3}")
        e(f"v_mul_f32 v{vM+j}, s{sC}, v{vM+j}")
    c("exp, sum, pack")
    for j in range(6):
        for s in range(4):
            regs8 = [S(2*s,j)+i for i in range(4)] + [S(2*s+1,j)+i for i in range(4)]
            for r in regs8: e(f"v_fma_f32 v{r}, v{r}, s{sC}, -v{vM+j}")
            for r in regs8: e(f"v_exp_f32 v{r}, v{r}")
            e("s_nop 0")
            if s == 0:
                e(f"v_add_f32 v{vLs+j}, v{regs8[0]}, v{regs8[1]}")
                rest = regs8[2:]
            else:
                rest = regs8
            for r in rest: e(f"v_add_f32 v{vLs+j}, v{vLs+j}, v{r}")
            for k in range(4):
                e(f"v_cvt_pk_bf16_f32 v{S(2*s,j)+k}, v{regs8[2*k]}, v{regs8[2*k+1]}")
    xreduce(vLs, "v_add_f32")
    for j in range(6):
        e(f"ds_write_b32 v{vSt}, v{vLs+j} offset:{SUMOFF - MAXOFF + j*256}")
    e("s_waitcnt lgkmcnt(0)")
    e("s_barrier")
    for j in range(5):
        e(f"ds_read_b128 {vr(vTmp+j*4,4)}, v{vStr} offset:{SUMOFF - MAXOFF + j*256}")
    e(f"ds_read_b128 {vr(vXa[1],4)}, v{vStr} offset:{SUMOFF - MAXOFF + 5*256}")
    e("v_lshrrev_b32 v30, 2, v1")
    e("v_and_b32 v31, 3, v1")
    e(f"v_lshlrev_b32 v{vWo}, 10, v30")
    e(f"v_lshl_add_u32 v{vWo}, v31, 4, v{vWo}")
    e(f"s_lshl_b32 s{sT3}, s{sW}, 20")
    e(f"s_lshl_b32 s{sT1}, s{sCT}, 6")
    e(f"s_add_u32 s{sT3}, s{sT3}, s{sT1}")
    e("s_waitcnt lgkmcnt(0)")
    for j in range(6):
        b0 = vTmp + j*4 if j < 5 else vXa[1]
        e(f"v_add_f32 v{vLs+j}, v{b0}, v{b0+1}")
        e(f"v_add_f32 v{b0+2}, v{b0+2}, v{b0+3}")
        e(f"v_add_f32 v{vLs+j}, v{vLs+j}, v{b0+2}")
        e(f"v_rcp_f32 v{vLs+j}, v{vLs+j}")
    c("---- PV chain")
    def ACCT(tt): return S(1, tt) if tt < 6 else S(3, tt-6)
    def VF(k): return S(5, k) if k < 6 else S(7, k-6)
    wo_issued = 0
    def slot_addr(own, o, tt):
        v = vSl if own else vSr
        if tt < 8: return f"v{v[0]} offset:{(o&1)*8192 + tt*1024}"
        return f"v{v[1]} offset:{(o&1)*4096 + (tt-8)*1024}"
    for o in range(4):
        c(f"PV step {o}")
        for i in range(16):
            e(f"buffer_load_dwordx4 {ar(4*wo_issued,4)}, v{vWo}, {srd(SWO)}, s{sT3} offen")
            e(f"s_add_u32 s{sT3}, s{sT3}, 16384")
            wo_issued += 1
            if o == 3 and i == 14: break
        if o > 0:
            for tt in range(12):
                e(f"ds_read_b128 {vr(ACCT(tt),4)}, {slot_addr(False, o-1, tt)}")
        e(f"s_waitcnt vmcnt({8*(3-o) + wo_issued})")
        for s in range(4):
            for j2 in range(2):
                for u in range(2):
                    e(f"ds_read_b64_tr_b16 {vr(VF(s*2+j2)+2*u,2)}, v{vVr[j2]} offset:{o*8192 + s*2048 + u*1024}")
        for s in range(4):
            e(f"s_waitcnt lgkmcnt({min(15,(3-s)*4)})")
            for j2 in range(2):
                for j in range(6):
                    tt = j2*6 + j
                    cin = "0" if (o == 0 and s == 0) else vr(ACCT(tt),4)
                    e(f"v_mfma_f32_16x16x32_bf16 {vr(ACCT(tt),4)}, {vr(VF(s*2+j2),4)}, {vr(S(2*s,j),4)}, {cin}")
        if o < 3:
            nop(4)
            for tt in range(12):
                a_ = slot_addr(True, o, tt).split(" ")
                e(f"ds_write_b128 {a_[0]}, {vr(ACCT(tt),4)} {a_[1]}")
            e("s_waitcnt lgkmcnt(0)")
            e("s_barrier")
    e(f"buffer_load_dwordx4 {ar(4*63,4)}, v{vWo}, {srd(SWO)}, s{sT3} offen")
    nop(6)
    c("normalize, pack, store O frags")
    e(f"s_lshl_b32 s{sT0}, s{sB}, 5")
    e(f"s_add_u32 s{sT0}, s{sT0}, s{sH}")
    e(f"s_lshl_b32 s{sT0}, s{sT0}, 2")
    e(f"s_add_u32 s{sT0}, s{sT0}, s{sW}")
    e(f"s_mul_i32 s{sT0}, s{sT0}, 6144")
    for j in range(6):
        for j2 in range(2):
            b0 = ACCT(j2*6+j)
            for i in range(4): e(f"v_mul_f32 v{b0+i}, v{b0+i}, v{vLs+j}")
        d = VF(j)
        for j2 in range(2):
            b0 = ACCT(j2*6+j)
            e(f"v_cvt_pk_bf16_f32 v{d+2*j2}, v{b0}, v{b0+1}")
            e(f"v_cvt_pk_bf16_f32 v{d+2*j2+1}, v{b0+2}, v{b0+3}")
        if j < 4:
            e(f"buffer_store_dwordx4 {vr(d,4)}, v{vL16}, {srd(SWS)}, s{sT0} offen offset:{j*1024} sc1")
        else:
            if j == 4: e(f"s_add_u32 s{sT0}, s{sT0}, 4096")
            e(f"buffer_store_dwordx4 {vr(d,4)}, v{vL16}, {srd(SWS)}, s{sT0} offen offset:{(j-4)*1024} sc1")
    e("s_waitcnt vmcnt(0)")
    e("s_barrier")
    c("signal: wave 0")
    e(f"s_cmp_lg_u32 s{sW}, 0")
    e("s_cbranch_scc1 L_nosig")
    e("v_mov_b32 v30, 1")
    e(f"s_lshl_b32 s{sT0}, s{sB}, 5")
    e(f"v_mov_b32 v31, s{sT0}")
    e("s_mov_b64 s[72:73], exec")
    e("s_mov_b64 exec, 1")
    e(f"buffer_atomic_add v30, v31, {srd(SDBG)}, 0 offen sc1")
    e("s_mov_b64 exec, s[72:73]")
    lab("L_nosig")
    c("---- transpose wo through LDS (own 32K region), first half before polling")
    e("v_bfe_u32 v30, v1, 4, 1")
    e("v_lshlrev_b32 v30, 1, v30")
    e("v_xor_b32 v30, v30, v1")
    e(f"v_lshlrev_b32 v{vWo}, 4, v30")
    e(f"s_lshl_b32 s{sT1}, s{sW}, 15")
    e(f"v_add_u32 v{vWo}, s{sT1}, v{vWo}")
    def wo_tr(half):
        for i in range(32):
            e(f"ds_write_b128 v{vWo}, {ar((half*32+i)*4,4)} offset:{i*1024}")
        e("s_waitcnt lgkmcnt(0)")
        for ks in range(16):
            for j in range(2):
                for u in range(2):
                    e(f"ds_read_b64_tr_b16 {ar((half*16+ks)*8 + j*4 + u*2,2)}, v{vVr[j]} offset:{ks*2048 + u*1024}")
        e("s_waitcnt lgkmcnt(0)")
    wo_tr(0)
    c("poll (wave 0), then barrier")
    e(f"s_cmp_lg_u32 s{sW}, 0")
    e("s_cbranch_scc1 L_nopoll")
    e(f"s_lshl_b32 s{sT0}, s{sB2}, 5")
    e(f"v_mov_b32 v31, s{sT0}")
    e(f"s_mov_b32 s{sCNT}, 0")
    lab("L_poll")
    e(f"buffer_load_dword v30, v31, {srd(SDBG)}, 0 offen sc1")
    e("s_waitcnt vmcnt(0)")
    e(f"v_readfirstlane_b32 s{sT1}, v30")
    e(f"s_add_u32 s{sCNT}, s{sCNT}, 1")
    e(f"s_cmp_ge_u32 s{sT1}, 32")
    e("s_cbranch_scc1 L_nopoll")
    e(f"s_cmp_lt_u32 s{sCNT}, 2000000")
    e("s_cbranch_scc1 L_poll")
    lab("L_nopoll")
    e("s_barrier")
    c("---- out projection")
    e(f"s_lshl_b32 s{sOB}, s{sB2}, 5")
    e(f"s_lshl_b32 s{sT0}, s{sW}, 3")
    e(f"s_add_u32 s{sOB}, s{sOB}, s{sT0}")
    e(f"s_mul_i32 s{sOB}, s{sOB}, 24576")
    e(f"s_mul_i32 s{sT0}, s{sQH}, 3072")
    e(f"s_add_u32 s{sOB}, s{sOB}, s{sT0}")
    OA = 224
    def oload(ks):
        e(f"s_add_u32 s{sT0}, s{sOB}, {ks*6144}")
        for jj in range(3):
            e(f"buffer_load_dwordx4 {vr(32 + ((ks%16)*3+jj)*4,4)}, v{vL16}, {srd(SWS)}, s{sT0} offen offset:{jj*1024} sc1")
    for ks in range(16): oload(ks)
    wo_tr(1)
    for ks in range(32):
        rem = min(31, ks+15) - ks
        e(f"s_waitcnt vmcnt({rem*3})")
        for jj in range(3):
            for j in range(2):
                d = OA + (jj*2+j)*4
                cin = "0" if ks == 0 else vr(d,4)
                e(f"v_mfma_f32_16x16x32_bf16 {vr(d,4)}, {ar(ks*8+j*4,4)}, {vr(32+((ks%16)*3+jj)*4,4)}, {cin}")
        if ks + 16 < 32: oload(ks+16)
    nop(8)
    c("cross-wave reduce")
    e(f"s_mul_i32 s{sT1}, s{sW}, 6144")
    e(f"v_add_u32 v30, s{sT1}, v{vL16}")
    e("s_barrier")
    for t in range(6):
        e(f"ds_write_b128 v30, {vr(OA+t*4,4)} offset:{t*1024}")
    e("s_waitcnt lgkmcnt(0)")
    e("s_barrier")
    e(f"s_cmp_ge_u32 s{sW}, 3")
    e("s_cbranch_scc1 L_end")
    e(f"s_lshl_b32 s{sT1}, s{sW}, 11")
    e(f"v_add_u32 v30, s{sT1}, v{vL16}")
    for ww in range(4):
        for j in range(2):
            e(f"ds_read_b128 {vr(32+(ww*2+j)*4,4)}, v30 offset:{ww*6144 + j*1024}")
    e(f"s_mul_i32 s{sT0}, s{sB2}, 96")
    e(f"s_mul_i32 s{sT1}, s{sQH}, 48")
    e(f"s_add_u32 s{sT0}, s{sT0}, s{sT1}")
    e(f"s_lshl_b32 s{sT1}, s{sW}, 4")
    e(f"s_add_u32 s{sT0}, s{sT0}, s{sT1}")
    e(f"s_lshl_b32 s{sT0}, s{sT0}, 10")
    e(f"s_lshl_b32 s{sT1}, s{sCT}, 6")
    e(f"s_add_u32 s{sT0}, s{sT0}, s{sT1}")
    e("v_and_b32 v31, 15, v1")
    e("v_lshlrev_b32 v31, 10, v31")
    e("v_lshrrev_b32 v2, 4, v1")
    e("v_lshl_add_u32 v31, v2, 3, v31")
    e("s_waitcnt lgkmcnt(0)")
    for j in range(2):
        for i in range(4):
            e(f"v_add_f32 v{32+j*4+i}, v{32+j*4+i}, v{40+j*4+i}")
            e(f"v_add_f32 v{48+j*4+i}, v{48+j*4+i}, v{56+j*4+i}")
            e(f"v_add_f32 v{32+j*4+i}, v{32+j*4+i}, v{48+j*4+i}")
        e(f"v_cvt_pk_bf16_f32 v{64+j*2}, v{32+j*4}, v{33+j*4}")
        e(f"v_cvt_pk_bf16_f32 v{65+j*2}, v{34+j*4}, v{35+j*4}")
        e(f"buffer_store_dwordx2 {vr(64+j*2,2)}, v31, {srd(SOUT)}, s{sT0} offen offset:{j*32}")
    lab("L_end")
    e("s_endpgm")

gen()
hdr = open("cdna_kernels/%s.s.ref" % NAME).read().split("; @launch")[0]
out = hdr + "; @launch grid=(256,1,1) block=(256,1,1) lds=163840\n"
out += f""".amdgcn_target "amdgcn-amd-amdhsa--gfx950"
.text
.globl {NAME}_kernel
.p2align 8
.type {NAME}_kernel,@function
{NAME}_kernel:
""" + "\n".join(L) + f"""
.section .rodata,"a"
.p2align 6
.amdhsa_kernel {NAME}_kernel
  .amdhsa_next_free_vgpr 512
  .amdhsa_next_free_sgpr 102
  .amdhsa_accum_offset 256
  .amdhsa_group_segment_fixed_size 0
  .amdhsa_kernarg_size 64
  .amdhsa_user_sgpr_count 2
  .amdhsa_user_sgpr_kernarg_segment_ptr 1
  .amdhsa_system_sgpr_workgroup_id_x 1
.end_amdhsa_kernel
"""
dst = sys.argv[1] if len(sys.argv) > 1 else "cdna_kernels/%s.s" % NAME
open(dst, "w").write(out)
print("wrote", dst, len(L), "lines")
```

```python
import sys
L = []
def e(s): L.append("    " + s)
def lab(s): L.append(s + ":")
def c(s): L.append("    ; " + s)
def nop(n):
    while n > 0:
        k = min(n, 16); e(f"s_nop {k-1}"); n -= k

NAME = "standalone__gqa_block_cached__near_ridge"
XOFF = 0
STG = 98304
QOFF = 131072
EXTRA = 131072
MAXOFF = 155648
SUMOFF = 159744 - 2048
SUMOFF = 159744 - 0
SUMOFF = 160*1024 - 2048
SX, SK, SV, SWQ, SWO, SOUT, SWS, SDBG = 8, 12, 16, 20, 24, 28, 32, 36
sW, sB, sH, sT0, sT1, sT2, sT3 = 40, 41, 42, 43, 44, 45, 46
sKV = 47
sXB = 48
sC = 49
sB2, sQH, sCT = 50, 51, 52
sOB = 53
sWN = 54
sCNT = 55
def srd(r): return f"s[{r}:{r+3}]"
vLane = 1
vKo = 2
vXo = [3,4,5,6]
vWq = 7
vL16 = 8
vStW = 9
vStR = 10
vXa = list(range(11,19))
vQw = 19
vVo = 20
vVr = [21,22]
vSl = [23,24]
vSr = [25,26]
vSt = 27
vStr = 28
vWo = 29
vT = [30,31]
def S(a,j): return 32 + (a*6+j)*4
vM = 224; vLs = 230; vTmp = 236
def vr(b,n): return f"v[{b}:{b+n-1}]"
def ar(b,n): return f"a[{b}:{b+n-1}]"

import os
STAMP = os.environ.get("STAMP")
stamps = []
def stamp(name):
    if STAMP is None: return
    k = len(stamps); stamps.append(name)
    e(f"s_memtime s[{74+2*k}:{75+2*k}]")
    e("s_waitcnt lgkmcnt(0)")
def stamp_dump():
    if STAMP is None: return
    e(f"s_cmp_lg_u32 s2, {STAMP}")
    e("s_cbranch_scc1 L_end")
    e(f"s_cmp_lg_u32 s{sW}, 0")
    e("s_cbranch_scc1 L_end")
    e("s_mov_b64 exec, 1")
    idx = [1,2,3,4,5,6,7,9,10,11,12,13,14,15]
    for k in range(1, len(stamps)):
        e(f"s_sub_u32 s{sT0}, s{74+2*k}, s74")
        e(f"v_mov_b32 v30, s{sT0}")
        e(f"v_mov_b32 v31, {idx[k-1]*4}")
        e(f"buffer_store_dword v30, v31, {srd(SDBG)}, 0 offen")
        e("s_nop 1")
    print("stamps:", list(zip(idx, stamps[1:])))
def gen(fused=True):
    e("s_cmp_ge_u32 s2, 256")
    e("s_cbranch_scc1 L_end")
    stamp("start")
    e("s_load_dwordx16 s[56:71], s[0:1], 0")
    e("v_and_b32 v1, 63, v0")
    e("v_lshrrev_b32 v30, 6, v0")
    e("s_nop 0")
    e(f"v_readfirstlane_b32 s{sW}, v30")
    e(f"s_and_b32 s{sT0}, s2, 7")
    e(f"s_lshr_b32 s{sT1}, s2, 3")
    e(f"s_and_b32 s{sT2}, s{sT1}, 3")
    e(f"s_lshl_b32 s{sH}, s{sT0}, 2")
    e(f"s_add_u32 s{sH}, s{sH}, s{sT2}")
    e(f"s_lshr_b32 s{sB}, s{sT1}, 2")
    e(f"s_lshr_b32 s{sB2}, s{sT0}, 1")
    e(f"s_lshl_b32 s{sB2}, s{sB2}, 1")
    e(f"s_lshr_b32 s{sT3}, s{sT2}, 1")
    e(f"s_add_u32 s{sB2}, s{sB2}, s{sT3}")
    e(f"s_and_b32 s{sQH}, s{sT2}, 1")
    e(f"s_and_b32 s{sCT}, s{sT0}, 1")
    e(f"s_lshl_b32 s{sCT}, s{sCT}, 3")
    e(f"s_add_u32 s{sCT}, s{sCT}, s{sB}")
    e(f"s_lshl_b32 s{sKV}, s{sB}, 5")
    e(f"s_add_u32 s{sKV}, s{sKV}, s{sH}")
    e(f"s_lshl_b32 s{sKV}, s{sKV}, 17")
    e(f"s_lshl_b32 s{sT3}, s{sW}, 15")
    e(f"s_add_u32 s{sKV}, s{sKV}, s{sT3}")
    e(f"s_mul_i32 s{sXB}, s{sB}, 98304")
    e(f"s_add_u32 s{sWN}, s{sW}, 1")
    e(f"s_and_b32 s{sWN}, s{sWN}, 3")
    e(f"s_mov_b32 s{sC}, 0x3e0293ee")
    e(f"v_and_b32 v30, 15, v1")
    e(f"v_lshrrev_b32 v31, 4, v1")
    e(f"v_lshlrev_b32 v{vKo}, 8, v30")
    e(f"v_lshl_add_u32 v{vKo}, v31, 4, v{vKo}")
    e(f"v_lshlrev_b32 v{vL16}, 4, v1")
    e("s_waitcnt lgkmcnt(0)")
    sizes = [786432, 33554432, 33554432, 4194304, 4194304, 786432, 256, 6291456]
    regs = [SX, SK, SV, SWQ, SWO, SOUT, SDBG, SWS]
    for i,(r,sz) in enumerate(zip(regs,sizes)):
        e(f"s_mov_b32 s{r}, s{56+2*i}")
        e(f"s_and_b32 s{r+1}, s{57+2*i}, 0xffff")
        e(f"s_mov_b32 s{r+2}, {sz}")
        e(f"s_mov_b32 s{r+3}, 0x00020000")
    def kload(a):
        e(f"s_add_u32 s{sT0}, s{sKV}, {a*4096}")
        for s in range(4):
            e(f"buffer_load_dwordx4 {ar((a*4+s)*4,4)}, v{vKo}, {srd(SK)}, s{sT0} offen offset:{s*64}")
    c("K tiles 0,1")
    kload(0); kload(1)
    c("x DMA")
    e(f"s_lshl_b32 s{sT1}, s{sW}, 2")
    for ee in range(4):
        e(f"s_add_u32 s{sT2}, s{sT1}, {ee}")
        e(f"v_xor_b32 v30, s{sT2}, v1")
        e(f"v_lshlrev_b32 v30, 4, v30")
        e(f"s_lshl_b32 s{sT3}, s{sT2}, 10")
        e(f"v_add_u32 v{vXo[ee]}, s{sT3}, v30")
    e(f"s_lshl_b32 s{sT1}, s{sW}, 12")
    for blk in range(6):
        e(f"s_add_u32 s{sT0}, s{sXB}, {blk*16384}")
        for ee in range(4):
            e(f"s_add_u32 m0, s{sT1}, {XOFF + blk*16384 + ee*1024}")
            e("s_nop 0")
            e(f"buffer_load_dwordx4 v{vXo[ee]}, {srd(SX)}, s{sT0} offen lds")
    c("wq raw -> a128..255")
    e(f"v_lshrrev_b32 v30, 2, v1")
    e(f"v_and_b32 v31, 3, v1")
    e(f"v_lshlrev_b32 v{vWq}, 13, v30")
    e(f"v_lshl_add_u32 v{vWq}, v31, 4, v{vWq}")
    e(f"s_lshl_b32 s{sT0}, s{sH}, 8")
    e(f"s_lshl_b32 s{sT1}, s{sW}, 6")
    e(f"s_add_u32 s{sT0}, s{sT0}, s{sT1}")
    for i in range(32):
        e(f"buffer_load_dwordx4 {ar(128+4*i,4)}, v{vWq}, {srd(SWQ)}, s{sT0} offen")
        if i < 31: e(f"s_add_u32 s{sT0}, s{sT0}, 131072")
    c("address setup (overlaps load latency)")
    e(f"s_lshl_b32 s{sT1}, s{sW}, 14")
    e(f"s_add_u32 s{sT1}, s{sT1}, {STG}")
    e(f"v_add_u32 v{vStW}, s{sT1}, v{vL16}")
    e("v_lshrrev_b32 v30, 5, v1")
    e("v_lshlrev_b32 v30, 3, v30")
    e("v_bfe_u32 v31, v1, 2, 2")
    e("v_add_u32 v30, v30, v31")
    e(f"v_lshlrev_b32 v{vStR}, 6, v30")
    e("v_bfe_u32 v30, v1, 4, 1")
    e(f"v_lshl_add_u32 v{vStR}, v30, 5, v{vStR}")
    e("v_and_b32 v30, 1, v1")
    e(f"v_lshl_add_u32 v{vStR}, v30, 4, v{vStR}")
    e("v_bfe_u32 v30, v1, 1, 1")
    e(f"v_lshl_add_u32 v{vStR}, v30, 3, v{vStR}")
    e(f"v_add_u32 v{vStR}, s{sT1}, v{vStR}")
    e("v_and_b32 v30, 31, v1")
    e("v_lshlrev_b32 v30, 10, v30")
    e("v_lshrrev_b32 v31, 5, v1")
    for lo in range(8):
        e(f"v_add_u32 v{vXa[lo]}, {2*lo}, v31")
        e(f"v_xor_b32 v{vXa[lo]}, v{vXa[lo]}, v1")
        e(f"v_and_b32 v{vXa[lo]}, 15, v{vXa[lo]}")
        e(f"v_lshl_add_u32 v{vXa[lo]}, v{vXa[lo]}, 4, v30")
        e(f"v_add_u32 v{112+lo}, 0x10000, v{vXa[lo]}")
    e("v_bfe_u32 v30, v1, 4, 1")
    e(f"v_lshlrev_b32 v{vQw}, 12, v30")
    e("v_and_b32 v30, 15, v1")
    e(f"v_lshl_add_u32 v{vQw}, v30, 4, v{vQw}")
    e("v_lshrrev_b32 v30, 5, v1")
    e(f"v_lshl_add_u32 v{vQw}, v30, 8, v{vQw}")
    e(f"s_lshl_b32 s{sT1}, s{sW}, 10")
    e(f"s_add_u32 s{sT1}, s{sT1}, {QOFF}")
    e(f"v_add_u32 v{vQw}, s{sT1}, v{vQw}")
    e("v_bfe_u32 v30, v1, 4, 1")
    e("v_lshlrev_b32 v30, 1, v30")
    e("v_xor_b32 v30, v30, v1")
    e("v_and_b32 v30, 3, v30")
    e("v_lshrrev_b32 v31, 2, v1")
    e(f"v_lshlrev_b32 v{vVo}, 8, v31")
    e(f"v_lshl_add_u32 v{vVo}, v30, 4, v{vVo}")
    e(f"v_lshlrev_b32 v{vVr[0]}, 6, v31")
    e("v_and_b32 v30, 3, v1")
    e(f"v_lshl_add_u32 v{vVr[0]}, v30, 3, v{vVr[0]}")
    e("v_bfe_u32 v30, v1, 4, 1")
    e(f"v_lshl_add_u32 v{vVr[0]}, v30, 5, v{vVr[0]}")
    e(f"s_lshl_b32 s{sT1}, s{sW}, 15")
    e(f"v_add_u32 v{vVr[0]}, s{sT1}, v{vVr[0]}")
    e(f"v_xor_b32 v{vVr[1]}, 32, v{vVr[0]}")
    e(f"v_add_u32 v{vSl[0]}, s{sT1}, v{vL16}")
    e(f"s_lshl_b32 s{sT1}, s{sW}, 13")
    e(f"s_add_u32 s{sT1}, s{sT1}, {EXTRA}")
    e(f"v_add_u32 v{vSl[1]}, s{sT1}, v{vL16}")
    e(f"s_lshl_b32 s{sT1}, s{sWN}, 15")
    e(f"v_add_u32 v{vSr[0]}, s{sT1}, v{vL16}")
    e(f"s_lshl_b32 s{sT1}, s{sWN}, 13")
    e(f"s_add_u32 s{sT1}, s{sT1}, {EXTRA}")
    e(f"v_add_u32 v{vSr[1]}, s{sT1}, v{vL16}")
    e("v_and_b32 v30, 15, v1")
    e(f"v_lshlrev_b32 v{vStr}, 4, v30")
    e(f"v_add_u32 v{vStr}, {MAXOFF}, v{vStr}")
    e(f"s_lshl_b32 s{sT1}, s{sW}, 2")
    e(f"v_add_u32 v{vSt}, s{sT1}, v{vStr}")
    c("K tiles 2..7")
    for a in range(2,8): kload(a)
    c("---- Q projection")
    stamp("issued")
    e("s_waitcnt vmcnt(56)")
    e("s_barrier")
    stamp("x_ready")
    ACC = 32; XF = 80; WF = 104
    def rd_frags(S_, buf):
        ch, s = S_//8, S_%8
        hi, lo = S_//8, S_%8
        for u in range(2):
            e(f"ds_read_b64_tr_b16 {vr(WF+buf*4+u*2,2)}, v{vStR} offset:{(ch&1)*8192 + s*1024 + u*256}")
        for t3 in range(3):
            if t3 < 2: e(f"ds_read_b128 {vr(XF+buf*12+t3*4,4)}, v{vXa[lo]} offset:{t3*32768 + hi*256}")
            else: e(f"ds_read_b128 {vr(XF+buf*12+t3*4,4)}, v{112+lo} offset:{hi*256}")
    def stage(ch):
        e(f"s_waitcnt vmcnt({24 + 8*(3-ch)})")
        for i in range(8):
            e(f"ds_write_b128 v{vStW}, {ar(128+(ch*8+i)*4,4)} offset:{(ch&1)*8192 + i*1024}")
    stage(0)
    stage(1)
    e("s_waitcnt lgkmcnt(0)")
    rd_frags(0, 0)
    for S_ in range(32):
        buf = S_ & 1
        restage = (S_ % 8 == 7) and (S_//8 + 2 <= 3)
        if S_ + 1 < 32:
            rd_frags(S_+1, buf^1)
            e("s_waitcnt lgkmcnt(5)")
        else:
            e("s_waitcnt lgkmcnt(0)")
        for t3 in range(3):
            cin = "0" if S_ == 0 else vr(ACC+t3*16,16)
            e(f"v_mfma_f32_32x32x16_bf16 {vr(ACC+t3*16,16)}, {vr(WF+buf*4,4)}, {vr(XF+buf*12+t3*4,4)}, {cin}")
        if restage:
            stage(S_//8 + 2)
            e("s_waitcnt lgkmcnt(0)")
    e("s_barrier")
    stamp("qproj_done")
    c("V DMA (order o -> dgroup (w+1+o)&3)")
    e(f"s_lshl_b32 s{sT2}, s{sW}, 15")
    for o in range(4):
        e(f"s_add_u32 s{sT0}, s{sW}, {1+o}")
        e(f"s_and_b32 s{sT0}, s{sT0}, 3")
        e(f"s_lshl_b32 s{sT0}, s{sT0}, 6")
        e(f"s_add_u32 s{sT0}, s{sT0}, s{sKV}")
        for i in range(8):
            e(f"s_add_u32 m0, s{sT2}, {o*8192 + i*1024}")
            e(f"s_add_u32 s{sT1}, s{sT0}, {i*4096}")
            e(f"buffer_load_dwordx4 v{vVo}, {srd(SV)}, s{sT1} offen lds")
    c("Q -> bf16 frags in LDS")
    for t3 in range(3):
        for t in range(2):
            b0 = ACC + t3*16 + t*8
            for k in range(4):
                e(f"v_cvt_pk_bf16_f32 v{XF+(t3*2+t)*4+k}, v{b0+2*k}, v{b0+2*k+1}")
            e(f"ds_write_b128 v{vQw}, {vr(XF+(t3*2+t)*4,4)} offset:{t3*8192 + t*512}")
    e("s_waitcnt lgkmcnt(0)")
    e("s_barrier")
    e(f"v_add_u32 v30, {QOFF}, v{vL16}")
    for j in range(6):
        for s in range(4):
            e(f"ds_read_b128 {ar(128+(j*4+s)*4,4)}, v30 offset:{(j*4+s)*1024}")
    stamp("S_start")
    c("---- S = K Q^T")
    for a in range(8):
        n = (7-a)*4 + 32
        e(f"s_waitcnt vmcnt({n})" + (" lgkmcnt(0)" if a == 0 else ""))
        for s in range(4):
            for j in range(6):
                cin = "0" if s == 0 else vr(S(a,j),4)
                e(f"v_mfma_f32_16x16x32_bf16 {vr(S(a,j),4)}, {ar((a*4+s)*4,4)}, {ar(128+(j*4+s)*4,4)}, {cin}")
    nop(8)
    stamp("S_done")
    c("---- softmax: max")
    for j in range(6):
        vals = [S(a,j)+i for a in range(8) for i in range(4)]
        e(f"v_max3_f32 v{vM+j}, v{vals[0]}, v{vals[1]}, v{vals[2]}")
        k = 3
        while k + 1 < 32:
            e(f"v_max3_f32 v{vM+j}, v{vM+j}, v{vals[k]}, v{vals[k+1]}"); k += 2
        e(f"v_max_f32 v{vM+j}, v{vM+j}, v{vals[31]}")
    def xreduce(base, op):
        for sw in ("v_permlane32_swap_b32", "v_permlane16_swap_b32"):
            for j in range(6): e(f"v_mov_b32 v{vTmp+j}, v{base+j}")
            nop(2)
            for j in range(6): e(f"{sw} v{base+j}, v{vTmp+j}")
            nop(2)
            for j in range(6): e(f"{op} v{base+j}, v{base+j}, v{vTmp+j}")
    xreduce(vM, "v_max_f32")
    for j in range(6):
        e(f"ds_write_b32 v{vSt}, v{vM+j} offset:{j*256}")
    e("s_waitcnt lgkmcnt(0)")
    e("s_barrier")
    for j in range(5):
        e(f"ds_read_b128 {vr(vTmp+j*4,4)}, v{vStr} offset:{j*256}")
    e(f"ds_read_b128 {vr(vXa[1],4)}, v{vStr} offset:{5*256}")
    e("s_waitcnt lgkmcnt(0)")
    for j in range(6):
        b0 = vTmp + j*4 if j < 5 else vXa[1]
        e(f"v_max3_f32 v{vM+j}, v{b0}, v{b0+1}, v{b0+2}")
        e(f"v_max_f32 v{vM+j}, v{vM+j}, v{b0+3}")
        e(f"v_mul_f32 v{vM+j}, s{sC}, v{vM+j}")
    c("exp, sum, pack")
    for j in range(6):
        for s in range(4):
            regs8 = [S(2*s,j)+i for i in range(4)] + [S(2*s+1,j)+i for i in range(4)]
            for r in regs8: e(f"v_fma_f32 v{r}, v{r}, s{sC}, -v{vM+j}")
            for r in regs8: e(f"v_exp_f32 v{r}, v{r}")
            e("s_nop 0")
            if s == 0:
                e(f"v_add_f32 v{vLs+j}, v{regs8[0]}, v{regs8[1]}")
                rest = regs8[2:]
            else:
                rest = regs8
            for r in rest: e(f"v_add_f32 v{vLs+j}, v{vLs+j}, v{r}")
            for k in range(4):
                e(f"v_cvt_pk_bf16_f32 v{S(2*s,j)+k}, v{regs8[2*k]}, v{regs8[2*k+1]}")
    xreduce(vLs, "v_add_f32")
    for j in range(6):
        e(f"ds_write_b32 v{vSt}, v{vLs+j} offset:{SUMOFF - MAXOFF + j*256}")
    e("s_waitcnt lgkmcnt(0)")
    e("s_barrier")
    for j in range(5):
        e(f"ds_read_b128 {vr(vTmp+j*4,4)}, v{vStr} offset:{SUMOFF - MAXOFF + j*256}")
    e(f"ds_read_b128 {vr(vXa[1],4)}, v{vStr} offset:{SUMOFF - MAXOFF + 5*256}")
    e("v_lshrrev_b32 v30, 2, v1")
    e("v_and_b32 v31, 3, v1")
    e(f"v_lshlrev_b32 v{vWo}, 10, v30")
    e(f"v_lshl_add_u32 v{vWo}, v31, 4, v{vWo}")
    e(f"s_lshl_b32 s{sT3}, s{sW}, 20")
    e(f"s_lshl_b32 s{sT1}, s{sCT}, 6")
    e(f"s_add_u32 s{sT3}, s{sT3}, s{sT1}")
    e("s_waitcnt lgkmcnt(0)")
    for j in range(6):
        b0 = vTmp + j*4 if j < 5 else vXa[1]
        e(f"v_add_f32 v{vLs+j}, v{b0}, v{b0+1}")
        e(f"v_add_f32 v{b0+2}, v{b0+2}, v{b0+3}")
        e(f"v_add_f32 v{vLs+j}, v{vLs+j}, v{b0+2}")
        e(f"v_rcp_f32 v{vLs+j}, v{vLs+j}")
    stamp("softmax_done")
    c("---- PV chain")
    def ACCT(tt): return S(1, tt) if tt < 6 else S(3, tt-6)
    def VF(k): return S(5, k) if k < 6 else S(7, k-6)
    wo_issued = 0
    def slot_addr(own, o, tt):
        v = vSl if own else vSr
        if tt < 8: return f"v{v[0]} offset:{(o&1)*8192 + tt*1024}"
        return f"v{v[1]} offset:{(o&1)*4096 + (tt-8)*1024}"
    for o in range(4):
        c(f"PV step {o}")
        for i in range(16):
            e(f"buffer_load_dwordx4 {ar(4*wo_issued,4)}, v{vWo}, {srd(SWO)}, s{sT3} offen")
            e(f"s_add_u32 s{sT3}, s{sT3}, 16384")
            wo_issued += 1
            if o == 3 and i == 14: break
        if o > 0:
            for tt in range(12):
                e(f"ds_read_b128 {vr(ACCT(tt),4)}, {slot_addr(False, o-1, tt)}")
        e(f"s_waitcnt vmcnt({8*(3-o) + wo_issued})")
        if o in (0,3): stamp(f"V{o}_ready")
        for s in range(4):
            for j2 in range(2):
                for u in range(2):
                    e(f"ds_read_b64_tr_b16 {vr(VF(s*2+j2)+2*u,2)}, v{vVr[j2]} offset:{o*8192 + s*2048 + u*1024}")
        for s in range(4):
            e(f"s_waitcnt lgkmcnt({min(15,(3-s)*4)})")
            for j2 in range(2):
                for j in range(6):
                    tt = j2*6 + j
                    cin = "0" if (o == 0 and s == 0) else vr(ACCT(tt),4)
                    e(f"v_mfma_f32_16x16x32_bf16 {vr(ACCT(tt),4)}, {vr(VF(s*2+j2),4)}, {vr(S(2*s,j),4)}, {cin}")
        if o < 3:
            nop(4)
            for tt in range(12):
                a_ = slot_addr(True, o, tt).split(" ")
                e(f"ds_write_b128 {a_[0]}, {vr(ACCT(tt),4)} {a_[1]}")
            e("s_waitcnt lgkmcnt(0)")
            e("s_barrier")
    e(f"buffer_load_dwordx4 {ar(4*63,4)}, v{vWo}, {srd(SWO)}, s{sT3} offen")
    nop(6)
    c("normalize, pack, store O frags")
    e(f"s_lshl_b32 s{sT0}, s{sB}, 5")
    e(f"s_add_u32 s{sT0}, s{sT0}, s{sH}")
    e(f"s_lshl_b32 s{sT0}, s{sT0}, 2")
    e(f"s_add_u32 s{sT0}, s{sT0}, s{sW}")
    e(f"s_mul_i32 s{sT0}, s{sT0}, 6144")
    for j in range(6):
        for j2 in range(2):
            b0 = ACCT(j2*6+j)
            for i in range(4): e(f"v_mul_f32 v{b0+i}, v{b0+i}, v{vLs+j}")
        d = VF(j)
        for j2 in range(2):
            b0 = ACCT(j2*6+j)
            e(f"v_cvt_pk_bf16_f32 v{d+2*j2}, v{b0}, v{b0+1}")
            e(f"v_cvt_pk_bf16_f32 v{d+2*j2+1}, v{b0+2}, v{b0+3}")
        if j < 4:
            e(f"buffer_store_dwordx4 {vr(d,4)}, v{vL16}, {srd(SWS)}, s{sT0} offen offset:{j*1024} sc1")
        else:
            if j == 4: e(f"s_add_u32 s{sT0}, s{sT0}, 4096")
            e(f"buffer_store_dwordx4 {vr(d,4)}, v{vL16}, {srd(SWS)}, s{sT0} offen offset:{(j-4)*1024} sc1")
    e("s_waitcnt vmcnt(0)")
    e("s_barrier")
    stamp("O_stored")
    c("signal: wave 0")
    e(f"s_cmp_lg_u32 s{sW}, 0")
    e("s_cbranch_scc1 L_nosig")
    e("v_mov_b32 v30, 1")
    e(f"s_lshl_b32 s{sT0}, s{sB}, 5")
    e(f"v_mov_b32 v31, s{sT0}")
    e("s_mov_b64 s[72:73], exec")
    e("s_mov_b64 exec, 1")
    e(f"buffer_atomic_add v30, v31, {srd(SDBG)}, 0 offen sc1")
    e("s_mov_b64 exec, s[72:73]")
    lab("L_nosig")
    c("---- transpose wo through LDS (own 32K region), first half before polling")
    e("v_bfe_u32 v30, v1, 4, 1")
    e("v_lshlrev_b32 v30, 1, v30")
    e("v_xor_b32 v30, v30, v1")
    e(f"v_lshlrev_b32 v{vWo}, 4, v30")
    e(f"s_lshl_b32 s{sT1}, s{sW}, 15")
    e(f"v_add_u32 v{vWo}, s{sT1}, v{vWo}")
    def wo_tr(half):
        for i in range(32):
            e(f"ds_write_b128 v{vWo}, {ar((half*32+i)*4,4)} offset:{i*1024}")
        e("s_waitcnt lgkmcnt(0)")
        for ks in range(16):
            for j in range(2):
                for u in range(2):
                    e(f"ds_read_b64_tr_b16 {ar((half*16+ks)*8 + j*4 + u*2,2)}, v{vVr[j]} offset:{ks*2048 + u*1024}")
        e("s_waitcnt lgkmcnt(0)")
    wo_tr(0)
    c("poll (wave 0), then barrier")
    e(f"s_cmp_lg_u32 s{sW}, 0")
    e("s_cbranch_scc1 L_nopoll")
    e(f"s_lshl_b32 s{sT0}, s{sB2}, 5")
    e(f"v_mov_b32 v31, s{sT0}")
    e(f"s_mov_b32 s{sCNT}, 0")
    lab("L_poll")
    e(f"buffer_load_dword v30, v31, {srd(SDBG)}, 0 offen sc1")
    e("s_waitcnt vmcnt(0)")
    e(f"v_readfirstlane_b32 s{sT1}, v30")
    e(f"s_add_u32 s{sCNT}, s{sCNT}, 1")
    e(f"s_cmp_ge_u32 s{sT1}, 32")
    e("s_cbranch_scc1 L_nopoll")
    e(f"s_cmp_lt_u32 s{sCNT}, 2000000")
    e("s_cbranch_scc1 L_poll")
    lab("L_nopoll")
    e("s_barrier")
    stamp("poll_done")
    c("---- out projection")
    e(f"s_lshl_b32 s{sOB}, s{sB2}, 5")
    e(f"s_lshl_b32 s{sT0}, s{sW}, 3")
    e(f"s_add_u32 s{sOB}, s{sOB}, s{sT0}")
    e(f"s_mul_i32 s{sOB}, s{sOB}, 24576")
    e(f"s_mul_i32 s{sT0}, s{sQH}, 3072")
    e(f"s_add_u32 s{sOB}, s{sOB}, s{sT0}")
    OA = 224
    def oload(ks):
        e(f"s_add_u32 s{sT0}, s{sOB}, {ks*6144}")
        for jj in range(3):
            e(f"buffer_load_dwordx4 {vr(32 + ((ks%16)*3+jj)*4,4)}, v{vL16}, {srd(SWS)}, s{sT0} offen offset:{jj*1024} sc1")
    for ks in range(16): oload(ks)
    wo_tr(1)
    for ks in range(32):
        rem = min(31, ks+15) - ks
        e(f"s_waitcnt vmcnt({rem*3})")
        for jj in range(3):
            for j in range(2):
                d = OA + (jj*2+j)*4
                cin = "0" if ks == 0 else vr(d,4)
                e(f"v_mfma_f32_16x16x32_bf16 {vr(d,4)}, {ar(ks*8+j*4,4)}, {vr(32+((ks%16)*3+jj)*4,4)}, {cin}")
        if ks + 16 < 32: oload(ks+16)
    nop(8)
    stamp("oproj_done")
    c("cross-wave reduce")
    e(f"s_mul_i32 s{sT1}, s{sW}, 6144")
    e(f"v_add_u32 v30, s{sT1}, v{vL16}")
    e("s_barrier")
    for t in range(6):
        e(f"ds_write_b128 v30, {vr(OA+t*4,4)} offset:{t*1024}")
    e("s_waitcnt lgkmcnt(0)")
    e("s_barrier")
    e(f"s_cmp_ge_u32 s{sW}, 3")
    e("s_cbranch_scc1 L_end")
    e(f"s_lshl_b32 s{sT1}, s{sW}, 11")
    e(f"v_add_u32 v30, s{sT1}, v{vL16}")
    for ww in range(4):
        for j in range(2):
            e(f"ds_read_b128 {vr(32+(ww*2+j)*4,4)}, v30 offset:{ww*6144 + j*1024}")
    e(f"s_mul_i32 s{sT0}, s{sB2}, 96")
    e(f"s_mul_i32 s{sT1}, s{sQH}, 48")
    e(f"s_add_u32 s{sT0}, s{sT0}, s{sT1}")
    e(f"s_lshl_b32 s{sT1}, s{sW}, 4")
    e(f"s_add_u32 s{sT0}, s{sT0}, s{sT1}")
    e(f"s_lshl_b32 s{sT0}, s{sT0}, 10")
    e(f"s_lshl_b32 s{sT1}, s{sCT}, 6")
    e(f"s_add_u32 s{sT0}, s{sT0}, s{sT1}")
    e("v_and_b32 v31, 15, v1")
    e("v_lshlrev_b32 v31, 10, v31")
    e("v_lshrrev_b32 v2, 4, v1")
    e("v_lshl_add_u32 v31, v2, 3, v31")
    e("s_waitcnt lgkmcnt(0)")
    for j in range(2):
        for i in range(4):
            e(f"v_add_f32 v{32+j*4+i}, v{32+j*4+i}, v{40+j*4+i}")
            e(f"v_add_f32 v{48+j*4+i}, v{48+j*4+i}, v{56+j*4+i}")
            e(f"v_add_f32 v{32+j*4+i}, v{32+j*4+i}, v{48+j*4+i}")
        e(f"v_cvt_pk_bf16_f32 v{64+j*2}, v{32+j*4}, v{33+j*4}")
        e(f"v_cvt_pk_bf16_f32 v{65+j*2}, v{34+j*4}, v{35+j*4}")
        e(f"buffer_store_dwordx2 {vr(64+j*2,2)}, v31, {srd(SOUT)}, s{sT0} offen offset:{j*32}")
    stamp("end")
    stamp_dump()
    lab("L_end")
    e("s_endpgm")

gen()
hdr = open("cdna_kernels/%s.s.ref" % NAME).read().split("; @launch")[0]
out = hdr + "; @launch grid=(256,1,1) block=(256,1,1) lds=163840\n"
out += f""".amdgcn_target "amdgcn-amd-amdhsa--gfx950"
.text
.globl {NAME}_kernel
.p2align 8
.type {NAME}_kernel,@function
{NAME}_kernel:
""" + "\n".join(L) + f"""
.section .rodata,"a"
.p2align 6
.amdhsa_kernel {NAME}_kernel
  .amdhsa_next_free_vgpr 512
  .amdhsa_next_free_sgpr 102
  .amdhsa_accum_offset 256
  .amdhsa_group_segment_fixed_size 0
  .amdhsa_kernarg_size 64
  .amdhsa_user_sgpr_count 2
  .amdhsa_user_sgpr_kernarg_segment_ptr 1
  .amdhsa_system_sgpr_workgroup_id_x 1
.end_amdhsa_kernel
"""
dst = sys.argv[1] if len(sys.argv) > 1 else "cdna_kernels/%s.s" % NAME
open(dst, "w").write(out)
print("wrote", dst, len(L), "lines")
```

```python
import sys
L = []
def e(s): L.append("    " + s)
def lab(s): L.append(s + ":")
def c(s): L.append("    ; " + s)
def nop(n):
    while n > 0:
        k = min(n, 16); e(f"s_nop {k-1}"); n -= k

NAME = "standalone__gqa_block_cached__near_ridge"
XOFF = 0
STG = 98304
QOFF = 131072
EXTRA = 131072
MAXOFF = 155648
SUMOFF = 159744 - 2048
SUMOFF = 159744 - 0
SUMOFF = 160*1024 - 2048
SX, SK, SV, SWQ, SWO, SOUT, SWS, SDBG = 8, 12, 16, 20, 24, 28, 32, 36
sW, sB, sH, sT0, sT1, sT2, sT3 = 40, 41, 42, 43, 44, 45, 46
sKV = 47
sXB = 48
sC = 49
sB2, sQH, sCT = 50, 51, 52
sOB = 53
sWN = 54
sCNT = 55
def srd(r): return f"s[{r}:{r+3}]"
vLane = 1
vKo = 2
vXo = [3,4,5,6]
vWq = 7
vL16 = 8
vStW = 9
vStR = 10
vXa = list(range(11,19))
vQw = 19
vVo = 20
vVr = [21,22]
vSl = [23,24]
vSr = [25,26]
vSt = 27
vStr = 28
vWo = 29
vT = [30,31]
def S(a,j): return 32 + (a*6+j)*4
vM = 224; vLs = 230; vTmp = 236
def vr(b,n): return f"v[{b}:{b+n-1}]"
def ar(b,n): return f"a[{b}:{b+n-1}]"

import os
STAMP = os.environ.get("STAMP")
stamps = []
def stamp(name):
    if STAMP is None: return
    k = len(stamps); stamps.append(name)
    e(f"s_memtime s[{74+2*k}:{75+2*k}]")
    e("s_waitcnt lgkmcnt(0)")
def stamp_dump():
    if STAMP is None: return
    e(f"s_cmp_lg_u32 s2, {STAMP}")
    e("s_cbranch_scc1 L_end")
    e(f"s_cmp_lg_u32 s{sW}, 0")
    e("s_cbranch_scc1 L_end")
    e("s_mov_b64 exec, 1")
    idx = [1,2,3,4,5,6,7,9,10,11,12,13,14,15]
    for k in range(1, len(stamps)):
        e(f"s_sub_u32 s{sT0}, s{74+2*k}, s74")
        e(f"v_mov_b32 v30, s{sT0}")
        e(f"v_mov_b32 v31, {idx[k-1]*4}")
        e(f"buffer_store_dword v30, v31, {srd(SDBG)}, 0 offen")
        e("s_nop 1")
    print("stamps:", list(zip(idx, stamps[1:])))
def gen(fused=True):
    e("s_cmp_ge_u32 s2, 256")
    e("s_cbranch_scc1 L_end")
    stamp("start")
    e("s_load_dwordx16 s[56:71], s[0:1], 0")
    e("v_and_b32 v1, 63, v0")
    if os.environ.get("CPF"):
        e("s_getpc_b64 s[72:73]")
        lab("L_pc")
        e("v_lshlrev_b32 v31, 6, v0")
        for k in range(2):
            e("v_min_u32 v30, L_end-L_pc, v31")
            e(f"global_load_dword v{232+k}, v30, s[72:73]")
            e("v_add_u32 v31, 0x4000, v31")
    e("v_lshrrev_b32 v30, 6, v0")
    e("s_nop 0")
    e(f"v_readfirstlane_b32 s{sW}, v30")
    e(f"s_and_b32 s{sT0}, s2, 7")
    e(f"s_lshr_b32 s{sT1}, s2, 3")
    e(f"s_and_b32 s{sT2}, s{sT1}, 3")
    e(f"s_lshl_b32 s{sH}, s{sT0}, 2")
    e(f"s_add_u32 s{sH}, s{sH}, s{sT2}")
    e(f"s_lshr_b32 s{sB}, s{sT1}, 2")
    e(f"s_lshr_b32 s{sB2}, s{sT0}, 1")
    e(f"s_lshl_b32 s{sB2}, s{sB2}, 1")
    e(f"s_lshr_b32 s{sT3}, s{sT2}, 1")
    e(f"s_add_u32 s{sB2}, s{sB2}, s{sT3}")
    e(f"s_and_b32 s{sQH}, s{sT2}, 1")
    e(f"s_and_b32 s{sCT}, s{sT0}, 1")
    e(f"s_lshl_b32 s{sCT}, s{sCT}, 3")
    e(f"s_add_u32 s{sCT}, s{sCT}, s{sB}")
    e(f"s_lshl_b32 s{sKV}, s{sB}, 5")
    e(f"s_add_u32 s{sKV}, s{sKV}, s{sH}")
    e(f"s_lshl_b32 s{sKV}, s{sKV}, 17")
    e(f"s_lshl_b32 s{sT3}, s{sW}, 15")
    e(f"s_add_u32 s{sKV}, s{sKV}, s{sT3}")
    e(f"s_mul_i32 s{sXB}, s{sB}, 98304")
    e(f"s_add_u32 s{sWN}, s{sW}, 1")
    e(f"s_and_b32 s{sWN}, s{sWN}, 3")
    e(f"s_mov_b32 s{sC}, 0x3e0293ee")
    e(f"v_and_b32 v30, 15, v1")
    e(f"v_lshrrev_b32 v31, 4, v1")
    e(f"v_lshlrev_b32 v{vKo}, 8, v30")
    e(f"v_lshl_add_u32 v{vKo}, v31, 4, v{vKo}")
    e(f"v_lshlrev_b32 v{vL16}, 4, v1")
    e("s_waitcnt lgkmcnt(0)")
    sizes = [786432, 33554432, 33554432, 4194304, 4194304, 786432, 256, 6291456]
    regs = [SX, SK, SV, SWQ, SWO, SOUT, SDBG, SWS]
    for i,(r,sz) in enumerate(zip(regs,sizes)):
        e(f"s_mov_b32 s{r}, s{56+2*i}")
        e(f"s_and_b32 s{r+1}, s{57+2*i}, 0xffff")
        e(f"s_mov_b32 s{r+2}, {sz}")
        e(f"s_mov_b32 s{r+3}, 0x00020000")
    def kload(a):
        e(f"s_add_u32 s{sT0}, s{sKV}, {a*4096}")
        for s in range(4):
            e(f"buffer_load_dwordx4 {ar((a*4+s)*4,4)}, v{vKo}, {srd(SK)}, s{sT0} offen offset:{s*64}")
    c("K tiles 0,1")
    kload(0); kload(1)
    c("x DMA")
    e(f"s_lshl_b32 s{sT1}, s{sW}, 2")
    for ee in range(4):
        e(f"s_add_u32 s{sT2}, s{sT1}, {ee}")
        e(f"v_xor_b32 v30, s{sT2}, v1")
        e(f"v_lshlrev_b32 v30, 4, v30")
        e(f"s_lshl_b32 s{sT3}, s{sT2}, 10")
        e(f"v_add_u32 v{vXo[ee]}, s{sT3}, v30")
    e(f"s_lshl_b32 s{sT1}, s{sW}, 12")
    for blk in range(6):
        e(f"s_add_u32 s{sT0}, s{sXB}, {blk*16384}")
        for ee in range(4):
            e(f"s_add_u32 m0, s{sT1}, {XOFF + blk*16384 + ee*1024}")
            e("s_nop 0")
            e(f"buffer_load_dwordx4 v{vXo[ee]}, {srd(SX)}, s{sT0} offen lds")
    c("wq raw -> a128..255")
    e(f"v_lshrrev_b32 v30, 2, v1")
    e(f"v_and_b32 v31, 3, v1")
    e(f"v_lshlrev_b32 v{vWq}, 13, v30")
    e(f"v_lshl_add_u32 v{vWq}, v31, 4, v{vWq}")
    e(f"s_lshl_b32 s{sT0}, s{sH}, 8")
    e(f"s_lshl_b32 s{sT1}, s{sW}, 6")
    e(f"s_add_u32 s{sT0}, s{sT0}, s{sT1}")
    for i in range(32):
        e(f"buffer_load_dwordx4 {ar(128+4*i,4)}, v{vWq}, {srd(SWQ)}, s{sT0} offen")
        if i < 31: e(f"s_add_u32 s{sT0}, s{sT0}, 131072")
    c("address setup (overlaps load latency)")
    e(f"s_lshl_b32 s{sT1}, s{sW}, 14")
    e(f"s_add_u32 s{sT1}, s{sT1}, {STG}")
    e(f"v_add_u32 v{vStW}, s{sT1}, v{vL16}")
    e("v_lshrrev_b32 v30, 5, v1")
    e("v_lshlrev_b32 v30, 3, v30")
    e("v_bfe_u32 v31, v1, 2, 2")
    e("v_add_u32 v30, v30, v31")
    e(f"v_lshlrev_b32 v{vStR}, 6, v30")
    e("v_bfe_u32 v30, v1, 4, 1")
    e(f"v_lshl_add_u32 v{vStR}, v30, 5, v{vStR}")
    e("v_and_b32 v30, 1, v1")
    e(f"v_lshl_add_u32 v{vStR}, v30, 4, v{vStR}")
    e("v_bfe_u32 v30, v1, 1, 1")
    e(f"v_lshl_add_u32 v{vStR}, v30, 3, v{vStR}")
    e(f"v_add_u32 v{vStR}, s{sT1}, v{vStR}")
    e("v_and_b32 v30, 31, v1")
    e("v_lshlrev_b32 v30, 10, v30")
    e("v_lshrrev_b32 v31, 5, v1")
    for lo in range(8):
        e(f"v_add_u32 v{vXa[lo]}, {2*lo}, v31")
        e(f"v_xor_b32 v{vXa[lo]}, v{vXa[lo]}, v1")
        e(f"v_and_b32 v{vXa[lo]}, 15, v{vXa[lo]}")
        e(f"v_lshl_add_u32 v{vXa[lo]}, v{vXa[lo]}, 4, v30")
        e(f"v_add_u32 v{112+lo}, 0x10000, v{vXa[lo]}")
    e("v_bfe_u32 v30, v1, 4, 1")
    e(f"v_lshlrev_b32 v{vQw}, 12, v30")
    e("v_and_b32 v30, 15, v1")
    e(f"v_lshl_add_u32 v{vQw}, v30, 4, v{vQw}")
    e("v_lshrrev_b32 v30, 5, v1")
    e(f"v_lshl_add_u32 v{vQw}, v30, 8, v{vQw}")
    e(f"s_lshl_b32 s{sT1}, s{sW}, 10")
    e(f"s_add_u32 s{sT1}, s{sT1}, {QOFF}")
    e(f"v_add_u32 v{vQw}, s{sT1}, v{vQw}")
    e("v_bfe_u32 v30, v1, 4, 1")
    e("v_lshlrev_b32 v30, 1, v30")
    e("v_xor_b32 v30, v30, v1")
    e("v_and_b32 v30, 3, v30")
    e("v_lshrrev_b32 v31, 2, v1")
    e(f"v_lshlrev_b32 v{vVo}, 8, v31")
    e(f"v_lshl_add_u32 v{vVo}, v30, 4, v{vVo}")
    e(f"v_lshlrev_b32 v{vVr[0]}, 6, v31")
    e("v_and_b32 v30, 3, v1")
    e(f"v_lshl_add_u32 v{vVr[0]}, v30, 3, v{vVr[0]}")
    e("v_bfe_u32 v30, v1, 4, 1")
    e(f"v_lshl_add_u32 v{vVr[0]}, v30, 5, v{vVr[0]}")
    e(f"s_lshl_b32 s{sT1}, s{sW}, 15")
    e(f"v_add_u32 v{vVr[0]}, s{sT1}, v{vVr[0]}")
    e(f"v_xor_b32 v{vVr[1]}, 32, v{vVr[0]}")
    e(f"v_add_u32 v{vSl[0]}, s{sT1}, v{vL16}")
    e(f"s_lshl_b32 s{sT1}, s{sW}, 13")
    e(f"s_add_u32 s{sT1}, s{sT1}, {EXTRA}")
    e(f"v_add_u32 v{vSl[1]}, s{sT1}, v{vL16}")
    e(f"s_lshl_b32 s{sT1}, s{sWN}, 15")
    e(f"v_add_u32 v{vSr[0]}, s{sT1}, v{vL16}")
    e(f"s_lshl_b32 s{sT1}, s{sWN}, 13")
    e(f"s_add_u32 s{sT1}, s{sT1}, {EXTRA}")
    e(f"v_add_u32 v{vSr[1]}, s{sT1}, v{vL16}")
    e("v_and_b32 v30, 15, v1")
    e(f"v_lshlrev_b32 v{vStr}, 4, v30")
    e(f"v_add_u32 v{vStr}, {MAXOFF}, v{vStr}")
    e(f"s_lshl_b32 s{sT1}, s{sW}, 2")
    e(f"v_add_u32 v{vSt}, s{sT1}, v{vStr}")
    c("K tiles 2..7")
    for a in range(2,8): kload(a)
    c("---- Q projection")
    stamp("issued")
    e("s_waitcnt vmcnt(56)")
    e("s_barrier")
    stamp("x_ready")
    ACC = 32; XF = 80; WF = 104
    def rd_frags(S_, buf):
        ch, s = S_//8, S_%8
        hi, lo = S_//8, S_%8
        for u in range(2):
            e(f"ds_read_b64_tr_b16 {vr(WF+buf*4+u*2,2)}, v{vStR} offset:{(ch&1)*8192 + s*1024 + u*256}")
        for t3 in range(3):
            if t3 < 2: e(f"ds_read_b128 {vr(XF+buf*12+t3*4,4)}, v{vXa[lo]} offset:{t3*32768 + hi*256}")
            else: e(f"ds_read_b128 {vr(XF+buf*12+t3*4,4)}, v{112+lo} offset:{hi*256}")
    def stage(ch):
        e(f"s_waitcnt vmcnt({24 + 8*(3-ch)})")
        for i in range(8):
            e(f"ds_write_b128 v{vStW}, {ar(128+(ch*8+i)*4,4)} offset:{(ch&1)*8192 + i*1024}")
    stage(0)
    stage(1)
    e("s_waitcnt lgkmcnt(0)")
    rd_frags(0, 0)
    for S_ in range(32):
        buf = S_ & 1
        restage = (S_ % 8 == 7) and (S_//8 + 2 <= 3)
        if S_ + 1 < 32:
            rd_frags(S_+1, buf^1)
            e("s_waitcnt lgkmcnt(5)")
        else:
            e("s_waitcnt lgkmcnt(0)")
        for t3 in range(3):
            cin = "0" if S_ == 0 else vr(ACC+t3*16,16)
            e(f"v_mfma_f32_32x32x16_bf16 {vr(ACC+t3*16,16)}, {vr(WF+buf*4,4)}, {vr(XF+buf*12+t3*4,4)}, {cin}")
        if restage:
            stage(S_//8 + 2)
            e("s_waitcnt lgkmcnt(0)")
    e("s_barrier")
    stamp("qproj_done")
    c("V DMA (order o -> dgroup (w+1+o)&3)")
    e(f"s_lshl_b32 s{sT2}, s{sW}, 15")
    for o in range(4):
        e(f"s_add_u32 s{sT0}, s{sW}, {1+o}")
        e(f"s_and_b32 s{sT0}, s{sT0}, 3")
        e(f"s_lshl_b32 s{sT0}, s{sT0}, 6")
        e(f"s_add_u32 s{sT0}, s{sT0}, s{sKV}")
        for i in range(8):
            e(f"s_add_u32 m0, s{sT2}, {o*8192 + i*1024}")
            e(f"s_add_u32 s{sT1}, s{sT0}, {i*4096}")
            e(f"buffer_load_dwordx4 v{vVo}, {srd(SV)}, s{sT1} offen lds")
    c("Q -> bf16 frags in LDS")
    for t3 in range(3):
        for t in range(2):
            b0 = ACC + t3*16 + t*8
            for k in range(4):
                e(f"v_cvt_pk_bf16_f32 v{XF+(t3*2+t)*4+k}, v{b0+2*k}, v{b0+2*k+1}")
            e(f"ds_write_b128 v{vQw}, {vr(XF+(t3*2+t)*4,4)} offset:{t3*8192 + t*512}")
    e("s_waitcnt lgkmcnt(0)")
    e("s_barrier")
    e(f"v_add_u32 v30, {QOFF}, v{vL16}")
    for j in range(6):
        for s in range(4):
            e(f"ds_read_b128 {ar(128+(j*4+s)*4,4)}, v30 offset:{(j*4+s)*1024}")
    stamp("S_start")
    c("---- S = K Q^T")
    for a in range(8):
        n = (7-a)*4 + 32
        e(f"s_waitcnt vmcnt({n})" + (" lgkmcnt(0)" if a == 0 else ""))
        for s in range(4):
            for j in range(6):
                cin = "0" if s == 0 else vr(S(a,j),4)
                e(f"v_mfma_f32_16x16x32_bf16 {vr(S(a,j),4)}, {ar((a*4+s)*4,4)}, {ar(128+(j*4+s)*4,4)}, {cin}")
    nop(8)
    stamp("S_done")
    c("---- softmax: max")
    for j in range(6):
        vals = [S(a,j)+i for a in range(8) for i in range(4)]
        e(f"v_max3_f32 v{vM+j}, v{vals[0]}, v{vals[1]}, v{vals[2]}")
        k = 3
        while k + 1 < 32:
            e(f"v_max3_f32 v{vM+j}, v{vM+j}, v{vals[k]}, v{vals[k+1]}"); k += 2
        e(f"v_max_f32 v{vM+j}, v{vM+j}, v{vals[31]}")
    def xreduce(base, op):
        for sw in ("v_permlane32_swap_b32", "v_permlane16_swap_b32"):
            for j in range(6): e(f"v_mov_b32 v{vTmp+j}, v{base+j}")
            nop(2)
            for j in range(6): e(f"{sw} v{base+j}, v{vTmp+j}")
            nop(2)
            for j in range(6): e(f"{op} v{base+j}, v{base+j}, v{vTmp+j}")
    xreduce(vM, "v_max_f32")
    for j in range(6):
        e(f"ds_write_b32 v{vSt}, v{vM+j} offset:{j*256}")
    e("s_waitcnt lgkmcnt(0)")
    e("s_barrier")
    for j in range(5):
        e(f"ds_read_b128 {vr(vTmp+j*4,4)}, v{vStr} offset:{j*256}")
    e(f"ds_read_b128 {vr(vXa[1],4)}, v{vStr} offset:{5*256}")
    e("s_waitcnt lgkmcnt(0)")
    for j in range(6):
        b0 = vTmp + j*4 if j < 5 else vXa[1]
        e(f"v_max3_f32 v{vM+j}, v{b0}, v{b0+1}, v{b0+2}")
        e(f"v_max_f32 v{vM+j}, v{vM+j}, v{b0+3}")
        e(f"v_mul_f32 v{vM+j}, s{sC}, v{vM+j}")
    c("exp, sum, pack")
    for j in range(6):
        for s in range(4):
            regs8 = [S(2*s,j)+i for i in range(4)] + [S(2*s+1,j)+i for i in range(4)]
            for r in regs8: e(f"v_fma_f32 v{r}, v{r}, s{sC}, -v{vM+j}")
            for r in regs8: e(f"v_exp_f32 v{r}, v{r}")
            e("s_nop 0")
            if s == 0:
                e(f"v_add_f32 v{vLs+j}, v{regs8[0]}, v{regs8[1]}")
                rest = regs8[2:]
            else:
                rest = regs8
            for r in rest: e(f"v_add_f32 v{vLs+j}, v{vLs+j}, v{r}")
            for k in range(4):
                e(f"v_cvt_pk_bf16_f32 v{S(2*s,j)+k}, v{regs8[2*k]}, v{regs8[2*k+1]}")
    xreduce(vLs, "v_add_f32")
    for j in range(6):
        e(f"ds_write_b32 v{vSt}, v{vLs+j} offset:{SUMOFF - MAXOFF + j*256}")
    e("s_waitcnt lgkmcnt(0)")
    e("s_barrier")
    for j in range(5):
        e(f"ds_read_b128 {vr(vTmp+j*4,4)}, v{vStr} offset:{SUMOFF - MAXOFF + j*256}")
    e(f"ds_read_b128 {vr(vXa[1],4)}, v{vStr} offset:{SUMOFF - MAXOFF + 5*256}")
    e("v_lshrrev_b32 v30, 2, v1")
    e("v_and_b32 v31, 3, v1")
    e(f"v_lshlrev_b32 v{vWo}, 10, v30")
    e(f"v_lshl_add_u32 v{vWo}, v31, 4, v{vWo}")
    e(f"s_lshl_b32 s{sT3}, s{sW}, 20")
    e(f"s_lshl_b32 s{sT1}, s{sCT}, 6")
    e(f"s_add_u32 s{sT3}, s{sT3}, s{sT1}")
    e("s_waitcnt lgkmcnt(0)")
    for j in range(6):
        b0 = vTmp + j*4 if j < 5 else vXa[1]
        e(f"v_add_f32 v{vLs+j}, v{b0}, v{b0+1}")
        e(f"v_add_f32 v{b0+2}, v{b0+2}, v{b0+3}")
        e(f"v_add_f32 v{vLs+j}, v{vLs+j}, v{b0+2}")
        e(f"v_rcp_f32 v{vLs+j}, v{vLs+j}")
    stamp("softmax_done")
    c("---- PV chain")
    def ACCT(tt): return S(1, tt) if tt < 6 else S(3, tt-6)
    def VF(k): return S(5, k) if k < 6 else S(7, k-6)
    wo_issued = 0
    def slot_addr(own, o, tt):
        v = vSl if own else vSr
        if tt < 8: return f"v{v[0]} offset:{(o&1)*8192 + tt*1024}"
        return f"v{v[1]} offset:{(o&1)*4096 + (tt-8)*1024}"
    for o in range(4):
        c(f"PV step {o}")
        for i in range(16):
            e(f"buffer_load_dwordx4 {ar(4*wo_issued,4)}, v{vWo}, {srd(SWO)}, s{sT3} offen")
            e(f"s_add_u32 s{sT3}, s{sT3}, 16384")
            wo_issued += 1
            if o == 3 and i == 14: break
        if o > 0:
            for tt in range(12):
                e(f"ds_read_b128 {vr(ACCT(tt),4)}, {slot_addr(False, o-1, tt)}")
        e(f"s_waitcnt vmcnt({8*(3-o) + wo_issued})")
        if o in (0,3): stamp(f"V{o}_ready")
        for s in range(4):
            for j2 in range(2):
                for u in range(2):
                    e(f"ds_read_b64_tr_b16 {vr(VF(s*2+j2)+2*u,2)}, v{vVr[j2]} offset:{o*8192 + s*2048 + u*1024}")
        for s in range(4):
            e(f"s_waitcnt lgkmcnt({min(15,(3-s)*4)})")
            for j2 in range(2):
                for j in range(6):
                    tt = j2*6 + j
                    cin = "0" if (o == 0 and s == 0) else vr(ACCT(tt),4)
                    e(f"v_mfma_f32_16x16x32_bf16 {vr(ACCT(tt),4)}, {vr(VF(s*2+j2),4)}, {vr(S(2*s,j),4)}, {cin}")
        if o < 3:
            nop(4)
            for tt in range(12):
                a_ = slot_addr(True, o, tt).split(" ")
                e(f"ds_write_b128 {a_[0]}, {vr(ACCT(tt),4)} {a_[1]}")
            e("s_waitcnt lgkmcnt(0)")
            e("s_barrier")
    e(f"buffer_load_dwordx4 {ar(4*63,4)}, v{vWo}, {srd(SWO)}, s{sT3} offen")
    nop(6)
    c("normalize, pack, store O frags")
    e(f"s_lshl_b32 s{sT0}, s{sB}, 5")
    e(f"s_add_u32 s{sT0}, s{sT0}, s{sH}")
    e(f"s_lshl_b32 s{sT0}, s{sT0}, 2")
    e(f"s_add_u32 s{sT0}, s{sT0}, s{sW}")
    e(f"s_mul_i32 s{sT0}, s{sT0}, 6144")
    for j in range(6):
        for j2 in range(2):
            b0 = ACCT(j2*6+j)
            for i in range(4): e(f"v_mul_f32 v{b0+i}, v{b0+i}, v{vLs+j}")
        d = VF(j)
        for j2 in range(2):
            b0 = ACCT(j2*6+j)
            e(f"v_cvt_pk_bf16_f32 v{d+2*j2}, v{b0}, v{b0+1}")
            e(f"v_cvt_pk_bf16_f32 v{d+2*j2+1}, v{b0+2}, v{b0+3}")
        if j < 4:
            e(f"buffer_store_dwordx4 {vr(d,4)}, v{vL16}, {srd(SWS)}, s{sT0} offen offset:{j*1024} sc1")
        else:
            if j == 4: e(f"s_add_u32 s{sT0}, s{sT0}, 4096")
            e(f"buffer_store_dwordx4 {vr(d,4)}, v{vL16}, {srd(SWS)}, s{sT0} offen offset:{(j-4)*1024} sc1")
    e("s_waitcnt vmcnt(0)")
    e("s_barrier")
    stamp("O_stored")
    c("signal: wave 0")
    e(f"s_cmp_lg_u32 s{sW}, 0")
    e("s_cbranch_scc1 L_nosig")
    e("v_mov_b32 v30, 1")
    e(f"s_lshl_b32 s{sT0}, s{sB}, 5")
    e(f"v_mov_b32 v31, s{sT0}")
    e("s_mov_b64 s[72:73], exec")
    e("s_mov_b64 exec, 1")
    e(f"buffer_atomic_add v30, v31, {srd(SDBG)}, 0 offen sc1")
    e("s_mov_b64 exec, s[72:73]")
    lab("L_nosig")
    c("---- transpose wo through LDS (own 32K region), first half before polling")
    e("v_bfe_u32 v30, v1, 4, 1")
    e("v_lshlrev_b32 v30, 1, v30")
    e("v_xor_b32 v30, v30, v1")
    e(f"v_lshlrev_b32 v{vWo}, 4, v30")
    e(f"s_lshl_b32 s{sT1}, s{sW}, 15")
    e(f"v_add_u32 v{vWo}, s{sT1}, v{vWo}")
    def wo_tr(half):
        for i in range(32):
            e(f"ds_write_b128 v{vWo}, {ar((half*32+i)*4,4)} offset:{i*1024}")
        e("s_waitcnt lgkmcnt(0)")
        for ks in range(16):
            for j in range(2):
                for u in range(2):
                    e(f"ds_read_b64_tr_b16 {ar((half*16+ks)*8 + j*4 + u*2,2)}, v{vVr[j]} offset:{ks*2048 + u*1024}")
        e("s_waitcnt lgkmcnt(0)")
    wo_tr(0)
    c("poll (wave 0), then barrier")
    e(f"s_cmp_lg_u32 s{sW}, 0")
    e("s_cbranch_scc1 L_nopoll")
    e(f"s_lshl_b32 s{sT0}, s{sB2}, 5")
    e(f"v_mov_b32 v31, s{sT0}")
    e(f"s_mov_b32 s{sCNT}, 0")
    lab("L_poll")
    e(f"buffer_load_dword v30, v31, {srd(SDBG)}, 0 offen sc1")
    e("s_waitcnt vmcnt(0)")
    e(f"v_readfirstlane_b32 s{sT1}, v30")
    e(f"s_add_u32 s{sCNT}, s{sCNT}, 1")
    e(f"s_cmp_ge_u32 s{sT1}, 32")
    e("s_cbranch_scc1 L_nopoll")
    e(f"s_cmp_lt_u32 s{sCNT}, 2000000")
    e("s_cbranch_scc1 L_poll")
    lab("L_nopoll")
    e("s_barrier")
    stamp("poll_done")
    c("---- out projection")
    e(f"s_lshl_b32 s{sOB}, s{sB2}, 5")
    e(f"s_lshl_b32 s{sT0}, s{sW}, 3")
    e(f"s_add_u32 s{sOB}, s{sOB}, s{sT0}")
    e(f"s_mul_i32 s{sOB}, s{sOB}, 24576")
    e(f"s_mul_i32 s{sT0}, s{sQH}, 3072")
    e(f"s_add_u32 s{sOB}, s{sOB}, s{sT0}")
    OA = 224
    def oload(ks):
        e(f"s_add_u32 s{sT0}, s{sOB}, {ks*6144}")
        for jj in range(3):
            e(f"buffer_load_dwordx4 {vr(32 + ((ks%16)*3+jj)*4,4)}, v{vL16}, {srd(SWS)}, s{sT0} offen offset:{jj*1024} sc1")
    for ks in range(16): oload(ks)
    wo_tr(1)
    for ks in range(32):
        rem = min(31, ks+15) - ks
        e(f"s_waitcnt vmcnt({rem*3})")
        for jj in range(3):
            for j in range(2):
                d = OA + (jj*2+j)*4
                cin = "0" if ks == 0 else vr(d,4)
                e(f"v_mfma_f32_16x16x32_bf16 {vr(d,4)}, {ar(ks*8+j*4,4)}, {vr(32+((ks%16)*3+jj)*4,4)}, {cin}")
        if ks + 16 < 32: oload(ks+16)
    nop(8)
    stamp("oproj_done")
    c("cross-wave reduce")
    e(f"s_mul_i32 s{sT1}, s{sW}, 6144")
    e(f"v_add_u32 v30, s{sT1}, v{vL16}")
    e("s_barrier")
    for t in range(6):
        e(f"ds_write_b128 v30, {vr(OA+t*4,4)} offset:{t*1024}")
    e("s_waitcnt lgkmcnt(0)")
    e("s_barrier")
    e(f"s_cmp_ge_u32 s{sW}, 3")
    e("s_cbranch_scc1 L_end")
    e(f"s_lshl_b32 s{sT1}, s{sW}, 11")
    e(f"v_add_u32 v30, s{sT1}, v{vL16}")
    for ww in range(4):
        for j in range(2):
            e(f"ds_read_b128 {vr(32+(ww*2+j)*4,4)}, v30 offset:{ww*6144 + j*1024}")
    e(f"s_mul_i32 s{sT0}, s{sB2}, 96")
    e(f"s_mul_i32 s{sT1}, s{sQH}, 48")
    e(f"s_add_u32 s{sT0}, s{sT0}, s{sT1}")
    e(f"s_lshl_b32 s{sT1}, s{sW}, 4")
    e(f"s_add_u32 s{sT0}, s{sT0}, s{sT1}")
    e(f"s_lshl_b32 s{sT0}, s{sT0}, 10")
    e(f"s_lshl_b32 s{sT1}, s{sCT}, 6")
    e(f"s_add_u32 s{sT0}, s{sT0}, s{sT1}")
    e("v_and_b32 v31, 15, v1")
    e("v_lshlrev_b32 v31, 10, v31")
    e("v_lshrrev_b32 v2, 4, v1")
    e("v_lshl_add_u32 v31, v2, 3, v31")
    e("s_waitcnt lgkmcnt(0)")
    for j in range(2):
        for i in range(4):
            e(f"v_add_f32 v{32+j*4+i}, v{32+j*4+i}, v{40+j*4+i}")
            e(f"v_add_f32 v{48+j*4+i}, v{48+j*4+i}, v{56+j*4+i}")
            e(f"v_add_f32 v{32+j*4+i}, v{32+j*4+i}, v{48+j*4+i}")
        e(f"v_cvt_pk_bf16_f32 v{64+j*2}, v{32+j*4}, v{33+j*4}")
        e(f"v_cvt_pk_bf16_f32 v{65+j*2}, v{34+j*4}, v{35+j*4}")
        e(f"buffer_store_dwordx2 {vr(64+j*2,2)}, v31, {srd(SOUT)}, s{sT0} offen offset:{j*32}")
    stamp("end")
    stamp_dump()
    lab("L_end")
    e("s_endpgm")

gen()
hdr = open("cdna_kernels/%s.s.ref" % NAME).read().split("; @launch")[0]
out = hdr + "; @launch grid=(256,1,1) block=(256,1,1) lds=163840\n"
out += f""".amdgcn_target "amdgcn-amd-amdhsa--gfx950"
.text
.globl {NAME}_kernel
.p2align 8
.type {NAME}_kernel,@function
{NAME}_kernel:
""" + "\n".join(L) + f"""
.section .rodata,"a"
.p2align 6
.amdhsa_kernel {NAME}_kernel
  .amdhsa_next_free_vgpr 512
  .amdhsa_next_free_sgpr 102
  .amdhsa_accum_offset 256
  .amdhsa_group_segment_fixed_size 0
  .amdhsa_kernarg_size 64
  .amdhsa_user_sgpr_count 2
  .amdhsa_user_sgpr_kernarg_segment_ptr 1
  .amdhsa_system_sgpr_workgroup_id_x 1
.end_amdhsa_kernel
"""
dst = sys.argv[1] if len(sys.argv) > 1 else "cdna_kernels/%s.s" % NAME
open(dst, "w").write(out)
print("wrote", dst, len(L), "lines")
```

```python
import sys, os
L = []
def e(s): L.append("    " + s)
def lab(s): L.append(s + ":")
def c(s): L.append("    ; " + s)
def nop(n):
    while n > 0:
        k = min(n, 16); e(f"s_nop {k-1}"); n -= k
NAME = "standalone__gqa_block_cached__near_ridge"
STAMP = os.environ.get("STAMP")
VPRE = int(os.environ.get("VPRE", "4"))
WS = int(os.environ.get("WS", "32"))
KDELAY = int(os.environ.get("KDELAY", "6"))
XOFF = 0; STG = 98304; QOFF = 131072; EXTRA = 131072
MAXOFF = 155648; SUMOFF = 160*1024 - 2048
SX, SK, SV, SWQ, SWO, SOUT, SWS, SDBG = 8, 12, 16, 20, 24, 28, 32, 36
sW, sB, sH, sT0, sT1, sT2, sT3 = 40, 41, 42, 43, 44, 45, 46
sKV, sXB, sC, sB2, sQH, sCT, sOB, sWN, sCNT = 47, 48, 49, 50, 51, 52, 53, 54, 55
sVb, sVl, sWo = 56, 57, 58
sXC, sI = 50, 51
sXm, sXs, sWq = 59, 60, 61
POFF = 0x800000
def srd(r): return f"s[{r}:{r+3}]"
vKo = 2; vXo = [3,4,5,6]; vWq = 7; vL16 = 8; vStW = 9; vStR = 10
vXa = list(range(11,19)); vQw = 19; vVo = 20; vVr = [21,22]; vSl = [23,24]; vSr = [25,26]
vSt = 27; vStr = 28; vWo = 29
def S(a,j): return 32 + (a*6+j)*4
vM = 224; vLs = 230; vTmp = 236
def vr(b,n): return f"v[{b}:{b+n-1}]"
def ar(b,n): return f"a[{b}:{b+n-1}]"
stamps = []
def stamp(name):
    if STAMP is None: return
    k = len(stamps); stamps.append(name)
    e(f"s_memrealtime s[{74+2*k}:{75+2*k}]")
    e("s_waitcnt lgkmcnt(0)")
def stamp_dump():
    if STAMP is None: return
    e(f"s_cmp_lg_u32 s{sW}, 0")
    e("s_cbranch_scc1 L_end")
    e("s_mov_b64 exec, 1")
    e(f"s_mov_b32 s{SWS+2}, 0x2000000")
    e(f"s_lshl_b32 s{sT1}, s2, 6")
    e(f"s_add_u32 s{sT1}, s{sT1}, 0x1800000")
    for k in range(len(stamps)):
        e(f"v_mov_b32 v30, s{74+2*k}")
        e(f"v_mov_b32 v31, {k*4}")
        e(f"buffer_store_dword v30, v31, {srd(SWS)}, s{sT1} offen")
        e("s_nop 1")
    L.append("; STAMPS " + ",".join(stamps))

class VM:
    n = 0
def vm(s):
    e(s); VM.n += 1; return VM.n
def wait_for(seq, extra=""):
    k = min(63, VM.n - seq)
    e(f"s_waitcnt vmcnt({k}){extra}")

def prologue():
    e("s_cmp_ge_u32 s2, 256")
    e("s_cbranch_scc1 L_end")
    stamp("start")
    e("s_load_dwordx16 s[56:71], s[0:1], 0")
    e("v_and_b32 v1, 63, v0")
    e("v_lshrrev_b32 v30, 6, v0")
    e("s_nop 0")
    e(f"v_readfirstlane_b32 s{sW}, v30")
    e(f"s_and_b32 s{sT0}, s2, 7")
    e(f"s_lshr_b32 s{sT1}, s2, 3")
    e(f"s_and_b32 s{sT2}, s{sT1}, 3")
    e(f"s_lshl_b32 s{sH}, s{sT0}, 2")
    e(f"s_add_u32 s{sH}, s{sH}, s{sT2}")
    e(f"s_lshr_b32 s{sB}, s{sT1}, 2")
    e(f"s_mov_b32 s{sXC}, s{sT0}")
    e(f"s_mov_b32 s{sI}, s{sT2}")
    e(f"s_lshl_b32 s{sKV}, s{sB}, 5")
    e(f"s_add_u32 s{sKV}, s{sKV}, s{sH}")
    e(f"s_lshl_b32 s{sKV}, s{sKV}, 17")
    e(f"s_lshl_b32 s{sT3}, s{sW}, 15")
    e(f"s_add_u32 s{sKV}, s{sKV}, s{sT3}")
    e(f"s_mul_i32 s{sXB}, s{sB}, 98304")
    e(f"s_add_u32 s{sWN}, s{sW}, 1")
    e(f"s_and_b32 s{sWN}, s{sWN}, 3")
    e(f"s_mov_b32 s{sC}, 0x3e0293ee")
    e("v_and_b32 v30, 15, v1")
    e("v_lshrrev_b32 v31, 4, v1")
    e(f"v_lshlrev_b32 v{vKo}, 8, v30")
    e(f"v_lshl_add_u32 v{vKo}, v31, 4, v{vKo}")
    e(f"v_lshlrev_b32 v{vL16}, 4, v1")
    e("s_waitcnt lgkmcnt(0)")
    sizes = [786432, 33554432, 33554432, 4194304, 4194304, 786432, 256, POFF + 256*49152]
    regs = [SX, SK, SV, SWQ, SWO, SOUT, SDBG, SWS]
    for i,(r,sz) in enumerate(zip(regs,sizes)):
        e(f"s_mov_b32 s{r}, s{56+2*i}")
        e(f"s_and_b32 s{r+1}, s{57+2*i}, 0xffff")
        e(f"s_mov_b32 s{r+2}, {sz}")
        e(f"s_mov_b32 s{r+3}, 0x00020000")

kseq = {}; kn = [0]
def k1():
    if kn[0] >= 32: return
    a, s_ = kn[0]//4, kn[0]%4; kn[0] += 1
    if s_ == 0: e(f"s_add_u32 s{sCNT}, s{sKV}, {a*4096}")
    kseq[a] = vm(f"buffer_load_dwordx4 {ar((a*4+s_)*4,4)}, v{vKo}, {srd(SK)}, s{sCNT} offen offset:{s_*64}")
vseq = {}; vn = [0]
def v1():
    if vn[0] >= 32: return
    o, i = vn[0]//8, vn[0]%8; vn[0] += 1
    if i == 0:
        e(f"s_add_u32 s{sVb}, s{sW}, {1+o}")
        e(f"s_and_b32 s{sVb}, s{sVb}, 3")
        e(f"s_lshl_b32 s{sVb}, s{sVb}, 6")
        e(f"s_add_u32 s{sVb}, s{sVb}, s{sKV}")
    e(f"s_add_u32 m0, s{sVl}, {o*8192 + i*1024}")
    e(f"s_add_u32 s{sCNT}, s{sVb}, {i*4096}")
    vseq[o] = vm(f"buffer_load_dwordx4 v{vVo}, {srd(SV)}, s{sCNT} offen lds")
wn = [0]
def WR(i): return 224 + 4*i if i < 8 else 4*(i-8)
def w1():
    if wn[0] >= 32: return
    i = wn[0]; wn[0] += 1
    if i % 8 == 0:
        e(f"s_add_u32 s{sWo}, s{sI}, {i//8}")
        e(f"s_and_b32 s{sWo}, s{sWo}, 3")
        e(f"s_lshl_b32 s{sT0}, s{sXC}, 2")
        e(f"s_add_u32 s{sWo}, s{sWo}, s{sT0}")
        e(f"s_lshl_b32 s{sWo}, s{sWo}, 17")
        e(f"s_lshl_b32 s{sT0}, s{sI}, 8")
        e(f"s_add_u32 s{sWo}, s{sWo}, s{sT0}")
        e(f"s_lshl_b32 s{sT0}, s{sW}, 6")
        e(f"s_add_u32 s{sWo}, s{sWo}, s{sT0}")
    vm(f"buffer_load_dwordx4 {ar(WR(i),4)}, v{vWo}, {srd(SWO)}, s{sWo} offen")
    e(f"s_add_u32 s{sWo}, s{sWo}, 16384")

def addr_setup():
    e(f"s_lshl_b32 s{sT1}, s{sW}, 14")
    e(f"s_add_u32 s{sT1}, s{sT1}, {STG}")
    e(f"v_add_u32 v{vStW}, s{sT1}, v{vL16}")
    e("v_lshrrev_b32 v30, 5, v1")
    e("v_lshlrev_b32 v30, 3, v30")
    e("v_bfe_u32 v31, v1, 2, 2")
    e("v_add_u32 v30, v30, v31")
    e(f"v_lshlrev_b32 v{vStR}, 6, v30")
    e("v_bfe_u32 v30, v1, 4, 1")
    e(f"v_lshl_add_u32 v{vStR}, v30, 5, v{vStR}")
    e("v_and_b32 v30, 1, v1")
    e(f"v_lshl_add_u32 v{vStR}, v30, 4, v{vStR}")
    e("v_bfe_u32 v30, v1, 1, 1")
    e(f"v_lshl_add_u32 v{vStR}, v30, 3, v{vStR}")
    e(f"v_add_u32 v{vStR}, s{sT1}, v{vStR}")
    e("v_and_b32 v30, 31, v1")
    e("v_lshlrev_b32 v30, 8, v30")
    e("v_lshrrev_b32 v31, 5, v1")
    for lo in range(8):
        e(f"v_add_u32 v{vXa[lo]}, {2*lo}, v31")
        e(f"v_xor_b32 v{vXa[lo]}, v{vXa[lo]}, v1")
        e(f"v_and_b32 v{vXa[lo]}, 15, v{vXa[lo]}")
        e(f"v_lshl_add_u32 v{vXa[lo]}, v{vXa[lo]}, 4, v30")
        e(f"v_add_u32 v{112+lo}, 0xc000, v{vXa[lo]}")
    e("v_bfe_u32 v30, v1, 4, 1")
    e(f"v_lshlrev_b32 v{vQw}, 12, v30")
    e("v_and_b32 v30, 15, v1")
    e(f"v_lshl_add_u32 v{vQw}, v30, 4, v{vQw}")
    e("v_lshrrev_b32 v30, 5, v1")
    e(f"v_lshl_add_u32 v{vQw}, v30, 8, v{vQw}")
    e(f"s_lshl_b32 s{sT1}, s{sW}, 10")
    e(f"s_add_u32 s{sT1}, s{sT1}, {QOFF}")
    e(f"v_add_u32 v{vQw}, s{sT1}, v{vQw}")
    e("v_bfe_u32 v30, v1, 4, 1")
    e("v_lshlrev_b32 v30, 1, v30")
    e("v_xor_b32 v30, v30, v1")
    e("v_and_b32 v30, 3, v30")
    e("v_lshrrev_b32 v31, 2, v1")
    e(f"v_lshlrev_b32 v{vVo}, 8, v31")
    e(f"v_lshl_add_u32 v{vVo}, v30, 4, v{vVo}")
    e(f"v_lshlrev_b32 v{vVr[0]}, 6, v31")
    e("v_and_b32 v30, 3, v1")
    e(f"v_lshl_add_u32 v{vVr[0]}, v30, 3, v{vVr[0]}")
    e(f"v_lshlrev_b32 v{vWo}, 10, v31")
    e(f"v_lshl_add_u32 v{vWo}, v30, 4, v{vWo}")
    e("v_bfe_u32 v30, v1, 4, 1")
    e(f"v_lshl_add_u32 v{vVr[0]}, v30, 5, v{vVr[0]}")
    e(f"s_lshl_b32 s{sVl}, s{sW}, 15")
    e(f"v_add_u32 v{vVr[0]}, s{sVl}, v{vVr[0]}")
    e(f"v_xor_b32 v{vVr[1]}, 32, v{vVr[0]}")
    e(f"v_add_u32 v{vSl[0]}, s{sVl}, v{vL16}")
    e(f"s_lshl_b32 s{sT1}, s{sW}, 13")
    e(f"s_add_u32 s{sT1}, s{sT1}, {EXTRA}")
    e(f"v_add_u32 v{vSl[1]}, s{sT1}, v{vL16}")
    e(f"s_lshl_b32 s{sT1}, s{sWN}, 15")
    e(f"v_add_u32 v{vSr[0]}, s{sT1}, v{vL16}")
    e(f"s_lshl_b32 s{sT1}, s{sWN}, 13")
    e(f"s_add_u32 s{sT1}, s{sT1}, {EXTRA}")
    e(f"v_add_u32 v{vSr[1]}, s{sT1}, v{vL16}")
    e("v_and_b32 v30, 15, v1")
    e(f"v_lshlrev_b32 v{vStr}, 4, v30")
    e(f"v_add_u32 v{vStr}, {MAXOFF}, v{vStr}")
    e(f"s_lshl_b32 s{sT1}, s{sW}, 2")
    e(f"v_add_u32 v{vSt}, s{sT1}, v{vStr}")

ACC = 32; XF = 80; WF = 104
def qproj():
    c("x voffset: (4w+i/16)*1024 + ((i%16)^(4w+i/16))*16")
    e(f"s_lshl_b32 s{sT1}, s{sW}, 2")
    e("v_lshrrev_b32 v30, 4, v1")
    e(f"v_add_u32 v30, s{sT1}, v30")
    e("v_xor_b32 v31, v30, v1")
    e("v_and_b32 v31, 15, v31")
    e(f"v_lshlrev_b32 v{vXo[0]}, 10, v30")
    e(f"v_lshl_add_u32 v{vXo[0]}, v31, 4, v{vXo[0]}")
    e(f"s_lshl_b32 s{sXm}, s{sW}, 10")
    e("v_lshrrev_b32 v30, 2, v1")
    e("v_and_b32 v31, 3, v1")
    e(f"v_lshlrev_b32 v{vWq}, 13, v30")
    e(f"v_lshl_add_u32 v{vWq}, v31, 4, v{vWq}")
    e(f"s_lshl_b32 s{sWq}, s{sH}, 8")
    e(f"s_lshl_b32 s{sT1}, s{sW}, 6")
    e(f"s_add_u32 s{sWq}, s{sWq}, s{sT1}")
    xs = {}; wqs = {}
    def xl(ch, m):
        e(f"s_add_u32 m0, s{sXm}, {XOFF + ch*24576 + m*4096}")
        e(f"s_add_u32 s{sXs}, s{sXB}, {m*16384 + ch*256}")
        xs[ch] = vm(f"buffer_load_dwordx4 v{vXo[0]}, {srd(SX)}, s{sXs} offen lds")
    def wl(ch, i):
        k = ch*8 + i
        wqs[ch] = vm(f"buffer_load_dwordx4 {ar(128+4*k,4)}, v{vWq}, {srd(SWQ)}, s{sWq} offen")
        e(f"s_add_u32 s{sWq}, s{sWq}, 131072")
    seqs = []
    for ch in range(4):
        items = [(xl,ch,m) for m in range(6)] + [(wl,ch,i) for i in range(8)]
        q = []
        for n_, it in enumerate(items):
            q.append(it)
            if n_ % 2 == 1 and not (ch == 0 and n_ < KDELAY): q.append(None)
        while q.count(None) < 8: q.append(None)
        seqs.append(q)
    def issue(q, n):
        for _ in range(n):
            if not q: return
            it = q.pop(0)
            if it is None: k1()
            else: it[0](it[1], it[2])
    issue(seqs[0], 99)
    addr_setup()
    issue(seqs[1], 99)
    stamp("issued")
    def rd_frags(S_, buf):
        ch, s = S_//8, S_%8
        for u in range(2):
            e(f"ds_read_b64_tr_b16 {vr(WF+buf*4+u*2,2)}, v{vStR} offset:{(ch&1)*8192 + s*1024 + u*256}")
        for t3 in range(3):
            base = vXa[s] if ch < 2 else 112+s
            e(f"ds_read_b128 {vr(XF+buf*12+t3*4,4)}, v{base} offset:{(ch&1)*24576 + t3*8192}")
    def stage(ch):
        wait_for(max(wqs[ch], xs[ch]))
        for i in range(8):
            e(f"ds_write_b128 v{vStW}, {ar(128+(ch*8+i)*4,4)} offset:{(ch&1)*8192 + i*1024}")
        e("s_waitcnt lgkmcnt(0)")
        e("s_barrier")
    for ch in range(4):
        stage(ch)
        if ch == 0: stamp("x_ready")
        rd_frags(ch*8, 0)
        for s in range(8):
            S_ = ch*8 + s; buf = s & 1
            if s < 7:
                rd_frags(S_+1, buf^1)
                e("s_waitcnt lgkmcnt(5)")
            else:
                e("s_waitcnt lgkmcnt(0)")
            for t3 in range(3):
                cin = "0" if S_ == 0 else vr(ACC+t3*16,16)
                e(f"v_mfma_f32_32x32x16_bf16 {vr(ACC+t3*16,16)}, {vr(WF+buf*4,4)}, {vr(XF+buf*12+t3*4,4)}, {cin}")
                if ch + 2 < 4: issue(seqs[ch+2], 1)
        if ch + 2 < 4: issue(seqs[ch+2], 99)
    e("s_barrier")
    stamp("qproj_done")
    nop(12)
    for t3 in range(3):
        for t in range(2):
            b0 = ACC + t3*16 + t*8
            for k in range(4):
                e(f"v_cvt_pk_bf16_f32 v{XF+(t3*2+t)*4+k}, v{b0+2*k}, v{b0+2*k+1}")
            e(f"ds_write_b128 v{vQw}, {vr(XF+(t3*2+t)*4,4)} offset:{t3*8192 + t*512}")
    for _ in range(VPRE): v1()
    e("s_waitcnt lgkmcnt(0)")
    e("s_barrier")
    e(f"v_add_u32 v30, {QOFF}, v{vL16}")
    for j in range(6):
        for s in range(4):
            e(f"ds_read_b128 {ar(128+(j*4+s)*4,4)}, v30 offset:{(j*4+s)*1024}")

def xreduce(base, op):
    for sw in ("v_permlane32_swap_b32", "v_permlane16_swap_b32"):
        for j in range(6): e(f"v_mov_b32 v{vTmp+j}, v{base+j}")
        nop(2)
        for j in range(6): e(f"{sw} v{base+j}, v{vTmp+j}")
        nop(2)
        for j in range(6): e(f"{op} v{base+j}, v{base+j}, v{vTmp+j}")
def stat_read(off):
    for j in range(5):
        e(f"ds_read_b128 {vr(vTmp+j*4,4)}, v{vStr} offset:{off + j*256}")
    e(f"ds_read_b128 {vr(vXa[1],4)}, v{vStr} offset:{off + 5*256}")
    e("s_waitcnt lgkmcnt(0)")

def attention():
    for a in range(8):
        wait_for(kseq[a], " lgkmcnt(0)" if a == 0 else "")
        for s in range(4):
            for j in range(6):
                cin = "0" if s == 0 else vr(S(a,j),4)
                e(f"v_mfma_f32_16x16x32_bf16 {vr(S(a,j),4)}, {ar((a*4+s)*4,4)}, {ar(128+(j*4+s)*4,4)}, {cin}")
                if j == 2: v1()
                if j == 5 and wn[0] < 8 + 4*a and wn[0] < WS: w1()
    while vn[0] < 32: v1()
    nop(8)
    stamp("S_done")
    for j in range(6):
        vals = [S(a,j)+i for a in range(8) for i in range(4)]
        e(f"v_max3_f32 v{vM+j}, v{vals[0]}, v{vals[1]}, v{vals[2]}")
        k = 3
        while k + 1 < 32:
            e(f"v_max3_f32 v{vM+j}, v{vM+j}, v{vals[k]}, v{vals[k+1]}"); k += 2
        e(f"v_max_f32 v{vM+j}, v{vM+j}, v{vals[31]}")
    xreduce(vM, "v_max_f32")
    for j in range(6): e(f"ds_write_b32 v{vSt}, v{vM+j} offset:{j*256}")
    e("s_waitcnt lgkmcnt(0)")
    e("s_barrier")
    stat_read(0)
    for j in range(6):
        b0 = vTmp + j*4 if j < 5 else vXa[1]
        e(f"v_max3_f32 v{vM+j}, v{b0}, v{b0+1}, v{b0+2}")
        e(f"v_max_f32 v{vM+j}, v{vM+j}, v{b0+3}")
        e(f"v_mul_f32 v{vM+j}, s{sC}, v{vM+j}")
    for j in range(6):
        for s in range(4):
            regs8 = [S(2*s,j)+i for i in range(4)] + [S(2*s+1,j)+i for i in range(4)]
            for r in regs8: e(f"v_fma_f32 v{r}, v{r}, s{sC}, -v{vM+j}")
            w1()
            for r in regs8: e(f"v_exp_f32 v{r}, v{r}")
            w1()
            e("s_nop 0")
            if s == 0:
                e(f"v_add_f32 v{vLs+j}, v{regs8[0]}, v{regs8[1]}"); rest = regs8[2:]
            else: rest = regs8
            for r in rest: e(f"v_add_f32 v{vLs+j}, v{vLs+j}, v{r}")
            for k in range(4):
                e(f"v_cvt_pk_bf16_f32 v{S(2*s,j)+k}, v{regs8[2*k]}, v{regs8[2*k+1]}")
    xreduce(vLs, "v_add_f32")
    for j in range(6): e(f"ds_write_b32 v{vSt}, v{vLs+j} offset:{SUMOFF - MAXOFF + j*256}")
    e("s_waitcnt lgkmcnt(0)")
    e("s_barrier")
    stat_read(SUMOFF - MAXOFF)
    for j in range(6):
        b0 = vTmp + j*4 if j < 5 else vXa[1]
        e(f"v_add_f32 v{vLs+j}, v{b0}, v{b0+1}")
        e(f"v_add_f32 v{b0+2}, v{b0+2}, v{b0+3}")
        e(f"v_add_f32 v{vLs+j}, v{vLs+j}, v{b0+2}")
        e(f"v_rcp_f32 v{vLs+j}, v{vLs+j}")
    stamp("softmax_done")
    def slot_addr(own, o, tt):
        v = vSl if own else vSr
        if tt < 8: return (f"v{v[0]}", f"offset:{(o&1)*8192 + tt*1024}")
        return (f"v{v[1]}", f"offset:{(o&1)*4096 + (tt-8)*1024}")
    for o in range(4):
        c(f"PV step {o}")
        if o > 0:
            for tt in range(12):
                a_ = slot_addr(False, o-1, tt)
                e(f"ds_read_b128 {vr(ACCT(tt),4)}, {a_[0]} {a_[1]}")
        wait_for(vseq[o])
        if o == 3: stamp(f"V{o}_ready")
        for s in range(4):
            for j2 in range(2):
                for u in range(2):
                    e(f"ds_read_b64_tr_b16 {vr(VF(s*2+j2)+2*u,2)}, v{vVr[j2]} offset:{o*8192 + s*2048 + u*1024}")
        for s in range(4):
            e(f"s_waitcnt lgkmcnt({(3-s)*4})")
            for j2 in range(2):
                for j in range(6):
                    tt = j2*6 + j
                    cin = "0" if (o == 0 and s == 0) else vr(ACCT(tt),4)
                    e(f"v_mfma_f32_16x16x32_bf16 {vr(ACCT(tt),4)}, {vr(VF(s*2+j2),4)}, {vr(S(2*s,j),4)}, {cin}")
                    if j == 2: w1()
        if o < 3:
            nop(4)
            for tt in range(12):
                a_ = slot_addr(True, o, tt)
                e(f"ds_write_b128 {a_[0]}, {vr(ACCT(tt),4)} {a_[1]}")
            e("s_waitcnt lgkmcnt(0)")
            e("s_barrier")
    while wn[0] < 32: w1()
    nop(8)
def ACCT(tt): return S(1, tt) if tt < 6 else S(3, tt-6)
def VF(k): return S(5, k) if k < 6 else S(7, k-6)

def signal(sreg_idx_expr_lines, inc, lbl):
    e(f"s_cmp_lg_u32 s{sW}, 0")
    e(f"s_cbranch_scc1 {lbl}")
    for l in sreg_idx_expr_lines: e(l)
    e(f"v_mov_b32 v30, {inc}")
    e(f"v_mov_b32 v31, s{sT0}")
    e("s_mov_b64 s[72:73], exec")
    e("s_mov_b64 exec, 1")
    e(f"buffer_atomic_add v30, v31, {srd(SDBG)}, 0 offen sc1")
    e("s_mov_b64 exec, s[72:73]")
    lab(lbl)
def poll(sreg_idx_expr_lines, hi, target, lbl):
    e(f"s_cmp_lg_u32 s{sW}, 0")
    e(f"s_cbranch_scc1 {lbl}_done")
    for l in sreg_idx_expr_lines: e(l)
    e(f"v_mov_b32 v31, s{sT0}")
    e(f"s_mov_b32 s{sCNT}, 0")
    lab(lbl)
    e(f"buffer_load_dword v30, v31, {srd(SDBG)}, 0 offen sc1")
    e("s_waitcnt vmcnt(0)")
    e(f"v_readfirstlane_b32 s{sT1}, v30")
    e(f"s_add_u32 s{sCNT}, s{sCNT}, 1")
    if hi: e(f"s_lshr_b32 s{sT1}, s{sT1}, 16")
    else: e(f"s_and_b32 s{sT1}, s{sT1}, 0xffff")
    e(f"s_cmp_ge_u32 s{sT1}, {target}")
    e(f"s_cbranch_scc1 {lbl}_done")
    e(f"s_cmp_lt_u32 s{sCNT}, 2000000")
    e(f"s_cbranch_scc1 {lbl}")
    lab(lbl + "_done")
    e("s_barrier")
def FR(ks, jj): return 128 + ks*8 + jj*4
def outproj_b():
    f1 = [f"s_lshl_b32 s{sT0}, s{sB}, 3", f"s_add_u32 s{sT0}, s{sT0}, s{sXC}", f"s_lshl_b32 s{sT0}, s{sT0}, 2"]
    f2 = [f"s_lshl_b32 s{sT0}, s{sB}, 3", f"s_add_u32 s{sT0}, s{sT0}, s{sI}", f"s_lshl_b32 s{sT0}, s{sT0}, 2"]
    c("normalize, pack, store O frags (global + LDS slot 0)")
    e(f"s_lshl_b32 s{sT0}, s{sB}, 5")
    e(f"s_add_u32 s{sT0}, s{sT0}, s{sH}")
    e(f"s_lshl_b32 s{sT0}, s{sT0}, 2")
    e(f"s_add_u32 s{sT0}, s{sT0}, s{sW}")
    e(f"s_mul_i32 s{sT0}, s{sT0}, 6144")
    for j in range(6):
        for j2 in range(2):
            b0 = ACCT(j2*6+j)
            for i in range(4): e(f"v_mul_f32 v{b0+i}, v{b0+i}, v{vLs+j}")
        d = VF(j)
        for j2 in range(2):
            b0 = ACCT(j2*6+j)
            e(f"v_cvt_pk_bf16_f32 v{d+2*j2}, v{b0}, v{b0+1}")
            e(f"v_cvt_pk_bf16_f32 v{d+2*j2+1}, v{b0+2}, v{b0+3}")
        if j == 4: e(f"s_add_u32 s{sT0}, s{sT0}, 4096")
        vm(f"buffer_store_dwordx4 {vr(d,4)}, v{vL16}, {srd(SWS)}, s{sT0} offen offset:{(j%4)*1024} sc1")
    e("s_waitcnt vmcnt(0)")
    e("s_barrier")
    stamp("O_stored")
    signal(f1, 1, "L_sig1")
    e(f"s_mul_i32 s{sT1}, s{sW}, 6144")
    e(f"v_add_u32 v2, s{sT1}, v{vL16}")
    for j in range(6):
        e(f"ds_write_b128 v2, {vr(VF(j),4)} offset:{j*1024}")
    c("transpose wo through LDS: region 96K + w*16K")
    e("v_bfe_u32 v30, v1, 4, 1")
    e("v_lshlrev_b32 v30, 1, v30")
    e("v_xor_b32 v30, v30, v1")
    e(f"s_lshl_b32 s{sT1}, s{sW}, 14")
    e(f"s_add_u32 s{sT1}, s{sT1}, 98304")
    e(f"v_lshl_add_u32 v{vWo}, v30, 4, s{sT1}")
    e(f"s_sub_u32 s{sT1}, s{sT1}, s{sVl}")
    e(f"v_add_u32 v3, s{sT1}, v{vVr[0]}")
    e(f"v_add_u32 v4, s{sT1}, v{vVr[1]}")
    for half in range(2):
        for i in range(16):
            e(f"ds_write_b128 v{vWo}, {ar(WR(half*16+i),4)} offset:{i*1024}")
        e("s_waitcnt lgkmcnt(0)")
        for ks in range(8):
            for jj in range(2):
                for u in range(2):
                    e(f"ds_read_b64_tr_b16 {ar(FR(half*8+ks,jj)+u*2,2)}, v{3+jj} offset:{ks*2048 + u*1024}")
        e("s_waitcnt lgkmcnt(0)")
    e("s_barrier")
    OA = 32; OF = 96
    e(f"v_add_u32 v5, 0xc000, v{vL16}")
    def ofr(ks, buf):
        base, off = (vL16, ks*6144) if ks < 8 else (5, (ks-8)*6144)
        for j in range(6):
            e(f"ds_read_b128 {vr(OF+buf*24+j*4,4)}, v{base} offset:{off + j*1024}")
    def ksteps(k0, k1_):
        ofr(k0, k0&1)
        for ks in range(k0, k1_):
            if ks + 1 < k1_:
                ofr(ks+1, (ks+1)&1); e("s_waitcnt lgkmcnt(6)")
            else: e("s_waitcnt lgkmcnt(0)")
            for j in range(6):
                for jj in range(2):
                    d = OA + (j*2+jj)*4
                    cin = "0" if ks == 0 else vr(d,4)
                    e(f"v_mfma_f32_16x16x32_bf16 {vr(d,4)}, {ar(FR(ks,jj),4)}, {vr(OF+(ks&1)*24+j*4,4)}, {cin}")
    ksteps(0, 4)
    poll(f1, False, 4, "L_poll1")
    stamp("poll1_done")
    c("DMA other heads' O: slot s <- head (I+s)&3, wave w loads dgroup w")
    oseq = {}
    e(f"s_mul_i32 s{sT2}, s{sW}, 6144")
    for sl in range(1,4):
        e(f"s_add_u32 s{sT0}, s{sI}, {sl}")
        e(f"s_and_b32 s{sT0}, s{sT0}, 3")
        e(f"s_lshl_b32 s{sT1}, s{sXC}, 2")
        e(f"s_add_u32 s{sT0}, s{sT0}, s{sT1}")
        e(f"s_lshl_b32 s{sT1}, s{sB}, 5")
        e(f"s_add_u32 s{sT0}, s{sT0}, s{sT1}")
        e(f"s_mul_i32 s{sT0}, s{sT0}, 24576")
        e(f"s_add_u32 s{sT0}, s{sT0}, s{sT2}")
        for j in range(6):
            e(f"s_add_u32 m0, s{sT2}, {sl*24576 + j*1024}")
            e(f"s_add_u32 s{sT1}, s{sT0}, {j*1024}")
            oseq[sl] = vm(f"buffer_load_dwordx4 v{vL16}, {srd(SWS)}, s{sT1} offen sc1 lds")
    for sl in range(1,4):
        wait_for(oseq[sl])
        e("s_barrier")
        ksteps(sl*4, sl*4+4)
    nop(8)
    stamp("oproj_done")
    c("store partials: P[b][i][x][w][12 KB]")
    e(f"s_lshl_b32 s{sT0}, s{sB}, 2")
    e(f"s_add_u32 s{sT0}, s{sT0}, s{sI}")
    e(f"s_lshl_b32 s{sT0}, s{sT0}, 3")
    e(f"s_mul_i32 s{sOB}, s{sT0}, 49152")
    e(f"s_add_u32 s{sOB}, s{sOB}, {POFF}")
    e(f"s_mul_i32 s{sT0}, s{sXC}, 49152")
    e(f"s_mul_i32 s{sT1}, s{sW}, 12288")
    e(f"s_add_u32 s{sT0}, s{sT0}, s{sT1}")
    e(f"s_add_u32 s{sT0}, s{sT0}, s{sOB}")
    for t in range(12):
        if t and t % 4 == 0: e(f"s_add_u32 s{sT0}, s{sT0}, 4096")
        vm(f"buffer_store_dwordx4 {vr(OA+t*4,4)}, v{vL16}, {srd(SWS)}, s{sT0} offen offset:{(t%4)*1024} sc1")
    e("s_waitcnt vmcnt(0)")
    e("s_barrier")
    stamp("P_stored")
    signal(f2, 0x10000, "L_sig2")
    poll(f2, True, 8, "L_poll2")
    stamp("poll2_done")
    e(f"s_cmp_ge_u32 s{sW}, 3")
    e("s_cbranch_scc1 L_end")
    c("pair p = 3x + w -> wv = p/6, q16 = p%6")
    e(f"s_mul_i32 s{sT0}, s{sXC}, 3")
    e(f"s_add_u32 s{sT0}, s{sT0}, s{sW}")
    e(f"s_lshl_b32 s{sT1}, s{sT0}, 11")
    e(f"s_add_u32 s{sOB}, s{sOB}, s{sT1}")
    for xx in range(8):
        for jj in range(2):
            vm(f"buffer_load_dwordx4 {vr(32+(xx*2+jj)*4,4)}, v{vL16}, {srd(SWS)}, s{sOB} offen offset:{jj*1024} sc1")
        e(f"s_add_u32 s{sOB}, s{sOB}, 49152")
    e(f"s_mul_i32 s{sT1}, s{sT0}, 43")
    e(f"s_lshr_b32 s{sT1}, s{sT1}, 8")
    e(f"s_mul_i32 s{sT2}, s{sT1}, 6")
    e(f"s_sub_u32 s{sT2}, s{sT0}, s{sT2}")
    e(f"s_mul_i32 s{sT0}, s{sB}, 96")
    e(f"s_lshl_b32 s{sT2}, s{sT2}, 4")
    e(f"s_add_u32 s{sT0}, s{sT0}, s{sT2}")
    e(f"s_lshl_b32 s{sT0}, s{sT0}, 10")
    e(f"s_lshl_b32 s{sT2}, s{sI}, 8")
    e(f"s_add_u32 s{sT0}, s{sT0}, s{sT2}")
    e(f"s_lshl_b32 s{sT2}, s{sT1}, 6")
    e(f"s_add_u32 s{sT0}, s{sT0}, s{sT2}")
    e("v_and_b32 v31, 15, v1")
    e("v_lshlrev_b32 v31, 10, v31")
    e("v_lshrrev_b32 v2, 4, v1")
    e("v_lshl_add_u32 v31, v2, 3, v31")
    e("s_waitcnt vmcnt(0)")
    for jj in range(2):
        for i in range(4):
            r = [32+(xx*2+jj)*4+i for xx in range(8)]
            for st in (1,2,4):
                for a in range(0,8,2*st): e(f"v_add_f32 v{r[a]}, v{r[a]}, v{r[a+st]}")
        e(f"v_cvt_pk_bf16_f32 v{100+jj*2}, v{32+jj*4}, v{33+jj*4}")
        e(f"v_cvt_pk_bf16_f32 v{101+jj*2}, v{34+jj*4}, v{35+jj*4}")
        e(f"buffer_store_dwordx2 {vr(100+jj*2,2)}, v31, {srd(SOUT)}, s{sT0} offen offset:{jj*32}")

prologue(); qproj(); attention(); outproj_b()
stamp("end"); stamp_dump()
lab("L_end"); e("s_endpgm")
hdr = open("cdna_kernels/%s.s.ref" % NAME).read().split("; @launch")[0]
out = hdr + "; @launch grid=(256,1,1) block=(256,1,1) lds=163840\n"
out += f""".amdgcn_target "amdgcn-amd-amdhsa--gfx950"
.text
.globl {NAME}_kernel
.p2align 8
.type {NAME}_kernel,@function
{NAME}_kernel:
""" + "\n".join(L) + f"""
.section .rodata,"a"
.p2align 6
.amdhsa_kernel {NAME}_kernel
  .amdhsa_next_free_vgpr 512
  .amdhsa_next_free_sgpr 102
  .amdhsa_accum_offset 256
  .amdhsa_group_segment_fixed_size 0
  .amdhsa_kernarg_size 64
  .amdhsa_user_sgpr_count 2
  .amdhsa_user_sgpr_kernarg_segment_ptr 1
  .amdhsa_system_sgpr_workgroup_id_x 1
.end_amdhsa_kernel
"""
dst = sys.argv[1] if len(sys.argv) > 1 else "cdna_kernels/%s.s" % NAME
open(dst, "w").write(out)
print("wrote", dst, len(L), "lines")
```

```python
import sys, os
L = []
def e(s): L.append("    " + s)
def lab(s): L.append(s + ":")
def c(s): L.append("    ; " + s)
def nop(n):
    while n > 0:
        k = min(n, 16); e(f"s_nop {k-1}"); n -= k
NAME = "standalone__gqa_block_cached__near_ridge"
STAMP = os.environ.get("STAMP")
VPRE = int(os.environ.get("VPRE", "4"))
WS = int(os.environ.get("WS", "32"))
KPRE = int(os.environ.get("KPRE", "4"))
XOFF = 0; STG = 98304; QOFF = 131072; EXTRA = 131072
MAXOFF = 155648; SUMOFF = 160*1024 - 2048
SX, SK, SV, SWQ, SWO, SOUT, SWS, SDBG = 8, 12, 16, 20, 24, 28, 32, 36
sW, sB, sH, sT0, sT1, sT2, sT3 = 40, 41, 42, 43, 44, 45, 46
sKV, sXB, sC, sB2, sQH, sCT, sOB, sWN, sCNT = 47, 48, 49, 50, 51, 52, 53, 54, 55
sVb, sVl, sWo = 56, 57, 58
sKH = 5
sXm, sXs, sWq = 59, 60, 61
POFF = 0x800000
def srd(r): return f"s[{r}:{r+3}]"
vKo = 2; vXo = [31]; vWq = 7; vL16 = 8; vStW = 9; vStR = 10
vXa = list(range(11,19)); vQw = 19; vVo = 20; vVr = [21,22,23,24]; vSl = [25,26]; vSr = [3,4,5,6]
vSt = 27; vStr = 28; vWo = 29
def S(a,j): return 32 + (a*6+j)*4
vM = 224; vLs = 230; vTmp = 236
def vr(b,n): return f"v[{b}:{b+n-1}]"
def ar(b,n): return f"a[{b}:{b+n-1}]"
stamps = []
def stamp(name):
    if STAMP is None: return
    k = len(stamps); stamps.append(name)
    e(f"s_memrealtime s[{74+2*k}:{75+2*k}]")
    e("s_waitcnt lgkmcnt(0)")
def stamp_dump():
    if STAMP is None: return
    e(f"s_cmp_lg_u32 s{sW}, 0")
    e("s_cbranch_scc1 L_end")
    e("s_mov_b64 exec, 1")
    e(f"s_mov_b32 s{SWS+2}, 0x2000000")
    e(f"s_lshl_b32 s{sT1}, s2, 6")
    e(f"s_add_u32 s{sT1}, s{sT1}, 0x1800000")
    for k in range(len(stamps)):
        e(f"v_mov_b32 v30, s{74+2*k}")
        e(f"v_mov_b32 v31, {k*4}")
        e(f"buffer_store_dword v30, v31, {srd(SWS)}, s{sT1} offen")
        e("s_nop 1")
    L.append("; STAMPS " + ",".join(stamps))

class VM:
    n = 0
def vm(s):
    e(s); VM.n += 1; return VM.n
def wait_for(seq, extra=""):
    k = min(63, VM.n - seq)
    e(f"s_waitcnt vmcnt({k}){extra}")

def prologue():
    e("s_cmp_ge_u32 s2, 256")
    e("s_cbranch_scc1 L_end")
    stamp("start")
    e("s_load_dwordx16 s[56:71], s[0:1], 0")
    e("v_and_b32 v1, 63, v0")
    e("v_lshrrev_b32 v30, 6, v0")
    e("s_nop 0")
    e(f"v_readfirstlane_b32 s{sW}, v30")
    e(f"s_and_b32 s{sT0}, s2, 7")
    e(f"s_lshr_b32 s{sT1}, s2, 3")
    e(f"s_and_b32 s{sT2}, s{sT1}, 3")
    e(f"s_lshl_b32 s{sH}, s{sT0}, 2")
    e(f"s_add_u32 s{sH}, s{sH}, s{sT2}")
    e(f"s_lshr_b32 s{sB}, s{sT1}, 2")
    e(f"s_and_b32 s{sKH}, s{sT0}, 1")
    e(f"s_andn2_b32 s{sB2}, s{sT0}, 1")
    e(f"s_lshr_b32 s{sT3}, s{sT2}, 1")
    e(f"s_add_u32 s{sB2}, s{sB2}, s{sT3}")
    e(f"s_and_b32 s{sQH}, s{sT2}, 1")
    e(f"s_mov_b32 s{sCT}, s{sB}")
    e(f"s_lshl_b32 s{sKV}, s{sB}, 5")
    e(f"s_add_u32 s{sKV}, s{sKV}, s{sH}")
    e(f"s_lshl_b32 s{sKV}, s{sKV}, 17")
    e(f"s_lshl_b32 s{sT3}, s{sW}, 15")
    e(f"s_add_u32 s{sKV}, s{sKV}, s{sT3}")
    e(f"s_mul_i32 s{sXB}, s{sB}, 98304")
    e(f"s_add_u32 s{sWN}, s{sW}, 1")
    e(f"s_and_b32 s{sWN}, s{sWN}, 3")
    e(f"s_mov_b32 s{sC}, 0x3e0293ee")
    e("v_and_b32 v30, 15, v1")
    e("v_lshrrev_b32 v31, 4, v1")
    e(f"v_lshlrev_b32 v{vKo}, 8, v30")
    e(f"v_lshl_add_u32 v{vKo}, v31, 4, v{vKo}")
    e(f"v_lshlrev_b32 v{vL16}, 4, v1")
    e("s_waitcnt lgkmcnt(0)")
    sizes = [786432, 33554432, 33554432, 4194304, 4194304, 786432, 256, POFF + 256*6144]
    regs = [SX, SK, SV, SWQ, SWO, SOUT, SDBG, SWS]
    for i,(r,sz) in enumerate(zip(regs,sizes)):
        e(f"s_mov_b32 s{r}, s{56+2*i}")
        e(f"s_and_b32 s{r+1}, s{57+2*i}, 0xffff")
        e(f"s_mov_b32 s{r+2}, {sz}")
        e(f"s_mov_b32 s{r+3}, 0x00020000")

kseq = {}; kn = [0]
def k1():
    if kn[0] >= 32: return
    a, s_ = kn[0]//4, kn[0]%4; kn[0] += 1
    if s_ == 0: e(f"s_add_u32 s{sCNT}, s{sKV}, {a*4096}")
    kseq[a] = vm(f"buffer_load_dwordx4 {ar((a*4+s_)*4,4)}, v{vKo}, {srd(SK)}, s{sCNT} offen offset:{s_*64}")
vseq = {}; vn = [0]
def v1():
    if vn[0] >= 32: return
    hf, i = vn[0]//16, vn[0]%16; vn[0] += 1
    if i == 0:
        e(f"s_lshr_b32 s{sVb}, s{sW}, 1")
        if hf == 0: e(f"s_xor_b32 s{sVb}, s{sVb}, 1")
        e(f"s_lshl_b32 s{sVb}, s{sVb}, 7")
        e(f"s_add_u32 s{sVb}, s{sVb}, s{sKV}")
    e(f"s_add_u32 m0, s{sVl}, {hf*16384 + i*1024}")
    e(f"s_add_u32 s{sCNT}, s{sVb}, {i*2048}")
    vseq[(hf,i//4)] = vm(f"buffer_load_dwordx4 v{vVo}, {srd(SV)}, s{sCNT} offen lds")
wn = [0]; WCAP = [56]
def WR(i): return 224 + 4*i if i < 8 else 4*(i-8)
def w1():
    if wn[0] >= WCAP[0]: return
    i = wn[0]; wn[0] += 1
    vm(f"buffer_load_dwordx4 {ar(WR(i),4)}, v{vWo}, {srd(SWO)}, s{sWo} offen")
    e(f"s_add_u32 s{sWo}, s{sWo}, 8192")

def addr_setup():
    e(f"s_lshl_b32 s{sT1}, s{sW}, 14")
    e(f"s_add_u32 s{sT1}, s{sT1}, {STG}")
    c("staging write: cg*16384 + (32w + i/16)*64 + (i%4)*16")
    e("v_bfe_u32 v30, v1, 2, 2")
    e(f"v_lshlrev_b32 v{vStW}, 14, v30")
    e("v_lshrrev_b32 v30, 4, v1")
    e(f"v_lshl_add_u32 v{vStW}, v30, 6, v{vStW}")
    e("v_and_b32 v30, 3, v1")
    e(f"v_lshl_add_u32 v{vStW}, v30, 4, v{vStW}")
    e(f"s_lshl_b32 s{sT2}, s{sW}, 11")
    e(f"s_add_u32 s{sT2}, s{sT2}, {STG}")
    e(f"v_add_u32 v{vStW}, s{sT2}, v{vStW}")
    e("v_lshrrev_b32 v30, 5, v1")
    e("v_lshlrev_b32 v30, 3, v30")
    e("v_bfe_u32 v31, v1, 2, 2")
    e("v_add_u32 v30, v30, v31")
    e(f"v_lshlrev_b32 v{vStR}, 6, v30")
    e("v_bfe_u32 v30, v1, 4, 1")
    e(f"v_lshl_add_u32 v{vStR}, v30, 5, v{vStR}")
    e("v_and_b32 v30, 1, v1")
    e(f"v_lshl_add_u32 v{vStR}, v30, 4, v{vStR}")
    e("v_bfe_u32 v30, v1, 1, 1")
    e(f"v_lshl_add_u32 v{vStR}, v30, 3, v{vStR}")
    e(f"v_add_u32 v{vStR}, s{sT1}, v{vStR}")
    e("v_and_b32 v30, 31, v1")
    e("v_lshlrev_b32 v30, 8, v30")
    e("v_lshrrev_b32 v31, 5, v1")
    for lo in range(8):
        e(f"v_add_u32 v{vXa[lo]}, {2*lo}, v31")
        e(f"v_xor_b32 v{vXa[lo]}, v{vXa[lo]}, v1")
        e(f"v_and_b32 v{vXa[lo]}, 15, v{vXa[lo]}")
        e(f"v_lshl_add_u32 v{vXa[lo]}, v{vXa[lo]}, 4, v30")
        e(f"v_add_u32 v{112+lo}, 0xc000, v{vXa[lo]}")
    e("v_bfe_u32 v30, v1, 4, 1")
    e(f"v_lshlrev_b32 v{vQw}, 12, v30")
    e("v_and_b32 v30, 15, v1")
    e(f"v_lshl_add_u32 v{vQw}, v30, 4, v{vQw}")
    e("v_lshrrev_b32 v30, 5, v1")
    e(f"v_lshl_add_u32 v{vQw}, v30, 8, v{vQw}")
    e(f"s_lshl_b32 s{sT1}, s{sW}, 10")
    e(f"s_add_u32 s{sT1}, s{sT1}, {QOFF}")
    e(f"v_add_u32 v{vQw}, s{sT1}, v{vQw}")
    c("V dma: (i/8)*256 + (((i%8)/2 ^ ((i/16)&3))*2 + (i&1))*16 ; wo: (i/8)*1024 + (i%8)*16")
    e("v_lshrrev_b32 v30, 4, v1")
    e("v_lshlrev_b32 v30, 1, v30")
    e("v_xor_b32 v30, v30, v1")
    e("v_and_b32 v30, 7, v30")
    e("v_lshrrev_b32 v120, 3, v1")
    e(f"v_lshlrev_b32 v{vVo}, 8, v120")
    e(f"v_lshl_add_u32 v{vVo}, v30, 4, v{vVo}")
    e("v_and_b32 v30, 7, v1")
    e(f"v_lshlrev_b32 v{vWo}, 10, v120")
    e(f"v_lshl_add_u32 v{vWo}, v30, 4, v{vWo}")
    c("tr read base0: w*32768 + (lane>>2)*128 + (((lane>>3)&3)*32) + (lane&3)*8 ; blk b -> ^ b*32")
    e("v_lshrrev_b32 v30, 2, v1")
    e(f"v_lshlrev_b32 v{vVr[0]}, 7, v30")
    e("v_bfe_u32 v30, v1, 3, 2")
    e(f"v_lshl_add_u32 v{vVr[0]}, v30, 5, v{vVr[0]}")
    e("v_and_b32 v30, 3, v1")
    e(f"v_lshl_add_u32 v{vVr[0]}, v30, 3, v{vVr[0]}")
    e(f"s_lshl_b32 s{sVl}, s{sW}, 15")
    e(f"v_add_u32 v{vVr[0]}, s{sVl}, v{vVr[0]}")
    c("vVr[0..1]: group w^1|w^3 parity (blk 2*((w&1)^1)+j2); vVr[2..3]: own parity")
    e(f"s_and_b32 s{sT1}, s{sW}, 1")
    e(f"s_lshl_b32 s{sT1}, s{sT1}, 6")
    e(f"v_xor_b32 v{vVr[2]}, s{sT1}, v{vVr[0]}")
    e(f"v_xor_b32 v{vVr[3]}, 32, v{vVr[2]}")
    e(f"v_xor_b32 v{vVr[0]}, 64, v{vVr[2]}")
    e(f"v_xor_b32 v{vVr[1]}, 64, v{vVr[3]}")
    c("partial slots: own V region + extra")
    e(f"v_add_u32 v{vSl[0]}, s{sVl}, v{vL16}")
    e(f"s_lshl_b32 s{sT1}, s{sW}, 13")
    e(f"s_add_u32 s{sT1}, s{sT1}, {EXTRA}")
    e(f"v_add_u32 v{vSl[1]}, s{sT1}, v{vL16}")
    e(f"v_xor_b32 v{vSr[0]}, 0x18000, v{vSl[0]}")
    e(f"v_xor_b32 v{vSr[1]}, 0x10000, v{vSl[0]}")
    e(f"v_xor_b32 v{vSr[2]}, 0x4000, v{vSl[1]}")
    e(f"v_xor_b32 v{vSr[3]}, 0x8000, v{vSl[0]}")
    c("wo soffset: (kh*2048 + w*512)*1024 + ct*128")
    e(f"s_lshl_b32 s{sWo}, s{sKH}, 2")
    e(f"s_add_u32 s{sWo}, s{sWo}, s{sW}")
    e(f"s_lshl_b32 s{sWo}, s{sWo}, 19")
    e(f"s_lshl_b32 s{sT1}, s{sCT}, 7")
    e(f"s_add_u32 s{sWo}, s{sWo}, s{sT1}")
    e("v_and_b32 v30, 15, v1")
    e(f"v_lshlrev_b32 v{vStr}, 4, v30")
    e(f"v_add_u32 v{vStr}, {MAXOFF}, v{vStr}")
    e(f"s_lshl_b32 s{sT1}, s{sW}, 2")
    e(f"v_add_u32 v{vSt}, s{sT1}, v{vStr}")

ACC = 32; XF = 80; WF = 104
def qproj():
    c("x voffset: (4w+i/16)*1024 + ((i%16)^(4w+i/16))*16")
    e(f"s_lshl_b32 s{sT1}, s{sW}, 2")
    e("v_lshrrev_b32 v30, 4, v1")
    e(f"v_add_u32 v30, s{sT1}, v30")
    e("v_xor_b32 v29, v30, v1")
    e("v_and_b32 v29, 15, v29")
    e(f"v_lshlrev_b32 v{vXo[0]}, 10, v30")
    e(f"v_lshl_add_u32 v{vXo[0]}, v29, 4, v{vXo[0]}")
    e(f"s_lshl_b32 s{sXm}, s{sW}, 10")
    e("v_lshrrev_b32 v30, 4, v1")
    e(f"v_lshlrev_b32 v{vWq}, 13, v30")
    e("v_and_b32 v30, 15, v1")
    e(f"v_lshl_add_u32 v{vWq}, v30, 4, v{vWq}")
    e(f"s_lshl_b32 s{sWq}, s{sH}, 8")
    e(f"s_lshl_b32 s{sT1}, s{sW}, 18")
    e(f"s_add_u32 s{sWq}, s{sWq}, s{sT1}")
    xs = {}; wqs = {}
    def xl(ch, m):
        e(f"s_add_u32 m0, s{sXm}, {XOFF + ch*24576 + m*4096}")
        e(f"s_add_u32 s{sXs}, s{sXB}, {m*16384 + ch*256}")
        xs[ch] = vm(f"buffer_load_dwordx4 v{vXo[0]}, {srd(SX)}, s{sXs} offen lds")
    def wl(ch, i):
        k = ch*8 + i
        e(f"s_add_u32 s{sXs}, s{sWq}, {ch*128*8192 + i*4*8192}")
        wqs[ch] = vm(f"buffer_load_dwordx4 {ar(128+4*k,4)}, v{vWq}, {srd(SWQ)}, s{sXs} offen")
    for ch in range(4):
        for m in range(6): xl(ch, m)
        for i in range(8): wl(ch, i)
    for _ in range(KPRE): k1()
    addr_setup()
    stamp("issued")
    def rd_frags(S_, buf):
        ch, s = S_//8, S_%8
        for u in range(2):
            e(f"ds_read_b64_tr_b16 {vr(WF+buf*4+u*2,2)}, v{vStR} offset:{(ch&1)*8192 + s*1024 + u*256}")
        for t3 in range(3):
            base = vXa[s] if ch < 2 else 112+s
            e(f"ds_read_b128 {vr(XF+buf*12+t3*4,4)}, v{base} offset:{(ch&1)*24576 + t3*8192}")
    def stage(ch):
        wait_for(max(wqs[ch], xs[ch]))
        for i in range(8):
            e(f"ds_write_b128 v{vStW}, {ar(128+(ch*8+i)*4,4)} offset:{(ch&1)*8192 + i*256}")
        e("s_waitcnt lgkmcnt(0)")
        e("s_barrier")
    for ch in range(4):
        stage(ch)
        if ch == 0: stamp("x_ready")
        rd_frags(ch*8, 0)
        for s in range(8):
            S_ = ch*8 + s; buf = s & 1
            if s < 7:
                rd_frags(S_+1, buf^1)
                e("s_waitcnt lgkmcnt(5)")
            else:
                e("s_waitcnt lgkmcnt(0)")
            for t3 in range(3):
                cin = "0" if S_ == 0 else vr(ACC+t3*16,16)
                e(f"v_mfma_f32_32x32x16_bf16 {vr(ACC+t3*16,16)}, {vr(WF+buf*4,4)}, {vr(XF+buf*12+t3*4,4)}, {cin}")
                if t3 != 1: k1()
    while kn[0] < 32: k1()
    e("s_barrier")
    stamp("qproj_done")
    nop(12)
    for t3 in range(3):
        for t in range(2):
            b0 = ACC + t3*16 + t*8
            for k in range(4):
                e(f"v_cvt_pk_bf16_f32 v{XF+(t3*2+t)*4+k}, v{b0+2*k}, v{b0+2*k+1}")
            e(f"ds_write_b128 v{vQw}, {vr(XF+(t3*2+t)*4,4)} offset:{t3*8192 + t*512}")
    for _ in range(VPRE): v1()
    e("s_waitcnt lgkmcnt(0)")
    e("s_barrier")
    e(f"v_add_u32 v30, {QOFF}, v{vL16}")
    for j in range(6):
        for s in range(4):
            e(f"ds_read_b128 {ar(128+(j*4+s)*4,4)}, v30 offset:{(j*4+s)*1024}")

def xreduce(base, op):
    for sw in ("v_permlane32_swap_b32", "v_permlane16_swap_b32"):
        for j in range(6): e(f"v_mov_b32 v{vTmp+j}, v{base+j}")
        nop(2)
        for j in range(6): e(f"{sw} v{base+j}, v{vTmp+j}")
        nop(2)
        for j in range(6): e(f"{op} v{base+j}, v{base+j}, v{vTmp+j}")
def stat_read(off):
    for j in range(5):
        e(f"ds_read_b128 {vr(vTmp+j*4,4)}, v{vStr} offset:{off + j*256}")
    e(f"ds_read_b128 {vr(vXa[1],4)}, v{vStr} offset:{off + 5*256}")
    e("s_waitcnt lgkmcnt(0)")

def attention():
    for a in range(8):
        wait_for(kseq[a], " lgkmcnt(0)" if a == 0 else "")
        for s in range(4):
            for j in range(6):
                cin = "0" if s == 0 else vr(S(a,j),4)
                e(f"v_mfma_f32_16x16x32_bf16 {vr(S(a,j),4)}, {ar((a*4+s)*4,4)}, {ar(128+(j*4+s)*4,4)}, {cin}")
                if j == 2: v1()
                if j == 5 and wn[0] < 8 + 4*min(a,6) and wn[0] < WS: w1()
    while vn[0] < 32: v1()
    nop(8)
    stamp("S_done")
    for j in range(6):
        vals = [S(a,j)+i for a in range(8) for i in range(4)]
        e(f"v_max3_f32 v{vM+j}, v{vals[0]}, v{vals[1]}, v{vals[2]}")
        k = 3
        while k + 1 < 32:
            e(f"v_max3_f32 v{vM+j}, v{vM+j}, v{vals[k]}, v{vals[k+1]}"); k += 2
        e(f"v_max_f32 v{vM+j}, v{vM+j}, v{vals[31]}")
    xreduce(vM, "v_max_f32")
    for j in range(6): e(f"ds_write_b32 v{vSt}, v{vM+j} offset:{j*256}")
    e("s_waitcnt lgkmcnt(0)")
    e("s_barrier")
    stat_read(0)
    for j in range(6):
        b0 = vTmp + j*4 if j < 5 else vXa[1]
        e(f"v_max3_f32 v{vM+j}, v{b0}, v{b0+1}, v{b0+2}")
        e(f"v_max_f32 v{vM+j}, v{vM+j}, v{b0+3}")
        e(f"v_mul_f32 v{vM+j}, s{sC}, v{vM+j}")
    for j in range(6):
        for s in range(4):
            regs8 = [S(2*s,j)+i for i in range(4)] + [S(2*s+1,j)+i for i in range(4)]
            for r in regs8: e(f"v_fma_f32 v{r}, v{r}, s{sC}, -v{vM+j}")
            w1()
            for r in regs8: e(f"v_exp_f32 v{r}, v{r}")
            w1()
            e("s_nop 0")
            if s == 0:
                e(f"v_add_f32 v{vLs+j}, v{regs8[0]}, v{regs8[1]}"); rest = regs8[2:]
            else: rest = regs8
            for r in rest: e(f"v_add_f32 v{vLs+j}, v{vLs+j}, v{r}")
            for k in range(4):
                e(f"v_cvt_pk_bf16_f32 v{S(2*s,j)+k}, v{regs8[2*k]}, v{regs8[2*k+1]}")
    xreduce(vLs, "v_add_f32")
    for j in range(6): e(f"ds_write_b32 v{vSt}, v{vLs+j} offset:{SUMOFF - MAXOFF + j*256}")
    e("s_waitcnt lgkmcnt(0)")
    e("s_barrier")
    stat_read(SUMOFF - MAXOFF)
    for j in range(6):
        b0 = vTmp + j*4 if j < 5 else vXa[1]
        e(f"v_add_f32 v{vLs+j}, v{b0}, v{b0+1}")
        e(f"v_add_f32 v{b0+2}, v{b0+2}, v{b0+3}")
        e(f"v_add_f32 v{vLs+j}, v{vLs+j}, v{b0+2}")
        e(f"v_rcp_f32 v{vLs+j}, v{vLs+j}")
    stamp("softmax_done")
    def vfr(hf, s, buf):
        for g4 in range(4):
            for u in range(2):
                e(f"ds_read_b64_tr_b16 {ar(VA+buf*16+g4*4+2*u,2)}, v{vVr[g4]} offset:{hf*16384 + s*4096 + u*2048}")
    def phase(hf, cinit):
        wait_for(vseq[(hf,0)])
        vfr(hf, 0, 0)
        for s in range(4):
            if s < 3:
                wait_for(vseq[(hf,s+1)])
                if s == 2 and hf == 1: stamp("V3_ready")
                vfr(hf, s+1, (s+1)&1); e("s_waitcnt lgkmcnt(8)")
            else: e("s_waitcnt lgkmcnt(0)")
            for g4 in range(4):
                for j in range(6):
                    d = ACCT(g4*6 + j)
                    cin = "0" if (s == 0 and not (cinit and g4 >= 2)) else vr(d,4)
                    e(f"v_mfma_f32_16x16x32_bf16 {vr(d,4)}, {ar(VA+(s&1)*16+g4*4,4)}, {vr(S(2*s,j),4)}, {cin}")
                    if j == 2 and hf == 0: w1()
    c("PV phase I: groups w^3 (tiles 0..11), w^2 (tiles 12..23)")
    phase(0, False)
    nop(4)
    for tt in range(24):
        if tt < 16: e(f"ds_write_b128 v{vSl[0]}, {vr(ACCT(tt),4)} offset:{tt*1024}")
        else: e(f"ds_write_b128 v{vSl[1]}, {vr(ACCT(tt),4)} offset:{(tt-16)*1024}")
    while wn[0] < 64 - 8: w1()
    e("s_waitcnt lgkmcnt(0)")
    e("s_barrier")
    c("own group init = partial(w^3 tiles 0..11) + partial(w^2 tiles 12..23)")
    for t in range(12):
        e(f"ds_read_b128 {vr(ACCT(12+t),4)}, v{vSr[0]} offset:{t*1024}")
        if t < 4: e(f"ds_read_b128 {vr(ACCT(t),4)}, v{vSr[1]} offset:{(12+t)*1024}")
        else: e(f"ds_read_b128 {vr(ACCT(t),4)}, v{vSr[2]} offset:{(t-4)*1024}")
    e("s_waitcnt lgkmcnt(0)")
    for t in range(12):
        for i in range(4): e(f"v_add_f32 v{ACCT(12+t)+i}, v{ACCT(12+t)+i}, v{ACCT(t)+i}")
    nop(2)
    c("PV phase II: groups w^1 (tiles 0..11, C=0), w (tiles 12..23)")
    phase(1, True)
    nop(4)
    for t in range(12):
        e(f"ds_write_b128 v{vSl[0]}, {vr(ACCT(t),4)} offset:{16384 + t*1024}")
    WCAP[0] = 64
    while wn[0] < 64: w1()
    e("s_waitcnt lgkmcnt(0)")
    e("s_barrier")
    for t in range(12):
        e(f"ds_read_b128 {vr(ACCT(t),4)}, v{vSr[3]} offset:{16384 + t*1024}")
    e("s_waitcnt lgkmcnt(0)")
    for t in range(12):
        for i in range(4): e(f"v_add_f32 v{ACCT(12+t)+i}, v{ACCT(12+t)+i}, v{ACCT(t)+i}")
VA = 192
def ACCT(tt): return S(1 + 2*(tt//6), tt%6)
def signal(sreg_idx_expr_lines, inc, lbl):
    e(f"s_cmp_lg_u32 s{sW}, 0")
    e(f"s_cbranch_scc1 {lbl}")
    for l in sreg_idx_expr_lines: e(l)
    e(f"v_mov_b32 v30, {inc}")
    e(f"v_mov_b32 v31, s{sT0}")
    e("s_mov_b64 s[72:73], exec")
    e("s_mov_b64 exec, 1")
    e(f"buffer_atomic_add v30, v31, {srd(SDBG)}, 0 offen sc1")
    e("s_mov_b64 exec, s[72:73]")
    lab(lbl)
def poll(sreg_idx_expr_lines, hi, target, lbl):
    e(f"s_cmp_lg_u32 s{sW}, 0")
    e(f"s_cbranch_scc1 {lbl}_done")
    for l in sreg_idx_expr_lines: e(l)
    e(f"v_mov_b32 v31, s{sT0}")
    e(f"s_mov_b32 s{sCNT}, 0")
    lab(lbl)
    e(f"buffer_load_dword v30, v31, {srd(SDBG)}, 0 offen sc1")
    e("s_waitcnt vmcnt(0)")
    e(f"v_readfirstlane_b32 s{sT1}, v30")
    e(f"s_add_u32 s{sCNT}, s{sCNT}, 1")
    if hi: e(f"s_lshr_b32 s{sT1}, s{sT1}, 16")
    else: e(f"s_and_b32 s{sT1}, s{sT1}, 0xffff")
    e(f"s_cmp_ge_u32 s{sT1}, {target}")
    e(f"s_cbranch_scc1 {lbl}_done")
    e(f"s_cmp_lt_u32 s{sCNT}, 200000")
    e(f"s_cbranch_scc1 {lbl}")
    lab(lbl + "_done")
    e("s_barrier")
def outproj_g():
    f1p = [f"s_lshr_b32 s{sT0}, s{sH}, 4", f"s_lshl_b32 s{sT1}, s{sB}, 1", f"s_add_u32 s{sT0}, s{sT0}, s{sT1}", f"s_lshl_b32 s{sT0}, s{sT0}, 2"]
    f1c = [f"s_lshl_b32 s{sT1}, s{sB2}, 1", f"s_add_u32 s{sT0}, s{sKH}, s{sT1}", f"s_lshl_b32 s{sT0}, s{sT0}, 2"]
    c("normalize, pack, store O frags")
    e(f"s_lshl_b32 s{sT0}, s{sB}, 5")
    e(f"s_add_u32 s{sT0}, s{sT0}, s{sH}")
    e(f"s_lshl_b32 s{sT0}, s{sT0}, 2")
    e(f"s_add_u32 s{sT0}, s{sT0}, s{sW}")
    e(f"s_mul_i32 s{sT0}, s{sT0}, 6144")
    for j in range(6):
        for j2 in range(2):
            b0 = ACCT(12+j2*6+j)
            for i in range(4): e(f"v_mul_f32 v{b0+i}, v{b0+i}, v{vLs+j}")
        d = ACCT(j)
        for j2 in range(2):
            b0 = ACCT(12+j2*6+j)
            e(f"v_cvt_pk_bf16_f32 v{d+2*j2}, v{b0}, v{b0+1}")
            e(f"v_cvt_pk_bf16_f32 v{d+2*j2+1}, v{b0+2}, v{b0+3}")
        if j == 4: e(f"s_add_u32 s{sT0}, s{sT0}, 4096")
        vm(f"buffer_store_dwordx4 {vr(d,4)}, v{vL16}, {srd(SWS)}, s{sT0} offen offset:{(j%4)*1024} sc1")
    e("s_waitcnt vmcnt(0)")
    e("s_barrier")
    stamp("O_stored")
    signal(f1p, 1, "L_sig1")
    c("transpose wo via own 32K LDS region; write addr = w*32768 + (lane ^ (2*((lane>>4)&3)))*16")
    e("v_lshrrev_b32 v30, 4, v1")
    e("v_lshlrev_b32 v30, 1, v30")
    e("v_xor_b32 v30, v30, v1")
    e(f"v_lshl_add_u32 v{vWo}, v30, 4, s{sVl}")
    c("blk-ordered read bases: v3..v6 = base0 ^ jj*32")
    e(f"s_and_b32 s{sT1}, s{sW}, 1")
    e(f"s_lshl_b32 s{sT1}, s{sT1}, 6")
    e(f"v_xor_b32 v3, s{sT1}, v{vVr[2]}")
    e("v_xor_b32 v4, 32, v3"); e("v_xor_b32 v5, 64, v3"); e("v_xor_b32 v6, 0x60, v3")
    def FRG(ks, jj): return WR(ks*4 + jj)
    def wo_tr(half):
        for i in range(32):
            e(f"ds_write_b128 v{vWo}, {ar(WR(half*32+i),4)} offset:{i*1024}")
        e("s_waitcnt lgkmcnt(0)")
        for ks in range(8):
            for jj in range(4):
                for u in range(2):
                    e(f"ds_read_b64_tr_b16 {ar(FRG(half*8+ks,jj)+u*2,2)}, v{3+jj} offset:{ks*4096 + u*2048}")
        e("s_waitcnt lgkmcnt(0)")
    wo_tr(0)
    poll(f1c, False, 16, "L_poll1")
    stamp("poll_done")
    e(f"s_lshl_b32 s{sOB}, s{sB2}, 5")
    e(f"s_lshl_b32 s{sT0}, s{sKH}, 4")
    e(f"s_add_u32 s{sOB}, s{sOB}, s{sT0}")
    e(f"s_lshl_b32 s{sT0}, s{sW}, 2")
    e(f"s_add_u32 s{sOB}, s{sOB}, s{sT0}")
    e(f"s_mul_i32 s{sOB}, s{sOB}, 24576")
    e(f"s_mul_i32 s{sT0}, s{sQH}, 3072")
    e(f"s_add_u32 s{sOB}, s{sOB}, s{sT0}")
    OA = 200; oseq = {}; RING = 14
    def oload(ks):
        e(f"s_add_u32 s{sT0}, s{sOB}, {ks*6144}")
        for jq in range(3):
            oseq[ks] = vm(f"buffer_load_dwordx4 {vr(32 + ((ks%RING)*3+jq)*4,4)}, v{vL16}, {srd(SWS)}, s{sT0} offen offset:{jq*1024} sc1")
    for ks in range(RING): oload(ks)
    wo_tr(1)
    for ks in range(16):
        wait_for(oseq[ks])
        for jq in range(3):
            for jj in range(4):
                d = OA + (jj*3+jq)*4
                cin = "0" if ks == 0 else vr(d,4)
                e(f"v_mfma_f32_16x16x32_bf16 {vr(d,4)}, {ar(FRG(ks,jj),4)}, {vr(32+((ks%RING)*3+jq)*4,4)}, {cin}")
        if ks + RING < 16: oload(ks+RING)
    nop(8)
    stamp("oproj_done")
    c("cross-wave reduce: wave w sums n16 tile jj=w (3 q tiles)")
    e(f"s_mul_i32 s{sT1}, s{sW}, 12288")
    e(f"v_add_u32 v30, s{sT1}, v{vL16}")
    e("s_barrier")
    for t in range(12):
        e(f"ds_write_b128 v30, {vr(OA+t*4,4)} offset:{t*1024}")
    e("s_waitcnt lgkmcnt(0)")
    e("s_barrier")
    e(f"s_mul_i32 s{sT1}, s{sW}, 3072")
    e(f"v_add_u32 v30, s{sT1}, v{vL16}")
    for ww in range(4):
        for jq in range(3):
            e(f"ds_read_b128 {vr(32+(ww*3+jq)*4,4)}, v30 offset:{ww*12288 + jq*1024}")
    e("s_waitcnt lgkmcnt(0)")
    for r in range(12):
        e(f"v_add_f32 v{32+r}, v{32+r}, v{44+r}")
        e(f"v_add_f32 v{56+r}, v{56+r}, v{68+r}")
        e(f"v_add_f32 v{32+r}, v{32+r}, v{56+r}")
    c("waves with (w>>1) != kh send their tile to the partner; others receive")
    e(f"s_lshr_b32 s{sT0}, s{sW}, 1")
    e(f"s_and_b32 s{sT2}, s{sW}, 1")
    e(f"s_mul_i32 s{sT2}, s{sT2}, 3072")
    e(f"s_cmp_eq_u32 s{sT0}, s{sKH}")
    e("s_cbranch_scc1 L_recv")
    e(f"s_mul_i32 s{sT1}, s2, 6144")
    e(f"s_add_u32 s{sT1}, s{sT1}, s{sT2}")
    e(f"s_add_u32 s{sT1}, s{sT1}, {POFF}")
    for jq in range(3):
        e(f"buffer_store_dwordx4 {vr(32+jq*4,4)}, v{vL16}, {srd(SWS)}, s{sT1} offen offset:{jq*1024} sc1")
    e("s_waitcnt vmcnt(0)")
    c("per-wave flag: bit (id*2 + (w&1)) in dwords 16..31")
    e(f"s_lshl_b32 s{sT0}, s2, 1")
    e(f"s_and_b32 s{sT1}, s{sW}, 1")
    e(f"s_add_u32 s{sT0}, s{sT0}, s{sT1}")
    e(f"s_and_b32 s{sT1}, s{sT0}, 31")
    e(f"s_lshl_b32 s{sT1}, 1, s{sT1}")
    e(f"s_lshr_b32 s{sT0}, s{sT0}, 5")
    e(f"s_lshl_b32 s{sT0}, s{sT0}, 2")
    e(f"s_add_u32 s{sT0}, s{sT0}, 64")
    e(f"v_mov_b32 v30, s{sT1}")
    e(f"v_mov_b32 v31, s{sT0}")
    e("s_mov_b64 exec, 1")
    e(f"buffer_atomic_add v30, v31, {srd(SDBG)}, 0 offen sc1")
    e("s_mov_b64 exec, -1")
    e("s_branch L_fin")
    lab("L_recv")
    e(f"s_xor_b32 s{sT3}, s2, 1")
    e(f"s_lshl_b32 s{sT0}, s{sT3}, 1")
    e(f"s_and_b32 s{sT1}, s{sW}, 1")
    e(f"s_add_u32 s{sT0}, s{sT0}, s{sT1}")
    e(f"s_and_b32 s{sOB}, s{sT0}, 31")
    e(f"s_lshr_b32 s{sT0}, s{sT0}, 5")
    e(f"s_lshl_b32 s{sT0}, s{sT0}, 2")
    e(f"s_add_u32 s{sT0}, s{sT0}, 64")
    e(f"v_mov_b32 v31, s{sT0}")
    e(f"s_mov_b32 s{sCNT}, 0")
    lab("L_poll2")
    e(f"buffer_load_dword v30, v31, {srd(SDBG)}, 0 offen sc1")
    e("s_waitcnt vmcnt(0)")
    e(f"v_readfirstlane_b32 s{sT1}, v30")
    e(f"s_add_u32 s{sCNT}, s{sCNT}, 1")
    e(f"s_lshr_b32 s{sT1}, s{sT1}, s{sOB}")
    e(f"s_and_b32 s{sT1}, s{sT1}, 1")
    e("s_cbranch_scc1 L_poll2_done")
    e(f"s_cmp_lt_u32 s{sCNT}, 200000")
    e("s_cbranch_scc1 L_poll2")
    lab("L_poll2_done")
    e(f"s_mul_i32 s{sT1}, s{sT3}, 6144")
    e(f"s_add_u32 s{sT1}, s{sT1}, s{sT2}")
    e(f"s_add_u32 s{sT1}, s{sT1}, {POFF}")
    for jq in range(3):
        e(f"buffer_load_dwordx4 {vr(44+jq*4,4)}, v{vL16}, {srd(SWS)}, s{sT1} offen offset:{jq*1024} sc1")
    c("out offset = ((b2*96 + 48qh + 16jq + q)*512 + 64ct + 16w + 4g')*2")
    e(f"s_mul_i32 s{sT0}, s{sB2}, 96")
    e(f"s_mul_i32 s{sT1}, s{sQH}, 48")
    e(f"s_add_u32 s{sT0}, s{sT0}, s{sT1}")
    e(f"s_lshl_b32 s{sT0}, s{sT0}, 10")
    e(f"s_lshl_b32 s{sT1}, s{sCT}, 7")
    e(f"s_add_u32 s{sT0}, s{sT0}, s{sT1}")
    e(f"s_lshl_b32 s{sT1}, s{sW}, 5")
    e(f"s_add_u32 s{sT0}, s{sT0}, s{sT1}")
    e("v_and_b32 v31, 15, v1")
    e("v_lshlrev_b32 v31, 10, v31")
    e("v_lshrrev_b32 v2, 4, v1")
    e("v_lshl_add_u32 v31, v2, 3, v31")
    e("s_waitcnt vmcnt(0)")
    for jq in range(3):
        for i in range(4): e(f"v_add_f32 v{32+jq*4+i}, v{32+jq*4+i}, v{44+jq*4+i}")
        e(f"v_cvt_pk_bf16_f32 v{64+jq*2}, v{32+jq*4}, v{33+jq*4}")
        e(f"v_cvt_pk_bf16_f32 v{65+jq*2}, v{34+jq*4}, v{35+jq*4}")
        e(f"buffer_store_dwordx2 {vr(64+jq*2,2)}, v31, {srd(SOUT)}, s{sT0} offen")
        e(f"s_add_u32 s{sT0}, s{sT0}, 16384")
    lab("L_fin")

prologue(); qproj(); attention(); outproj_g()
stamp("end"); stamp_dump()
lab("L_end"); e("s_endpgm")
hdr = open("cdna_kernels/%s.s.ref" % NAME).read().split("; @launch")[0]
out = hdr + "; @launch grid=(256,1,1) block=(256,1,1) lds=163840\n"
out += f""".amdgcn_target "amdgcn-amd-amdhsa--gfx950"
.text
.globl {NAME}_kernel
.p2align 8
.type {NAME}_kernel,@function
{NAME}_kernel:
""" + "\n".join(L) + f"""
.section .rodata,"a"
.p2align 6
.amdhsa_kernel {NAME}_kernel
  .amdhsa_next_free_vgpr 512
  .amdhsa_next_free_sgpr 102
  .amdhsa_accum_offset 256
  .amdhsa_group_segment_fixed_size 0
  .amdhsa_kernarg_size 64
  .amdhsa_user_sgpr_count 2
  .amdhsa_user_sgpr_kernarg_segment_ptr 1
  .amdhsa_system_sgpr_workgroup_id_x 1
.end_amdhsa_kernel
"""
dst = sys.argv[1] if len(sys.argv) > 1 else "cdna_kernels/%s.s" % NAME
open(dst, "w").write(out)
print("wrote", dst, len(L), "lines")
```

```python
import sys, os
L = []
def e(s): L.append("    " + s)
def lab(s): L.append(s + ":")
def c(s): L.append("    ; " + s)
def nop(n):
    while n > 0:
        k = min(n, 16); e(f"s_nop {k-1}"); n -= k
NAME = "standalone__gqa_block_cached__near_ridge"
STAMP = os.environ.get("STAMP")
VPRE = int(os.environ.get("VPRE", "4"))
WS2 = int(os.environ.get("WS2", "0"))
KPRE = int(os.environ.get("KPRE", "4"))
XOFF = 0; STG = 98304; QOFF = 131072; EXTRA = 131072
MAXOFF = 155648; SUMOFF = 160*1024 - 2048
SX, SK, SV, SWQ, SWO, SOUT, SWS, SDBG = 8, 12, 16, 20, 24, 28, 32, 36
sW, sB, sH, sT0, sT1, sT2, sT3 = 40, 41, 42, 43, 44, 45, 46
sKV, sXB, sC, sB2, sQH, sCT, sOB, sWN, sCNT = 47, 48, 49, 50, 51, 52, 53, 54, 55
sVb, sVl, sWo = 56, 57, 58
sKH = 5
sXm, sXs, sWq = 59, 60, 61
POFF = 0x800000
FOFF = 0xA00000
sTAG = 6
vTG = 122
def srd(r): return f"s[{r}:{r+3}]"
vKo = 2; vXo = [31]; vWq = 7; vL16 = 8; vStW = 9; vStR = 10
vXa = list(range(11,19)); vQw = 19; vVo = 20; vVr = [21,22,23,24]; vSl = [25,26]; vSr = [3,4,5,6]
vSt = 27; vStr = 28; vWo = 29
def S(a,j): return 32 + (a*6+j)*4
vM = 224; vLs = 230; vTmp = 236
def vr(b,n): return f"v[{b}:{b+n-1}]"
def ar(b,n): return f"a[{b}:{b+n-1}]"
stamps = []
def stamp(name):
    if STAMP is None: return
    k = len(stamps); stamps.append(name)
    e(f"s_memrealtime s[{74+2*k}:{75+2*k}]")
    e("s_waitcnt lgkmcnt(0)")
def stamp_dump():
    if STAMP is None: return
    e(f"s_cmp_lg_u32 s{sW}, 0")
    e("s_cbranch_scc1 L_end")
    e("s_mov_b64 exec, 1")
    e(f"s_mov_b32 s{SWS+2}, 0x2000000")
    e(f"s_lshl_b32 s{sT1}, s2, 6")
    e(f"s_add_u32 s{sT1}, s{sT1}, 0x1800000")
    for k in range(len(stamps)):
        e(f"v_mov_b32 v30, s{74+2*k}")
        e(f"v_mov_b32 v31, {k*4}")
        e(f"buffer_store_dword v30, v31, {srd(SWS)}, s{sT1} offen")
        e("s_nop 1")
    L.append("; STAMPS " + ",".join(stamps))

class VM:
    n = 0
def vm(s):
    e(s); VM.n += 1; return VM.n
def wait_for(seq, extra=""):
    k = min(63, VM.n - seq)
    e(f"s_waitcnt vmcnt({k}){extra}")

def prologue():
    e("s_cmp_ge_u32 s2, 256")
    e("s_cbranch_scc1 L_end")
    stamp("start")
    e("s_load_dwordx16 s[56:71], s[0:1], 0")
    e("s_memrealtime s[6:7]")
    e("v_and_b32 v1, 63, v0")
    e("v_lshrrev_b32 v30, 6, v0")
    e("s_nop 0")
    e(f"v_readfirstlane_b32 s{sW}, v30")
    e(f"s_and_b32 s{sT0}, s2, 7")
    e(f"s_lshr_b32 s{sT1}, s2, 3")
    e(f"s_and_b32 s{sT2}, s{sT1}, 3")
    e(f"s_lshl_b32 s{sH}, s{sT0}, 2")
    e(f"s_add_u32 s{sH}, s{sH}, s{sT2}")
    e(f"s_lshr_b32 s{sB}, s{sT1}, 2")
    e(f"s_and_b32 s{sKH}, s{sT0}, 1")
    e(f"s_andn2_b32 s{sB2}, s{sT0}, 1")
    e(f"s_lshr_b32 s{sT3}, s{sT2}, 1")
    e(f"s_add_u32 s{sB2}, s{sB2}, s{sT3}")
    e(f"s_and_b32 s{sQH}, s{sT2}, 1")
    e(f"s_mov_b32 s{sCT}, s{sB}")
    e(f"s_lshl_b32 s{sKV}, s{sB}, 5")
    e(f"s_add_u32 s{sKV}, s{sKV}, s{sH}")
    e(f"s_lshl_b32 s{sKV}, s{sKV}, 17")
    e(f"s_lshl_b32 s{sT3}, s{sW}, 15")
    e(f"s_add_u32 s{sKV}, s{sKV}, s{sT3}")
    e(f"s_mul_i32 s{sXB}, s{sB}, 98304")
    e(f"s_add_u32 s{sWN}, s{sW}, 1")
    e(f"s_and_b32 s{sWN}, s{sWN}, 3")
    e(f"s_mov_b32 s{sC}, 0x3e0293ee")
    e("v_and_b32 v30, 15, v1")
    e("v_lshrrev_b32 v31, 4, v1")
    e(f"v_lshlrev_b32 v{vKo}, 8, v30")
    e(f"v_lshl_add_u32 v{vKo}, v31, 4, v{vKo}")
    e(f"v_lshlrev_b32 v{vL16}, 4, v1")
    e("s_waitcnt lgkmcnt(0)")
    e(f"s_or_b32 s{sTAG}, s{sTAG}, 1")
    sizes = [786432, 33554432, 33554432, 4194304, 4194304, 786432, 256, FOFF + 0x10000]
    regs = [SX, SK, SV, SWQ, SWO, SOUT, SDBG, SWS]
    for i,(r,sz) in enumerate(zip(regs,sizes)):
        e(f"s_mov_b32 s{r}, s{56+2*i}")
        e(f"s_and_b32 s{r+1}, s{57+2*i}, 0xffff")
        e(f"s_mov_b32 s{r+2}, {sz}")
        e(f"s_mov_b32 s{r+3}, 0x00020000")

kseq = {}; kn = [0]; TAGSEQ = [0]
def k1():
    if kn[0] >= 32: return
    a, s_ = kn[0]//4, kn[0]%4; kn[0] += 1
    if s_ == 0: e(f"s_add_u32 s{sCNT}, s{sKV}, {a*4096}")
    kseq[a] = vm(f"buffer_load_dwordx4 {ar((a*4+s_)*4,4)}, v{vKo}, {srd(SK)}, s{sCNT} offen offset:{s_*64}")
vseq = {}; vn = [0]
def v1():
    if vn[0] >= 32: return
    hf, i = vn[0]//16, vn[0]%16; vn[0] += 1
    if i == 0:
        e(f"s_lshr_b32 s{sVb}, s{sW}, 1")
        if hf == 0: e(f"s_xor_b32 s{sVb}, s{sVb}, 1")
        e(f"s_lshl_b32 s{sVb}, s{sVb}, 7")
        e(f"s_add_u32 s{sVb}, s{sVb}, s{sKV}")
    e(f"s_add_u32 m0, s{sVl}, {hf*16384 + i*1024}")
    e(f"s_add_u32 s{sCNT}, s{sVb}, {i*2048}")
    vseq[(hf,i//4)] = vm(f"buffer_load_dwordx4 v{vVo}, {srd(SV)}, s{sCNT} offen lds")
wn = [0]; WCAP = [56]
def WR(i): return 224 + 4*i if i < 8 else 4*(i-8)
def w1():
    if wn[0] >= WCAP[0]: return
    i = wn[0]; wn[0] += 1
    vm(f"buffer_load_dwordx4 {ar(WR(i),4)}, v{vWo}, {srd(SWO)}, s{sWo} offen")
    e(f"s_add_u32 s{sWo}, s{sWo}, 8192")

def addr_setup():
    e(f"s_lshl_b32 s{sT1}, s{sW}, 14")
    e(f"s_add_u32 s{sT1}, s{sT1}, {STG}")
    c("staging write: cg*16384 + (32w + i/16)*64 + (i%4)*16")
    e("v_bfe_u32 v30, v1, 2, 2")
    e(f"v_lshlrev_b32 v{vStW}, 14, v30")
    e("v_lshrrev_b32 v30, 4, v1")
    e(f"v_lshl_add_u32 v{vStW}, v30, 6, v{vStW}")
    e("v_and_b32 v30, 3, v1")
    e(f"v_lshl_add_u32 v{vStW}, v30, 4, v{vStW}")
    e(f"s_lshl_b32 s{sT2}, s{sW}, 11")
    e(f"s_add_u32 s{sT2}, s{sT2}, {STG}")
    e(f"v_add_u32 v{vStW}, s{sT2}, v{vStW}")
    e("v_lshrrev_b32 v30, 5, v1")
    e("v_lshlrev_b32 v30, 3, v30")
    e("v_bfe_u32 v31, v1, 2, 2")
    e("v_add_u32 v30, v30, v31")
    e(f"v_lshlrev_b32 v{vStR}, 6, v30")
    e("v_bfe_u32 v30, v1, 4, 1")
    e(f"v_lshl_add_u32 v{vStR}, v30, 5, v{vStR}")
    e("v_and_b32 v30, 1, v1")
    e(f"v_lshl_add_u32 v{vStR}, v30, 4, v{vStR}")
    e("v_bfe_u32 v30, v1, 1, 1")
    e(f"v_lshl_add_u32 v{vStR}, v30, 3, v{vStR}")
    e(f"v_add_u32 v{vStR}, s{sT1}, v{vStR}")
    e("v_and_b32 v30, 31, v1")
    e("v_lshlrev_b32 v30, 8, v30")
    e("v_lshrrev_b32 v31, 5, v1")
    for lo in range(8):
        e(f"v_add_u32 v{vXa[lo]}, {2*lo}, v31")
        e(f"v_xor_b32 v{vXa[lo]}, v{vXa[lo]}, v1")
        e(f"v_and_b32 v{vXa[lo]}, 15, v{vXa[lo]}")
        e(f"v_lshl_add_u32 v{vXa[lo]}, v{vXa[lo]}, 4, v30")
        e(f"v_add_u32 v{112+lo}, 0xc000, v{vXa[lo]}")
    e("v_bfe_u32 v30, v1, 4, 1")
    e(f"v_lshlrev_b32 v{vQw}, 12, v30")
    e("v_and_b32 v30, 15, v1")
    e(f"v_lshl_add_u32 v{vQw}, v30, 4, v{vQw}")
    e("v_lshrrev_b32 v30, 5, v1")
    e(f"v_lshl_add_u32 v{vQw}, v30, 8, v{vQw}")
    e(f"s_lshl_b32 s{sT1}, s{sW}, 10")
    e(f"s_add_u32 s{sT1}, s{sT1}, {QOFF}")
    e(f"v_add_u32 v{vQw}, s{sT1}, v{vQw}")
    c("V dma: (i/8)*256 + (((i%8)/2 ^ ((i/16)&3))*2 + (i&1))*16 ; wo: (i/8)*1024 + (i%8)*16")
    e("v_lshrrev_b32 v30, 4, v1")
    e("v_lshlrev_b32 v30, 1, v30")
    e("v_xor_b32 v30, v30, v1")
    e("v_and_b32 v30, 7, v30")
    e("v_lshrrev_b32 v120, 3, v1")
    e(f"v_lshlrev_b32 v{vVo}, 8, v120")
    e(f"v_lshl_add_u32 v{vVo}, v30, 4, v{vVo}")
    e("v_and_b32 v30, 7, v1")
    e(f"v_lshlrev_b32 v{vWo}, 10, v120")
    e(f"v_lshl_add_u32 v{vWo}, v30, 4, v{vWo}")
    c("tr read base0: w*32768 + (lane>>2)*128 + (((lane>>3)&3)*32) + (lane&3)*8 ; blk b -> ^ b*32")
    e("v_lshrrev_b32 v30, 2, v1")
    e(f"v_lshlrev_b32 v{vVr[0]}, 7, v30")
    e("v_bfe_u32 v30, v1, 3, 2")
    e(f"v_lshl_add_u32 v{vVr[0]}, v30, 5, v{vVr[0]}")
    e("v_and_b32 v30, 3, v1")
    e(f"v_lshl_add_u32 v{vVr[0]}, v30, 3, v{vVr[0]}")
    e(f"s_lshl_b32 s{sVl}, s{sW}, 15")
    e(f"v_add_u32 v{vVr[0]}, s{sVl}, v{vVr[0]}")
    c("vVr[0..1]: group w^1|w^3 parity (blk 2*((w&1)^1)+j2); vVr[2..3]: own parity")
    e(f"s_and_b32 s{sT1}, s{sW}, 1")
    e(f"s_lshl_b32 s{sT1}, s{sT1}, 6")
    e(f"v_xor_b32 v{vVr[2]}, s{sT1}, v{vVr[0]}")
    e(f"v_xor_b32 v{vVr[3]}, 32, v{vVr[2]}")
    e(f"v_xor_b32 v{vVr[0]}, 64, v{vVr[2]}")
    e(f"v_xor_b32 v{vVr[1]}, 64, v{vVr[3]}")
    c("partial slots: own V region + extra")
    e(f"v_add_u32 v{vSl[0]}, s{sVl}, v{vL16}")
    e(f"s_lshl_b32 s{sT1}, s{sW}, 13")
    e(f"s_add_u32 s{sT1}, s{sT1}, {EXTRA}")
    e(f"v_add_u32 v{vSl[1]}, s{sT1}, v{vL16}")
    e(f"v_xor_b32 v{vSr[0]}, 0x18000, v{vSl[0]}")
    e(f"v_xor_b32 v{vSr[1]}, 0x10000, v{vSl[0]}")
    e(f"v_xor_b32 v{vSr[2]}, 0x4000, v{vSl[1]}")
    e(f"v_xor_b32 v{vSr[3]}, 0x8000, v{vSl[0]}")
    c("wo soffset: (kh*2048 + w*512)*1024 + ct*128")
    e(f"s_lshl_b32 s{sWo}, s{sKH}, 2")
    e(f"s_add_u32 s{sWo}, s{sWo}, s{sW}")
    e(f"s_lshl_b32 s{sWo}, s{sWo}, 19")
    e(f"s_lshl_b32 s{sT1}, s{sCT}, 7")
    e(f"s_add_u32 s{sWo}, s{sWo}, s{sT1}")
    e("v_and_b32 v30, 15, v1")
    e(f"v_lshlrev_b32 v{vStr}, 4, v30")
    e(f"v_add_u32 v{vStr}, {MAXOFF}, v{vStr}")
    e(f"s_lshl_b32 s{sT1}, s{sW}, 2")
    e(f"v_add_u32 v{vSt}, s{sT1}, v{vStr}")

ACC = 32; XF = 80; WF = 104
def qproj():
    c("x voffset: (4w+i/16)*1024 + ((i%16)^(4w+i/16))*16")
    e(f"s_lshl_b32 s{sT1}, s{sW}, 2")
    e("v_lshrrev_b32 v30, 4, v1")
    e(f"v_add_u32 v30, s{sT1}, v30")
    e("v_xor_b32 v29, v30, v1")
    e("v_and_b32 v29, 15, v29")
    e(f"v_lshlrev_b32 v{vXo[0]}, 10, v30")
    e(f"v_lshl_add_u32 v{vXo[0]}, v29, 4, v{vXo[0]}")
    e(f"s_lshl_b32 s{sXm}, s{sW}, 10")
    e("v_lshrrev_b32 v30, 4, v1")
    e(f"v_lshlrev_b32 v{vWq}, 13, v30")
    e("v_and_b32 v30, 15, v1")
    e(f"v_lshl_add_u32 v{vWq}, v30, 4, v{vWq}")
    e(f"s_lshl_b32 s{sWq}, s{sH}, 8")
    e(f"s_lshl_b32 s{sT1}, s{sW}, 18")
    e(f"s_add_u32 s{sWq}, s{sWq}, s{sT1}")
    xs = {}; wqs = {}
    def xl(ch, m):
        e(f"s_add_u32 m0, s{sXm}, {XOFF + ch*24576 + m*4096}")
        e(f"s_add_u32 s{sXs}, s{sXB}, {m*16384 + ch*256}")
        xs[ch] = vm(f"buffer_load_dwordx4 v{vXo[0]}, {srd(SX)}, s{sXs} offen lds")
    def wl(ch, i):
        k = ch*8 + i
        e(f"s_add_u32 s{sXs}, s{sWq}, {ch*128*8192 + i*4*8192}")
        wqs[ch] = vm(f"buffer_load_dwordx4 {ar(128+4*k,4)}, v{vWq}, {srd(SWQ)}, s{sXs} offen")
    seqs = [[(xl,ch,m) for m in range(6)] + [(wl,ch,i) for i in range(8)] for ch in range(4)]
    def issue(q, n):
        for _ in range(n):
            if q: it = q.pop(0); it[0](it[1], it[2])
    def tag_atomic():
        c("launch tag: cmpswap(d_debug[0], 0 -> realtime|1), all waves execute with exec masked unless wave 0")
        e(f"s_cmp_lg_u32 s{sW}, 0")
        e("s_cbranch_scc1 L_notag")
        e(f"v_mov_b32 v{vTG}, s{sTAG}")
        e(f"v_mov_b32 v{vTG+1}, 0")
        e(f"v_mov_b32 v{vTG+2}, 0")
        e("s_mov_b64 exec, 1")
        e(f"buffer_atomic_cmpswap {vr(vTG,2)}, v{vTG+2}, {srd(SDBG)}, 0 offen sc0 sc1")
        e("s_mov_b64 exec, -1")
        e("s_branch L_tagged")
        lab("L_notag")
        e(f"buffer_load_dword v{vTG}, v{vL16}, {srd(SX)}, 0 offen")
        lab("L_tagged")
        VM.n += 1
        return VM.n
    issue(seqs[0], 99)
    e(f"v_mov_b32 v121, v{vXo[0]}")
    vXo[0] = 121
    addr_setup()
    issue(seqs[1], 99)
    stamp("issued")
    def rd_frags(S_, buf):
        ch, s = S_//8, S_%8
        for u in range(2):
            e(f"ds_read_b64_tr_b16 {vr(WF+buf*4+u*2,2)}, v{vStR} offset:{(ch&1)*8192 + s*1024 + u*256}")
        for t3 in range(3):
            base = vXa[s] if ch < 2 else 112+s
            e(f"ds_read_b128 {vr(XF+buf*12+t3*4,4)}, v{base} offset:{(ch&1)*24576 + t3*8192}")
    def stage(ch):
        wait_for(max(wqs[ch], xs[ch]))
        for i in range(8):
            e(f"ds_write_b128 v{vStW}, {ar(128+(ch*8+i)*4,4)} offset:{(ch&1)*8192 + i*256}")
        e("s_waitcnt lgkmcnt(0)")
        e("s_barrier")
    for ch in range(4):
        stage(ch)
        if ch == 0: stamp("x_ready")
        rd_frags(ch*8, 0)
        for s in range(8):
            S_ = ch*8 + s; buf = s & 1
            if s < 7:
                rd_frags(S_+1, buf^1)
                e("s_waitcnt lgkmcnt(5)")
            else:
                e("s_waitcnt lgkmcnt(0)")
            for t3 in range(3):
                cin = "0" if S_ == 0 else vr(ACC+t3*16,16)
                e(f"v_mfma_f32_32x32x16_bf16 {vr(ACC+t3*16,16)}, {vr(WF+buf*4,4)}, {vr(XF+buf*12+t3*4,4)}, {cin}")
                if ch < 2 and t3 != 1: issue(seqs[ch+2], 1)
                if ch == 2 and t3 != 1: k1()
                if ch == 3 and t3 == 0: k1()
        if ch < 2: issue(seqs[ch+2], 99)
        if ch == 1: TAGSEQ[0] = tag_atomic()
    e("s_barrier")
    stamp("qproj_done")
    nop(12)
    for t3 in range(3):
        for t in range(2):
            b0 = ACC + t3*16 + t*8
            for k in range(4):
                e(f"v_cvt_pk_bf16_f32 v{XF+(t3*2+t)*4+k}, v{b0+2*k}, v{b0+2*k+1}")
            e(f"ds_write_b128 v{vQw}, {vr(XF+(t3*2+t)*4,4)} offset:{t3*8192 + t*512}")
    for _ in range(4): k1()
    e("s_waitcnt lgkmcnt(0)")
    e("s_barrier")
    e(f"v_add_u32 v30, {QOFF}, v{vL16}")
    for j in range(6):
        for s in range(4):
            e(f"ds_read_b128 {ar(128+(j*4+s)*4,4)}, v30 offset:{(j*4+s)*1024}")

def xreduce(base, op):
    for sw in ("v_permlane32_swap_b32", "v_permlane16_swap_b32"):
        for j in range(6): e(f"v_mov_b32 v{vTmp+j}, v{base+j}")
        nop(2)
        for j in range(6): e(f"{sw} v{base+j}, v{vTmp+j}")
        nop(2)
        for j in range(6): e(f"{op} v{base+j}, v{base+j}, v{vTmp+j}")
def stat_read(off):
    for j in range(5):
        e(f"ds_read_b128 {vr(vTmp+j*4,4)}, v{vStr} offset:{off + j*256}")
    e(f"ds_read_b128 {vr(vXa[1],4)}, v{vStr} offset:{off + 5*256}")
    e("s_waitcnt lgkmcnt(0)")

def attention():
    for a in range(8):
        wait_for(kseq[a], " lgkmcnt(0)" if a == 0 else "")
        if a == 0: e(f"v_mov_b32 v255, v{vTG}")
        for s in range(4):
            for j in range(6):
                cin = "0" if s == 0 else vr(S(a,j),4)
                e(f"v_mfma_f32_16x16x32_bf16 {vr(S(a,j),4)}, {ar((a*4+s)*4,4)}, {ar(128+(j*4+s)*4,4)}, {cin}")
                if j == 2:
                    if kn[0] < 32: k1()
                    else: v1()
    nop(8)
    stamp("S_done")
    for j in range(6):
        vals = [S(a,j)+i for a in range(8) for i in range(4)]
        e(f"v_max3_f32 v{vM+j}, v{vals[0]}, v{vals[1]}, v{vals[2]}")
        k = 3
        while k + 1 < 32:
            e(f"v_max3_f32 v{vM+j}, v{vM+j}, v{vals[k]}, v{vals[k+1]}"); k += 2
        e(f"v_max_f32 v{vM+j}, v{vM+j}, v{vals[31]}")
    xreduce(vM, "v_max_f32")
    for j in range(6): e(f"ds_write_b32 v{vSt}, v{vM+j} offset:{j*256}")
    e(f"s_cmp_lg_u32 s{sW}, 0")
    e("s_cbranch_scc1 L_notag2")
    e(f"v_readfirstlane_b32 s{sT0}, v255")
    e(f"s_cmp_eq_u32 s{sT0}, 0")
    e(f"s_cselect_b32 s{sT0}, s{sTAG}, s{sT0}")
    e(f"v_mov_b32 v30, s{sT0}")
    e(f"v_mov_b32 v31, {MAXOFF + 1536}")
    e("ds_write_b32 v31, v30")
    lab("L_notag2")
    e("s_waitcnt lgkmcnt(0)")
    e("s_barrier")
    e(f"v_mov_b32 v31, {MAXOFF + 1536}")
    e("ds_read_b32 v30, v31")
    stat_read(0)
    e(f"v_readfirstlane_b32 s{sTAG}, v30")
    for j in range(6):
        b0 = vTmp + j*4 if j < 5 else vXa[1]
        e(f"v_max3_f32 v{vM+j}, v{b0}, v{b0+1}, v{b0+2}")
        e(f"v_max_f32 v{vM+j}, v{vM+j}, v{b0+3}")
        e(f"v_mul_f32 v{vM+j}, s{sC}, v{vM+j}")
    for j in range(6):
        for s in range(4):
            regs8 = [S(2*s,j)+i for i in range(4)] + [S(2*s+1,j)+i for i in range(4)]
            for r in regs8: e(f"v_fma_f32 v{r}, v{r}, s{sC}, -v{vM+j}")
            if vn[0] < 32: v1()
            else: w1()
            for r in regs8: e(f"v_exp_f32 v{r}, v{r}")
            if WS2: w1()
            e("s_nop 0")
            if s == 0:
                e(f"v_add_f32 v{vLs+j}, v{regs8[0]}, v{regs8[1]}"); rest = regs8[2:]
            else: rest = regs8
            for r in rest: e(f"v_add_f32 v{vLs+j}, v{vLs+j}, v{r}")
            for k in range(4):
                e(f"v_cvt_pk_bf16_f32 v{S(2*s,j)+k}, v{regs8[2*k]}, v{regs8[2*k+1]}")
    xreduce(vLs, "v_add_f32")
    for j in range(6): e(f"ds_write_b32 v{vSt}, v{vLs+j} offset:{SUMOFF - MAXOFF + j*256}")
    e("s_waitcnt lgkmcnt(0)")
    e("s_barrier")
    stat_read(SUMOFF - MAXOFF)
    for j in range(6):
        b0 = vTmp + j*4 if j < 5 else vXa[1]
        e(f"v_add_f32 v{vLs+j}, v{b0}, v{b0+1}")
        e(f"v_add_f32 v{b0+2}, v{b0+2}, v{b0+3}")
        e(f"v_add_f32 v{vLs+j}, v{vLs+j}, v{b0+2}")
        e(f"v_rcp_f32 v{vLs+j}, v{vLs+j}")
    stamp("softmax_done")
    def vfr(hf, s, buf):
        for g4 in range(4):
            for u in range(2):
                e(f"ds_read_b64_tr_b16 {ar(VA+buf*16+g4*4+2*u,2)}, v{vVr[g4]} offset:{hf*16384 + s*4096 + u*2048}")
    def phase(hf, cinit):
        wait_for(vseq[(hf,0)])
        vfr(hf, 0, 0)
        for s in range(4):
            if s < 3:
                wait_for(vseq[(hf,s+1)])
                if s == 2 and hf == 1: stamp("V3_ready")
                vfr(hf, s+1, (s+1)&1); e("s_waitcnt lgkmcnt(8)")
            else: e("s_waitcnt lgkmcnt(0)")
            for g4 in range(4):
                for j in range(6):
                    d = ACCT(g4*6 + j)
                    cin = "0" if (s == 0 and not (cinit and g4 >= 2)) else vr(d,4)
                    e(f"v_mfma_f32_16x16x32_bf16 {vr(d,4)}, {ar(VA+(s&1)*16+g4*4,4)}, {vr(S(2*s,j),4)}, {cin}")
                    if j == 2 and hf == 0: w1()
    c("PV phase I: groups w^3 (tiles 0..11), w^2 (tiles 12..23)")
    phase(0, False)
    nop(4)
    for tt in range(24):
        if tt < 16: e(f"ds_write_b128 v{vSl[0]}, {vr(ACCT(tt),4)} offset:{tt*1024}")
        else: e(f"ds_write_b128 v{vSl[1]}, {vr(ACCT(tt),4)} offset:{(tt-16)*1024}")
    e("s_waitcnt lgkmcnt(0)")
    e("s_barrier")
    c("own group init = partial(w^3 tiles 0..11) + partial(w^2 tiles 12..23)")
    for t in range(12):
        e(f"ds_read_b128 {vr(ACCT(12+t),4)}, v{vSr[0]} offset:{t*1024}")
        if t < 4: e(f"ds_read_b128 {vr(ACCT(t),4)}, v{vSr[1]} offset:{(12+t)*1024}")
        else: e(f"ds_read_b128 {vr(ACCT(t),4)}, v{vSr[2]} offset:{(t-4)*1024}")
    e("s_waitcnt lgkmcnt(0)")
    for t in range(12):
        for i in range(4): e(f"v_add_f32 v{ACCT(12+t)+i}, v{ACCT(12+t)+i}, v{ACCT(t)+i}")
    nop(2)
    c("PV phase II: groups w^1 (tiles 0..11, C=0), w (tiles 12..23)")
    phase(1, True)
    nop(4)
    for t in range(12):
        e(f"ds_write_b128 v{vSl[0]}, {vr(ACCT(t),4)} offset:{16384 + t*1024}")
    e("s_waitcnt lgkmcnt(0)")
    e("s_barrier")
    for t in range(12):
        e(f"ds_read_b128 {vr(ACCT(t),4)}, v{vSr[3]} offset:{16384 + t*1024}")
    e("s_waitcnt lgkmcnt(0)")
    for t in range(12):
        for i in range(4): e(f"v_add_f32 v{ACCT(12+t)+i}, v{ACCT(12+t)+i}, v{ACCT(t)+i}")
VA = 192
def ACCT(tt): return S(1 + 2*(tt//6), tt%6)
def poll_loop(lbl):
    e(f"s_mov_b32 s{sCNT}, 0")
    lab(lbl)
    e(f"buffer_load_dword v30, v31, {srd(SWS)}, s{sT0} offen sc1")
    e("s_waitcnt vmcnt(0)")
    e(f"v_cmp_ne_u32 vcc, s{sTAG}, v30")
    e(f"s_add_u32 s{sCNT}, s{sCNT}, 1")
    e("s_nop 3")
    e(f"s_cbranch_vccz {lbl}_done")
    e("s_sleep 2")
    e(f"s_cmp_lt_u32 s{sCNT}, 200000")
    e(f"s_cbranch_scc1 {lbl}")
    lab(lbl + "_done")
def flag_store():
    e(f"v_mov_b32 v30, s{sTAG}")
    e("v_mov_b32 v31, 0")
    e("s_mov_b64 exec, 1")
    e(f"buffer_store_dword v30, v31, {srd(SWS)}, s{sT0} offen sc1")
    e("s_mov_b64 exec, -1")
def outproj_g():
    f1p = [f"s_lshr_b32 s{sT0}, s{sH}, 4", f"s_lshl_b32 s{sT1}, s{sB}, 1", f"s_add_u32 s{sT0}, s{sT0}, s{sT1}", f"s_lshl_b32 s{sT0}, s{sT0}, 2"]
    f1c = [f"s_lshl_b32 s{sT1}, s{sB2}, 1", f"s_add_u32 s{sT0}, s{sKH}, s{sT1}", f"s_lshl_b32 s{sT0}, s{sT0}, 2"]
    c("normalize, pack, store O frags")
    e(f"s_lshl_b32 s{sT0}, s{sB}, 5")
    e(f"s_add_u32 s{sT0}, s{sT0}, s{sH}")
    e(f"s_lshl_b32 s{sT0}, s{sT0}, 2")
    e(f"s_add_u32 s{sT0}, s{sT0}, s{sW}")
    e(f"s_mul_i32 s{sT0}, s{sT0}, 6144")
    for j in range(6):
        for j2 in range(2):
            b0 = ACCT(12+j2*6+j)
            for i in range(4): e(f"v_mul_f32 v{b0+i}, v{b0+i}, v{vLs+j}")
        d = ACCT(j)
        for j2 in range(2):
            b0 = ACCT(12+j2*6+j)
            e(f"v_cvt_pk_bf16_f32 v{d+2*j2}, v{b0}, v{b0+1}")
            e(f"v_cvt_pk_bf16_f32 v{d+2*j2+1}, v{b0+2}, v{b0+3}")
        if j == 4: e(f"s_add_u32 s{sT0}, s{sT0}, 4096")
        vm(f"buffer_store_dwordx4 {vr(d,4)}, v{vL16}, {srd(SWS)}, s{sT0} offen offset:{(j%4)*1024} sc1")
    e("s_waitcnt vmcnt(0)")
    e("s_barrier")
    stamp("O_stored")
    e(f"s_cmp_lg_u32 s{sW}, 0")
    e("s_cbranch_scc1 L_sig1")
    e(f"s_lshr_b32 s{sT0}, s{sH}, 4")
    e(f"s_lshl_b32 s{sT1}, s{sB}, 1")
    e(f"s_add_u32 s{sT0}, s{sT0}, s{sT1}")
    e(f"s_lshl_b32 s{sT0}, s{sT0}, 7")
    e(f"s_and_b32 s{sT1}, s{sH}, 15")
    e(f"s_lshl_b32 s{sT1}, s{sT1}, 2")
    e(f"s_add_u32 s{sT0}, s{sT0}, s{sT1}")
    e(f"s_add_u32 s{sT0}, s{sT0}, {FOFF}")
    flag_store()
    lab("L_sig1")
    WCAP[0] = 64
    while wn[0] < 64: w1()
    c("transpose wo via own 32K LDS region; write addr = w*32768 + (lane ^ (2*((lane>>4)&3)))*16")
    e("v_lshrrev_b32 v30, 4, v1")
    e("v_lshlrev_b32 v30, 1, v30")
    e("v_xor_b32 v30, v30, v1")
    e(f"v_lshl_add_u32 v{vWo}, v30, 4, s{sVl}")
    c("blk-ordered read bases: v3..v6 = base0 ^ jj*32")
    e(f"s_and_b32 s{sT1}, s{sW}, 1")
    e(f"s_lshl_b32 s{sT1}, s{sT1}, 6")
    e(f"v_xor_b32 v3, s{sT1}, v{vVr[2]}")
    e("v_xor_b32 v4, 32, v3"); e("v_xor_b32 v5, 64, v3"); e("v_xor_b32 v6, 0x60, v3")
    def FRG(ks, jj): return WR(ks*4 + jj)
    def wo_tr(half):
        for i in range(32):
            e(f"ds_write_b128 v{vWo}, {ar(WR(half*32+i),4)} offset:{i*1024}")
        e("s_waitcnt lgkmcnt(0)")
        for ks in range(8):
            for jj in range(4):
                for u in range(2):
                    e(f"ds_read_b64_tr_b16 {ar(FRG(half*8+ks,jj)+u*2,2)}, v{3+jj} offset:{ks*4096 + u*2048}")
        e("s_waitcnt lgkmcnt(0)")
    wo_tr(0)
    e("s_waitcnt vmcnt(0)")
    e(f"s_cmp_lg_u32 s{sW}, 0")
    e("s_cbranch_scc1 L_poll1_done")
    e(f"s_lshl_b32 s{sT0}, s{sB2}, 1")
    e(f"s_add_u32 s{sT0}, s{sT0}, s{sKH}")
    e(f"s_lshl_b32 s{sT0}, s{sT0}, 7")
    e(f"s_add_u32 s{sT0}, s{sT0}, {FOFF}")
    e("v_and_b32 v31, 15, v1")
    e("v_lshlrev_b32 v31, 2, v31")
    poll_loop("L_poll1")
    e("s_barrier")
    stamp("poll_done")
    e(f"s_lshl_b32 s{sOB}, s{sB2}, 5")
    e(f"s_lshl_b32 s{sT0}, s{sKH}, 4")
    e(f"s_add_u32 s{sOB}, s{sOB}, s{sT0}")
    e(f"s_lshl_b32 s{sT0}, s{sW}, 2")
    e(f"s_add_u32 s{sOB}, s{sOB}, s{sT0}")
    e(f"s_mul_i32 s{sOB}, s{sOB}, 24576")
    e(f"s_mul_i32 s{sT0}, s{sQH}, 3072")
    e(f"s_add_u32 s{sOB}, s{sOB}, s{sT0}")
    OA = 200; oseq = {}; RING = 14
    def oload(ks):
        e(f"s_add_u32 s{sT0}, s{sOB}, {ks*6144}")
        for jq in range(3):
            oseq[ks] = vm(f"buffer_load_dwordx4 {vr(32 + ((ks%RING)*3+jq)*4,4)}, v{vL16}, {srd(SWS)}, s{sT0} offen offset:{jq*1024} sc1")
    for ks in range(RING): oload(ks)
    wo_tr(1)
    for ks in range(16):
        wait_for(oseq[ks])
        for jq in range(3):
            for jj in range(4):
                d = OA + (jj*3+jq)*4
                cin = "0" if ks == 0 else vr(d,4)
                e(f"v_mfma_f32_16x16x32_bf16 {vr(d,4)}, {ar(FRG(ks,jj),4)}, {vr(32+((ks%RING)*3+jq)*4,4)}, {cin}")
        if ks + RING < 16: oload(ks+RING)
    nop(8)
    stamp("oproj_done")
    c("cross-wave reduce: wave w sums n16 tile jj=w (3 q tiles)")
    e(f"s_mul_i32 s{sT1}, s{sW}, 12288")
    e(f"v_add_u32 v30, s{sT1}, v{vL16}")
    e("s_barrier")
    for t in range(12):
        e(f"ds_write_b128 v30, {vr(OA+t*4,4)} offset:{t*1024}")
    e("s_waitcnt lgkmcnt(0)")
    e("s_barrier")
    e(f"s_mul_i32 s{sT1}, s{sW}, 3072")
    e(f"v_add_u32 v30, s{sT1}, v{vL16}")
    for ww in range(4):
        for jq in range(3):
            e(f"ds_read_b128 {vr(32+(ww*3+jq)*4,4)}, v30 offset:{ww*12288 + jq*1024}")
    e("s_waitcnt lgkmcnt(0)")
    for r in range(12):
        e(f"v_add_f32 v{32+r}, v{32+r}, v{44+r}")
        e(f"v_add_f32 v{56+r}, v{56+r}, v{68+r}")
        e(f"v_add_f32 v{32+r}, v{32+r}, v{56+r}")
    c("waves with (w>>1) != kh send their tile to the partner; others receive")
    e(f"s_lshr_b32 s{sT0}, s{sW}, 1")
    e(f"s_and_b32 s{sT2}, s{sW}, 1")
    e(f"s_mul_i32 s{sT2}, s{sT2}, 3072")
    e(f"s_cmp_eq_u32 s{sT0}, s{sKH}")
    e("s_cbranch_scc1 L_recv")
    e(f"s_mul_i32 s{sT1}, s2, 6144")
    e(f"s_add_u32 s{sT1}, s{sT1}, s{sT2}")
    e(f"s_add_u32 s{sT1}, s{sT1}, {POFF}")
    for jq in range(3):
        e(f"buffer_store_dwordx4 {vr(32+jq*4,4)}, v{vL16}, {srd(SWS)}, s{sT1} offen offset:{jq*1024} sc1")
    e("s_waitcnt vmcnt(0)")
    e(f"s_lshl_b32 s{sT0}, s2, 1")
    e(f"s_and_b32 s{sT1}, s{sW}, 1")
    e(f"s_add_u32 s{sT0}, s{sT0}, s{sT1}")
    e(f"s_lshl_b32 s{sT0}, s{sT0}, 6")
    e(f"s_add_u32 s{sT0}, s{sT0}, {FOFF + 4096}")
    flag_store()
    e("s_branch L_fin")
    lab("L_recv")
    e(f"s_xor_b32 s{sT3}, s2, 1")
    e(f"s_lshl_b32 s{sT0}, s{sT3}, 1")
    e(f"s_and_b32 s{sT1}, s{sW}, 1")
    e(f"s_add_u32 s{sT0}, s{sT0}, s{sT1}")
    e(f"s_lshl_b32 s{sT0}, s{sT0}, 6")
    e(f"s_add_u32 s{sT0}, s{sT0}, {FOFF + 4096}")
    e("v_mov_b32 v31, 0")
    poll_loop("L_poll2")
    e(f"s_mul_i32 s{sT1}, s{sT3}, 6144")
    e(f"s_add_u32 s{sT1}, s{sT1}, s{sT2}")
    e(f"s_add_u32 s{sT1}, s{sT1}, {POFF}")
    for jq in range(3):
        e(f"buffer_load_dwordx4 {vr(44+jq*4,4)}, v{vL16}, {srd(SWS)}, s{sT1} offen offset:{jq*1024} sc1")
    c("out offset = ((b2*96 + 48qh + 16jq + q)*512 + 64ct + 16w + 4g')*2")
    e(f"s_mul_i32 s{sT0}, s{sB2}, 96")
    e(f"s_mul_i32 s{sT1}, s{sQH}, 48")
    e(f"s_add_u32 s{sT0}, s{sT0}, s{sT1}")
    e(f"s_lshl_b32 s{sT0}, s{sT0}, 10")
    e(f"s_lshl_b32 s{sT1}, s{sCT}, 7")
    e(f"s_add_u32 s{sT0}, s{sT0}, s{sT1}")
    e(f"s_lshl_b32 s{sT1}, s{sW}, 5")
    e(f"s_add_u32 s{sT0}, s{sT0}, s{sT1}")
    e("v_and_b32 v31, 15, v1")
    e("v_lshlrev_b32 v31, 10, v31")
    e("v_lshrrev_b32 v2, 4, v1")
    e("v_lshl_add_u32 v31, v2, 3, v31")
    e("s_waitcnt vmcnt(0)")
    for jq in range(3):
        for i in range(4): e(f"v_add_f32 v{32+jq*4+i}, v{32+jq*4+i}, v{44+jq*4+i}")
        e(f"v_cvt_pk_bf16_f32 v{64+jq*2}, v{32+jq*4}, v{33+jq*4}")
        e(f"v_cvt_pk_bf16_f32 v{65+jq*2}, v{34+jq*4}, v{35+jq*4}")
        e(f"buffer_store_dwordx2 {vr(64+jq*2,2)}, v31, {srd(SOUT)}, s{sT0} offen")
        e(f"s_add_u32 s{sT0}, s{sT0}, 16384")
    lab("L_fin")

prologue(); qproj(); attention(); outproj_g()
stamp("end"); stamp_dump()
lab("L_end"); e("s_endpgm")
hdr = open("cdna_kernels/%s.s.ref" % NAME).read().split("; @launch")[0]
out = hdr + "; @launch grid=(256,1,1) block=(256,1,1) lds=163840\n"
out += f""".amdgcn_target "amdgcn-amd-amdhsa--gfx950"
.text
.globl {NAME}_kernel
.p2align 8
.type {NAME}_kernel,@function
{NAME}_kernel:
""" + "\n".join(L) + f"""
.section .rodata,"a"
.p2align 6
.amdhsa_kernel {NAME}_kernel
  .amdhsa_next_free_vgpr 512
  .amdhsa_next_free_sgpr 102
  .amdhsa_accum_offset 256
  .amdhsa_group_segment_fixed_size 0
  .amdhsa_kernarg_size 64
  .amdhsa_user_sgpr_count 2
  .amdhsa_user_sgpr_kernarg_segment_ptr 1
  .amdhsa_system_sgpr_workgroup_id_x 1
.end_amdhsa_kernel
"""
dst = sys.argv[1] if len(sys.argv) > 1 else "cdna_kernels/%s.s" % NAME
open(dst, "w").write(out)
print("wrote", dst, len(L), "lines")
```

```python
import sys, os
L = []
def e(s): L.append("    " + s)
def lab(s): L.append(s + ":")
def c(s): L.append("    ; " + s)
def nop(n):
    while n > 0:
        k = min(n, 16); e(f"s_nop {k-1}"); n -= k
NAME = "standalone__gqa_block_cached__near_ridge"
STAMP = os.environ.get("STAMP")
VPRE = int(os.environ.get("VPRE", "4"))
NT = os.environ.get("NT", " nt")
K1 = int(os.environ.get("K1", "12"))
K2 = int(os.environ.get("K2", "12"))
K3 = int(os.environ.get("K3", "16"))
VS = int(os.environ.get("VS", "2"))
WP = int(os.environ.get("WP", "8"))
ROT = int(os.environ.get("ROT", "1"))
WE = int(os.environ.get("WE", "16"))
WS2 = int(os.environ.get("WS2", "0"))
KPRE = int(os.environ.get("KPRE", "4"))
XOFF = 0; STG = 98304; QOFF = 131072; EXTRA = 131072
MAXOFF = 155648; SUMOFF = 160*1024 - 2048
SX, SK, SV, SWQ, SWO, SOUT, SWS, SDBG = 8, 12, 16, 20, 24, 28, 32, 36
sW, sB, sH, sT0, sT1, sT2, sT3 = 40, 41, 42, 43, 44, 45, 46
sKV, sXB, sC, sB2, sQH, sCT, sOB, sWN, sCNT = 47, 48, 49, 50, 51, 52, 53, 54, 55
sVb, sVl, sWo = 56, 57, 58
sKH = 5
sROT = 4; sR1 = 7; sXc = 63; sWc = 64; sWk = 65
sXm, sXs, sWq = 59, 60, 61
POFF = 0x800000
FOFF = 0xA00000
sTAG = 6
vTG = 122
def srd(r): return f"s[{r}:{r+3}]"
vKo = 2; vXo = [31]; vWq = 7; vL16 = 8; vStW = 9; vStR = 10
vXa = list(range(11,19)); vQw = 19; vVo = 20; vVr = [21,22,23,24]; vSl = [25,26]; vSr = [3,4,5,6]
vSt = 27; vStr = 28; vWo = 29
def S(a,j): return 32 + (a*6+j)*4
vM = 224; vLs = 230; vTmp = 236
def vr(b,n): return f"v[{b}:{b+n-1}]"
def ar(b,n): return f"a[{b}:{b+n-1}]"
stamps = []
def stamp(name):
    if STAMP is None: return
    if os.environ.get("FINE") and name in ("softmax_done","V3_ready","O_stored","poll_done","oproj_done"): return
    k = len(stamps); stamps.append(name)
    e(f"s_memrealtime s[{74+2*k}:{75+2*k}]")
    e("s_waitcnt lgkmcnt(0)")
def stamp_dump():
    if STAMP is None: return
    e(f"s_cmp_lg_u32 s{sW}, 0")
    e("s_cbranch_scc1 L_end")
    e("s_mov_b64 exec, 1")
    e(f"s_mov_b32 s{SWS+2}, 0x2000000")
    e(f"s_lshl_b32 s{sT1}, s2, 6")
    e(f"s_add_u32 s{sT1}, s{sT1}, 0x1800000")
    for k in range(len(stamps)):
        e(f"v_mov_b32 v30, s{74+2*k}")
        e(f"v_mov_b32 v31, {k*4}")
        e(f"buffer_store_dword v30, v31, {srd(SWS)}, s{sT1} offen")
        e("s_nop 1")
    L.append("; STAMPS " + ",".join(stamps))

class VM:
    n = 0
def vm(s):
    e(s); VM.n += 1; return VM.n
def wait_for(seq, extra=""):
    k = min(63, VM.n - seq)
    e(f"s_waitcnt vmcnt({k}){extra}")

def prologue():
    e("s_cmp_ge_u32 s2, 256")
    e("s_cbranch_scc1 L_end")
    stamp("start")
    e("s_load_dwordx16 s[56:71], s[0:1], 0")
    e("s_memrealtime s[6:7]")
    e("v_and_b32 v1, 63, v0")
    e("v_lshrrev_b32 v30, 6, v0")
    e("s_nop 0")
    e(f"v_readfirstlane_b32 s{sW}, v30")
    e(f"s_and_b32 s{sT0}, s2, 7")
    e(f"s_lshr_b32 s{sT1}, s2, 3")
    e(f"s_and_b32 s{sT2}, s{sT1}, 3")
    e(f"s_lshl_b32 s{sH}, s{sT0}, 2")
    e(f"s_add_u32 s{sH}, s{sH}, s{sT2}")
    e(f"s_lshr_b32 s{sB}, s{sT1}, 2")
    e(f"s_and_b32 s{sKH}, s{sT0}, 1")
    e(f"s_andn2_b32 s{sB2}, s{sT0}, 1")
    e(f"s_lshr_b32 s{sT3}, s{sT2}, 1")
    e(f"s_add_u32 s{sB2}, s{sB2}, s{sT3}")
    e(f"s_and_b32 s{sQH}, s{sT2}, 1")
    e(f"s_mov_b32 s{sCT}, s{sB}")
    e(f"s_lshl_b32 s{sROT}, s{sT2}, 1")
    e(f"s_add_u32 s{sROT}, s{sROT}, s{sCT}")
    e(f"s_lshl_b32 s{sROT}, s{sROT}, 1")
    e(f"s_and_b32 s{sROT}, s{sROT}, 15")
    e(f"s_lshl_b32 s{sKV}, s{sB}, 5")
    e(f"s_add_u32 s{sKV}, s{sKV}, s{sH}")
    e(f"s_lshl_b32 s{sKV}, s{sKV}, 17")
    e(f"s_lshl_b32 s{sT3}, s{sW}, 15")
    e(f"s_add_u32 s{sKV}, s{sKV}, s{sT3}")
    e(f"s_mul_i32 s{sXB}, s{sB}, 98304")
    e(f"s_add_u32 s{sWN}, s{sW}, 1")
    e(f"s_and_b32 s{sWN}, s{sWN}, 3")
    e(f"s_mov_b32 s{sC}, 0x3e0293ee")
    e("v_and_b32 v30, 15, v1")
    e("v_lshrrev_b32 v31, 4, v1")
    e(f"v_lshlrev_b32 v{vKo}, 8, v30")
    e(f"v_lshl_add_u32 v{vKo}, v31, 4, v{vKo}")
    e(f"v_lshlrev_b32 v{vL16}, 4, v1")
    e("s_waitcnt lgkmcnt(0)")
    e(f"s_or_b32 s{sTAG}, s{sTAG}, 1")
    e(f"s_add_u32 s{sR1}, s{sB}, s{sH}")
    sizes = [786432, 33554432, 33554432, 4194304, 4194304, 786432, 256, FOFF + 0x10000]
    regs = [SX, SK, SV, SWQ, SWO, SOUT, SDBG, SWS]
    for i,(r,sz) in enumerate(zip(regs,sizes)):
        e(f"s_mov_b32 s{r}, s{56+2*i}")
        e(f"s_and_b32 s{r+1}, s{57+2*i}, 0xffff")
        e(f"s_mov_b32 s{r+2}, {sz}")
        e(f"s_mov_b32 s{r+3}, 0x00020000")

kseq = {}; kn = [0]; TAGSEQ = [0]
def k1():
    if kn[0] >= 32: return
    a, s_ = kn[0]//4, kn[0]%4; kn[0] += 1
    if s_ == 0: e(f"s_add_u32 s{sCNT}, s{sKV}, {a*4096}")
    kseq[a] = vm(f"buffer_load_dwordx4 {ar((a*4+s_)*4,4)}, v{vKo}, {srd(SK)}, s{sCNT} offen offset:{s_*64}{NT}")
vseq = {}; vn = [0]
def v1():
    if vn[0] >= 32: return
    hf, i = vn[0]//16, vn[0]%16; vn[0] += 1
    if i == 0:
        e(f"s_lshr_b32 s{sVb}, s{sW}, 1")
        if hf == 0: e(f"s_xor_b32 s{sVb}, s{sVb}, 1")
        e(f"s_lshl_b32 s{sVb}, s{sVb}, 7")
        e(f"s_add_u32 s{sVb}, s{sVb}, s{sKV}")
    e(f"s_add_u32 m0, s{sVl}, {hf*16384 + i*1024}")
    e(f"s_add_u32 s{sCNT}, s{sVb}, {i*2048}")
    vseq[(hf,i//4)] = vm(f"buffer_load_dwordx4 v{vVo}, {srd(SV)}, s{sCNT} offen{NT} lds")
wn = [0]; WCAP = [56]; WSEQ = {}
def WR(i): return 224 + 4*i if i < 8 else 4*(i-8)
def w1():
    if wn[0] >= WCAP[0]: return
    i = wn[0]; wn[0] += 1
    if i % 4 == 0:
        e(f"s_add_u32 s{sWk}, s{sROT}, {i//4}")
        e(f"s_and_b32 s{sWk}, s{sWk}, 15")
        e(f"s_lshl_b32 s{sWk}, s{sWk}, 15")
        e(f"s_add_u32 s{sWk}, s{sWk}, s{sWo}")
    else: e(f"s_add_u32 s{sWk}, s{sWk}, 8192")
    WSEQ[i] = vm(f"buffer_load_dwordx4 {ar(WR(i),4)}, v{vWo}, {srd(SWO)}, s{sWk} offen")

def addr_setup():
    e(f"s_lshl_b32 s{sT1}, s{sW}, 14")
    e(f"s_add_u32 s{sT1}, s{sT1}, {STG}")
    c("staging write: cg*16384 + (32w + i/16)*64 + (i%4)*16")
    e("v_bfe_u32 v30, v1, 2, 2")
    e(f"v_lshlrev_b32 v{vStW}, 14, v30")
    e("v_lshrrev_b32 v30, 4, v1")
    e(f"v_lshl_add_u32 v{vStW}, v30, 6, v{vStW}")
    e("v_and_b32 v30, 3, v1")
    e(f"v_lshl_add_u32 v{vStW}, v30, 4, v{vStW}")
    e(f"s_lshl_b32 s{sT2}, s{sW}, 11")
    e(f"s_add_u32 s{sT2}, s{sT2}, {STG}")
    e(f"v_add_u32 v{vStW}, s{sT2}, v{vStW}")
    e("v_lshrrev_b32 v30, 5, v1")
    e("v_lshlrev_b32 v30, 3, v30")
    e("v_bfe_u32 v31, v1, 2, 2")
    e("v_add_u32 v30, v30, v31")
    e(f"v_lshlrev_b32 v{vStR}, 6, v30")
    e("v_bfe_u32 v30, v1, 4, 1")
    e(f"v_lshl_add_u32 v{vStR}, v30, 5, v{vStR}")
    e("v_and_b32 v30, 1, v1")
    e(f"v_lshl_add_u32 v{vStR}, v30, 4, v{vStR}")
    e("v_bfe_u32 v30, v1, 1, 1")
    e(f"v_lshl_add_u32 v{vStR}, v30, 3, v{vStR}")
    e(f"v_add_u32 v{vStR}, s{sT1}, v{vStR}")
    e("v_and_b32 v30, 31, v1")
    e("v_lshlrev_b32 v30, 8, v30")
    e("v_lshrrev_b32 v31, 5, v1")
    for lo in range(8):
        e(f"v_add_u32 v{vXa[lo]}, {2*lo}, v31")
        e(f"v_xor_b32 v{vXa[lo]}, v{vXa[lo]}, v1")
        e(f"v_and_b32 v{vXa[lo]}, 15, v{vXa[lo]}")
        e(f"v_lshl_add_u32 v{vXa[lo]}, v{vXa[lo]}, 4, v30")
        e(f"v_add_u32 v{112+lo}, 0xc000, v{vXa[lo]}")
    e("v_bfe_u32 v30, v1, 4, 1")
    e(f"v_lshlrev_b32 v{vQw}, 12, v30")
    e("v_and_b32 v30, 15, v1")
    e(f"v_lshl_add_u32 v{vQw}, v30, 4, v{vQw}")
    e("v_lshrrev_b32 v30, 5, v1")
    e(f"v_lshl_add_u32 v{vQw}, v30, 8, v{vQw}")
    e(f"s_lshl_b32 s{sT1}, s{sW}, 10")
    e(f"s_add_u32 s{sT1}, s{sT1}, {QOFF}")
    e(f"v_add_u32 v{vQw}, s{sT1}, v{vQw}")
    c("V dma: (i/8)*256 + (((i%8)/2 ^ ((i/16)&3))*2 + (i&1))*16 ; wo: (i/8)*1024 + (i%8)*16")
    e("v_lshrrev_b32 v30, 4, v1")
    e("v_lshlrev_b32 v30, 1, v30")
    e("v_xor_b32 v30, v30, v1")
    e("v_and_b32 v30, 7, v30")
    e("v_lshrrev_b32 v120, 3, v1")
    e(f"v_lshlrev_b32 v{vVo}, 8, v120")
    e(f"v_lshl_add_u32 v{vVo}, v30, 4, v{vVo}")
    e("v_and_b32 v30, 7, v1")
    e(f"v_lshlrev_b32 v{vWo}, 10, v120")
    e(f"v_lshl_add_u32 v{vWo}, v30, 4, v{vWo}")
    c("tr read base0: w*32768 + (lane>>2)*128 + (((lane>>3)&3)*32) + (lane&3)*8 ; blk b -> ^ b*32")
    e("v_lshrrev_b32 v30, 2, v1")
    e(f"v_lshlrev_b32 v{vVr[0]}, 7, v30")
    e("v_bfe_u32 v30, v1, 3, 2")
    e(f"v_lshl_add_u32 v{vVr[0]}, v30, 5, v{vVr[0]}")
    e("v_and_b32 v30, 3, v1")
    e(f"v_lshl_add_u32 v{vVr[0]}, v30, 3, v{vVr[0]}")
    e(f"s_lshl_b32 s{sVl}, s{sW}, 15")
    e(f"v_add_u32 v{vVr[0]}, s{sVl}, v{vVr[0]}")
    c("vVr[0..1]: group w^1|w^3 parity (blk 2*((w&1)^1)+j2); vVr[2..3]: own parity")
    e(f"s_and_b32 s{sT1}, s{sW}, 1")
    e(f"s_lshl_b32 s{sT1}, s{sT1}, 6")
    e(f"v_xor_b32 v{vVr[2]}, s{sT1}, v{vVr[0]}")
    e(f"v_xor_b32 v{vVr[3]}, 32, v{vVr[2]}")
    e(f"v_xor_b32 v{vVr[0]}, 64, v{vVr[2]}")
    e(f"v_xor_b32 v{vVr[1]}, 64, v{vVr[3]}")
    c("partial slots: own V region + extra")
    e(f"v_add_u32 v{vSl[0]}, s{sVl}, v{vL16}")
    e(f"s_lshl_b32 s{sT1}, s{sW}, 13")
    e(f"s_add_u32 s{sT1}, s{sT1}, {EXTRA}")
    e(f"v_add_u32 v{vSl[1]}, s{sT1}, v{vL16}")
    e(f"v_xor_b32 v{vSr[0]}, 0x18000, v{vSl[0]}")
    e(f"v_xor_b32 v{vSr[1]}, 0x10000, v{vSl[0]}")
    e(f"v_xor_b32 v{vSr[2]}, 0x4000, v{vSl[1]}")
    e(f"v_xor_b32 v{vSr[3]}, 0x8000, v{vSl[0]}")
    c("wo soffset: (kh*2048 + w*512)*1024 + ct*128")
    e(f"s_lshl_b32 s{sWo}, s{sKH}, 2")
    e(f"s_add_u32 s{sWo}, s{sWo}, s{sW}")
    e(f"s_lshl_b32 s{sWo}, s{sWo}, 19")
    e(f"s_lshl_b32 s{sT1}, s{sCT}, 7")
    e(f"s_add_u32 s{sWo}, s{sWo}, s{sT1}")
    e("v_and_b32 v30, 15, v1")
    e(f"v_lshlrev_b32 v{vStr}, 4, v30")
    e(f"v_add_u32 v{vStr}, {MAXOFF}, v{vStr}")
    e(f"s_lshl_b32 s{sT1}, s{sW}, 2")
    e(f"v_add_u32 v{vSt}, s{sT1}, v{vStr}")

ACC = 32; XF = 80; WF = 104
def qproj():
    c("x voffset: (4w+i/16)*1024 + ((i%16)^(4w+i/16))*16")
    e(f"s_lshl_b32 s{sT1}, s{sW}, 2")
    e("v_lshrrev_b32 v30, 4, v1")
    e(f"v_add_u32 v30, s{sT1}, v30")
    e("v_xor_b32 v29, v30, v1")
    e("v_and_b32 v29, 15, v29")
    e(f"v_lshlrev_b32 v{vXo[0]}, 10, v30")
    e(f"v_lshl_add_u32 v{vXo[0]}, v29, 4, v{vXo[0]}")
    e(f"s_lshl_b32 s{sXm}, s{sW}, 10")
    e("v_lshrrev_b32 v30, 4, v1")
    e(f"v_lshlrev_b32 v{vWq}, 13, v30")
    e("v_and_b32 v30, 15, v1")
    e(f"v_lshl_add_u32 v{vWq}, v30, 4, v{vWq}")
    e(f"s_lshl_b32 s{sWq}, s{sH}, 8")
    e(f"s_lshl_b32 s{sT1}, s{sW}, 18")
    e(f"s_add_u32 s{sWq}, s{sWq}, s{sT1}")
    xs = {}; wqs = {}
    def xl(ch, m):
        if m == 0:
            e(f"s_add_u32 s{sXc}, s{sR1}, {ch}")
            e(f"s_and_b32 s{sXc}, s{sXc}, {3 if ROT else 0}" if ROT else f"s_mov_b32 s{sXc}, {ch}")
            e(f"s_lshl_b32 s{sWc}, s{sXc}, 20")
            e(f"s_add_u32 s{sWc}, s{sWc}, s{sWq}")
            e(f"s_lshl_b32 s{sXc}, s{sXc}, 8")
            e(f"s_add_u32 s{sXc}, s{sXc}, s{sXB}")
        e(f"s_add_u32 m0, s{sXm}, {XOFF + ch*24576 + m*4096}")
        e(f"s_add_u32 s{sXs}, s{sXc}, {m*16384}")
        xs[ch] = vm(f"buffer_load_dwordx4 v{vXo[0]}, {srd(SX)}, s{sXs} offen lds")
    def wl(ch, i):
        k = ch*8 + i
        e(f"s_add_u32 s{sXs}, s{sWc}, {i*4*8192}")
        wqs[ch] = vm(f"buffer_load_dwordx4 {ar(128+4*k,4)}, v{vWq}, {srd(SWQ)}, s{sXs} offen")
    seqs = [[(xl,ch,m) for m in range(6)] + [(wl,ch,i) for i in range(8)] for ch in range(4)]
    def issue(q, n):
        for _ in range(n):
            if q: it = q.pop(0); it[0](it[1], it[2])
    c("WG0 wave0 publishes the launch tag")
    e(f"s_or_b32 s{sT0}, s2, s{sW}")
    e(f"s_cmp_lg_u32 s{sT0}, 0")
    e("s_cbranch_scc1 L_notag")
    e(f"v_mov_b32 v{vTG}, s{sTAG}")
    e(f"v_mov_b32 v{vTG+1}, 0")
    e("s_mov_b64 exec, 1")
    e(f"buffer_store_dword v{vTG}, v{vTG+1}, {srd(SDBG)}, 0 offen sc1")
    e("s_mov_b64 exec, -1")
    lab("L_notag")
    issue(seqs[0], 99)
    e(f"v_mov_b32 v121, v{vXo[0]}")
    vXo[0] = 121
    addr_setup()
    issue(seqs[1], 99)
    stamp("issued")
    def rd_frags(S_, buf):
        ch, s = S_//8, S_%8
        for u in range(2):
            e(f"ds_read_b64_tr_b16 {vr(WF+buf*4+u*2,2)}, v{vStR} offset:{(ch&1)*8192 + s*1024 + u*256}")
        for t3 in range(3):
            base = vXa[s] if ch < 2 else 112+s
            e(f"ds_read_b128 {vr(XF+buf*12+t3*4,4)}, v{base} offset:{(ch&1)*24576 + t3*8192}")
    def stage(ch):
        wait_for(max(wqs[ch], xs[ch]))
        for i in range(8):
            e(f"ds_write_b128 v{vStW}, {ar(128+(ch*8+i)*4,4)} offset:{(ch&1)*8192 + i*256}")
        e("s_waitcnt lgkmcnt(0)")
        e("s_barrier")
    for ch in range(4):
        stage(ch)
        if ch == 0: stamp("x_ready")
        elif os.environ.get("FINE"): stamp(f"st{ch}_done")
        rd_frags(ch*8, 0)
        for s in range(8):
            S_ = ch*8 + s; buf = s & 1
            if s < 7:
                rd_frags(S_+1, buf^1)
                e("s_waitcnt lgkmcnt(5)")
            else:
                e("s_waitcnt lgkmcnt(0)")
            for t3 in range(3):
                cin = "0" if S_ == 0 else vr(ACC+t3*16,16)
                e(f"v_mfma_f32_32x32x16_bf16 {vr(ACC+t3*16,16)}, {vr(WF+buf*4,4)}, {vr(XF+buf*12+t3*4,4)}, {cin}")
                if ch == 0: issue(seqs[2] if seqs[2] else seqs[3], 1)
                if ch == 1 and t3 != 1 and kn[0] < K1: k1()
                if ch == 2 and t3 == 0 and kn[0] < K2: k1()
                if ch == 3 and t3 == 0 and kn[0] < K3: k1()
        if ch == 0: issue(seqs[2], 99); issue(seqs[3], 99)
        if ch < 3 and os.environ.get("FINE"): stamp(f"ch{ch}_done")
    e("s_barrier")
    stamp("qproj_done")
    nop(12)
    for t3 in range(3):
        for t in range(2):
            b0 = ACC + t3*16 + t*8
            for k in range(4):
                e(f"v_cvt_pk_bf16_f32 v{XF+(t3*2+t)*4+k}, v{b0+2*k}, v{b0+2*k+1}")
            e(f"ds_write_b128 v{vQw}, {vr(XF+(t3*2+t)*4,4)} offset:{t3*8192 + t*512}")
    for _ in range(4): k1()
    e("s_waitcnt lgkmcnt(0)")
    e("s_barrier")
    e(f"v_add_u32 v30, {QOFF}, v{vL16}")
    for j in range(6):
        for s in range(4):
            e(f"ds_read_b128 {ar(128+(j*4+s)*4,4)}, v30 offset:{(j*4+s)*1024}")

def xreduce(base, op):
    for sw in ("v_permlane32_swap_b32", "v_permlane16_swap_b32"):
        for j in range(6): e(f"v_mov_b32 v{vTmp+j}, v{base+j}")
        nop(2)
        for j in range(6): e(f"{sw} v{base+j}, v{vTmp+j}")
        nop(2)
        for j in range(6): e(f"{op} v{base+j}, v{base+j}, v{vTmp+j}")
def stat_read(off):
    for j in range(5):
        e(f"ds_read_b128 {vr(vTmp+j*4,4)}, v{vStr} offset:{off + j*256}")
    e(f"ds_read_b128 {vr(vXa[1],4)}, v{vStr} offset:{off + 5*256}")
    e("s_waitcnt lgkmcnt(0)")

def attention():
    for a in range(8):
        wait_for(kseq[a], " lgkmcnt(0)" if a == 0 else "")
        if a == 4:
            e("v_mov_b32 v7, 0")
            vm(f"buffer_load_dword v2, v7, {srd(SDBG)}, 0 offen sc1")
        for s in range(4):
            for j in range(6):
                cin = "0" if s == 0 else vr(S(a,j),4)
                e(f"v_mfma_f32_16x16x32_bf16 {vr(S(a,j),4)}, {ar((a*4+s)*4,4)}, {ar(128+(j*4+s)*4,4)}, {cin}")
                if j == 2:
                    if kn[0] < 32: k1()
                    elif s < VS: v1()
                if a > 0 and s in (1,2):
                    p = S(a-1,j) + (s-1)*2
                    if a == 1 and s == 1: e(f"v_max_f32 v{vM+j}, v{p}, v{p+1}")
                    else: e(f"v_max3_f32 v{vM+j}, v{vM+j}, v{p}, v{p+1}")
    nop(8)
    stamp("S_done")
    for j in range(6):
        e(f"v_max3_f32 v{vM+j}, v{vM+j}, v{S(7,j)}, v{S(7,j)+1}")
        e(f"v_max3_f32 v{vM+j}, v{vM+j}, v{S(7,j)+2}, v{S(7,j)+3}")
    xreduce(vM, "v_max_f32")
    for j in range(6): e(f"ds_write_b32 v{vSt}, v{vM+j} offset:{j*256}")
    e("s_waitcnt lgkmcnt(0)")
    e("s_barrier")
    stat_read(0)
    for j in range(6):
        b0 = vTmp + j*4 if j < 5 else vXa[1]
        e(f"v_max3_f32 v{vM+j}, v{b0}, v{b0+1}, v{b0+2}")
        e(f"v_max_f32 v{vM+j}, v{vM+j}, v{b0+3}")
        e(f"v_mul_f32 v{vM+j}, s{sC}, v{vM+j}")
    for j in range(6):
        for s in range(4):
            regs8 = [S(2*s,j)+i for i in range(4)] + [S(2*s+1,j)+i for i in range(4)]
            for r in regs8: e(f"v_fma_f32 v{r}, v{r}, s{sC}, -v{vM+j}")
            v1()
            for r in regs8: e(f"v_exp_f32 v{r}, v{r}")
            if WS2: w1()
            e("s_nop 0")
            if s == 0:
                e(f"v_add_f32 v{vLs+j}, v{regs8[0]}, v{regs8[1]}"); rest = regs8[2:]
            else: rest = regs8
            for r in rest: e(f"v_add_f32 v{vLs+j}, v{vLs+j}, v{r}")
            for k in range(4):
                e(f"v_cvt_pk_bf16_f32 v{S(2*s,j)+k}, v{regs8[2*k]}, v{regs8[2*k+1]}")
    xreduce(vLs, "v_add_f32")
    for j in range(6): e(f"ds_write_b32 v{vSt}, v{vLs+j} offset:{SUMOFF - MAXOFF + j*256}")
    e("s_waitcnt lgkmcnt(0)")
    e("s_barrier")
    stat_read(SUMOFF - MAXOFF)
    for j in range(6):
        b0 = vTmp + j*4 if j < 5 else vXa[1]
        e(f"v_add_f32 v{vLs+j}, v{b0}, v{b0+1}")
        e(f"v_add_f32 v{b0+2}, v{b0+2}, v{b0+3}")
        e(f"v_add_f32 v{vLs+j}, v{vLs+j}, v{b0+2}")
        e(f"v_rcp_f32 v{vLs+j}, v{vLs+j}")
    stamp("softmax_done")
    def vfr(hf, s, buf):
        for g4 in range(4):
            for u in range(2):
                e(f"ds_read_b64_tr_b16 {ar(VA+buf*16+g4*4+2*u,2)}, v{vVr[g4]} offset:{hf*16384 + s*4096 + u*2048}")
    def phase(hf, cinit):
        wait_for(vseq[(hf,0)])
        vfr(hf, 0, 0)
        for s in range(4):
            if s < 3:
                wait_for(vseq[(hf,s+1)])
                if s == 2 and hf == 1: stamp("V3_ready")
                vfr(hf, s+1, (s+1)&1)
                if hf == 1:
                    for _ in range(WP): w1()
                e("s_waitcnt lgkmcnt(8)")
            else: e("s_waitcnt lgkmcnt(0)")
            for g4 in range(4):
                for j in range(6):
                    d = ACCT(g4*6 + j)
                    cin = "0" if (s == 0 and not (cinit and g4 >= 2)) else vr(d,4)
                    e(f"v_mfma_f32_16x16x32_bf16 {vr(d,4)}, {ar(VA+(s&1)*16+g4*4,4)}, {vr(S(2*s,j),4)}, {cin}")
    while vn[0] < 32: v1()
    c("PV phase I: groups w^3 (tiles 0..11), w^2 (tiles 12..23)")
    phase(0, False)
    nop(4)
    for tt in range(24):
        if tt < 16: e(f"ds_write_b128 v{vSl[0]}, {vr(ACCT(tt),4)} offset:{tt*1024}")
        else: e(f"ds_write_b128 v{vSl[1]}, {vr(ACCT(tt),4)} offset:{(tt-16)*1024}")
    e("s_waitcnt lgkmcnt(0)")
    e("s_barrier")
    c("launch tag (fallback: poll until published)")
    e(f"v_readfirstlane_b32 s{sTAG}, v2")
    e(f"s_mov_b32 s{sCNT}, 0")
    lab("L_tagpoll")
    e(f"s_cmp_lg_u32 s{sTAG}, 0")
    e("s_cbranch_scc1 L_tagok")
    e(f"buffer_load_dword v2, v7, {srd(SDBG)}, 0 offen sc1")
    e("s_waitcnt vmcnt(0)")
    e(f"v_readfirstlane_b32 s{sTAG}, v2")
    e(f"s_add_u32 s{sCNT}, s{sCNT}, 1")
    e(f"s_cmp_lt_u32 s{sCNT}, 200000")
    e("s_cbranch_scc1 L_tagpoll")
    lab("L_tagok")
    c("own group init = partial(w^3 tiles 0..11) + partial(w^2 tiles 12..23)")
    for t in range(12):
        e(f"ds_read_b128 {vr(ACCT(12+t),4)}, v{vSr[0]} offset:{t*1024}")
        if t < 4: e(f"ds_read_b128 {vr(ACCT(t),4)}, v{vSr[1]} offset:{(12+t)*1024}")
        else: e(f"ds_read_b128 {vr(ACCT(t),4)}, v{vSr[2]} offset:{(t-4)*1024}")
    e("s_waitcnt lgkmcnt(0)")
    for t in range(12):
        for i in range(4): e(f"v_add_f32 v{ACCT(12+t)+i}, v{ACCT(12+t)+i}, v{ACCT(t)+i}")
    nop(2)
    c("PV phase II: groups w^1 (tiles 0..11, C=0), w (tiles 12..23)")
    phase(1, True)
    nop(4)
    for t in range(12):
        e(f"ds_write_b128 v{vSl[0]}, {vr(ACCT(t),4)} offset:{16384 + t*1024}")
    for _ in range(WE): w1()
    e("s_waitcnt lgkmcnt(0)")
    e("s_barrier")
    for t in range(12):
        e(f"ds_read_b128 {vr(ACCT(t),4)}, v{vSr[3]} offset:{16384 + t*1024}")
    e("s_waitcnt lgkmcnt(0)")
    for t in range(12):
        for i in range(4): e(f"v_add_f32 v{ACCT(12+t)+i}, v{ACCT(12+t)+i}, v{ACCT(t)+i}")
VA = 192
def ACCT(tt): return S(1 + 2*(tt//6), tt%6)
def poll_loop(lbl):
    e(f"s_mov_b32 s{sCNT}, 0")
    lab(lbl)
    e(f"buffer_load_dword v30, v31, {srd(SWS)}, s{sT0} offen sc1")
    e("s_waitcnt vmcnt(0)")
    e(f"v_cmp_ne_u32 vcc, s{sTAG}, v30")
    e(f"s_add_u32 s{sCNT}, s{sCNT}, 1")
    e("s_nop 3")
    e(f"s_cbranch_vccz {lbl}_done")
    e("s_sleep 2")
    e(f"s_cmp_lt_u32 s{sCNT}, 200000")
    e(f"s_cbranch_scc1 {lbl}")
    lab(lbl + "_done")
def flag_store():
    e(f"v_mov_b32 v30, s{sTAG}")
    e("v_mov_b32 v31, 0")
    e("s_mov_b64 exec, 1")
    e(f"buffer_store_dword v30, v31, {srd(SWS)}, s{sT0} offen sc1")
    e("s_mov_b64 exec, -1")
def outproj_g():
    f1p = [f"s_lshr_b32 s{sT0}, s{sH}, 4", f"s_lshl_b32 s{sT1}, s{sB}, 1", f"s_add_u32 s{sT0}, s{sT0}, s{sT1}", f"s_lshl_b32 s{sT0}, s{sT0}, 2"]
    f1c = [f"s_lshl_b32 s{sT1}, s{sB2}, 1", f"s_add_u32 s{sT0}, s{sKH}, s{sT1}", f"s_lshl_b32 s{sT0}, s{sT0}, 2"]
    c("normalize, pack, store O frags")
    e(f"s_lshl_b32 s{sT0}, s{sB}, 5")
    e(f"s_add_u32 s{sT0}, s{sT0}, s{sH}")
    e(f"s_lshl_b32 s{sT0}, s{sT0}, 2")
    e(f"s_add_u32 s{sT0}, s{sT0}, s{sW}")
    e(f"s_mul_i32 s{sT0}, s{sT0}, 6144")
    for j in range(6):
        for j2 in range(2):
            b0 = ACCT(12+j2*6+j)
            for i in range(4): e(f"v_mul_f32 v{b0+i}, v{b0+i}, v{vLs+j}")
        d = ACCT(j)
        for j2 in range(2):
            b0 = ACCT(12+j2*6+j)
            e(f"v_cvt_pk_bf16_f32 v{d+2*j2}, v{b0}, v{b0+1}")
            e(f"v_cvt_pk_bf16_f32 v{d+2*j2+1}, v{b0+2}, v{b0+3}")
        if j == 4: e(f"s_add_u32 s{sT0}, s{sT0}, 4096")
        vm(f"buffer_store_dwordx4 {vr(d,4)}, v{vL16}, {srd(SWS)}, s{sT0} offen offset:{(j%4)*1024} sc1")
    e("s_waitcnt vmcnt(0)")
    e("s_barrier")
    stamp("O_stored")
    e(f"s_cmp_lg_u32 s{sW}, 0")
    e("s_cbranch_scc1 L_sig1")
    e(f"s_lshr_b32 s{sT0}, s{sH}, 4")
    e(f"s_lshl_b32 s{sT1}, s{sB}, 1")
    e(f"s_add_u32 s{sT0}, s{sT0}, s{sT1}")
    e(f"s_lshl_b32 s{sT0}, s{sT0}, 7")
    e(f"s_and_b32 s{sT1}, s{sH}, 15")
    e(f"s_lshl_b32 s{sT1}, s{sT1}, 2")
    e(f"s_add_u32 s{sT0}, s{sT0}, s{sT1}")
    e(f"s_add_u32 s{sT0}, s{sT0}, {FOFF}")
    flag_store()
    lab("L_sig1")
    WCAP[0] = 64
    while wn[0] < 64: w1()
    c("transpose wo via own 32K LDS region; write addr = w*32768 + (lane ^ (2*((lane>>4)&3)))*16")
    e("v_lshrrev_b32 v30, 4, v1")
    e("v_lshlrev_b32 v30, 1, v30")
    e("v_xor_b32 v30, v30, v1")
    e(f"v_lshl_add_u32 v{vWo}, v30, 4, s{sVl}")
    c("blk-ordered read bases: v3..v6 = base0 ^ jj*32")
    e(f"s_and_b32 s{sT1}, s{sW}, 1")
    e(f"s_lshl_b32 s{sT1}, s{sT1}, 6")
    e(f"v_xor_b32 v3, s{sT1}, v{vVr[2]}")
    e("v_xor_b32 v4, 32, v3"); e("v_xor_b32 v5, 64, v3"); e("v_xor_b32 v6, 0x60, v3")
    def FRG(ks, jj): return WR(ks*4 + jj)
    def wo_tr(half):
        for i in range(32):
            e(f"ds_write_b128 v{vWo}, {ar(WR(half*32+i),4)} offset:{i*1024}")
        e("s_waitcnt lgkmcnt(0)")
        for ks in range(8):
            for jj in range(4):
                for u in range(2):
                    e(f"ds_read_b64_tr_b16 {ar(FRG(half*8+ks,jj)+u*2,2)}, v{3+jj} offset:{ks*4096 + u*2048}")
        e("s_waitcnt lgkmcnt(0)")
    wait_for(WSEQ[31])
    wo_tr(0)
    e("s_waitcnt vmcnt(0)")
    e(f"s_cmp_lg_u32 s{sW}, 0")
    e("s_cbranch_scc1 L_poll1_done")
    e(f"s_lshl_b32 s{sT0}, s{sB2}, 1")
    e(f"s_add_u32 s{sT0}, s{sT0}, s{sKH}")
    e(f"s_lshl_b32 s{sT0}, s{sT0}, 7")
    e(f"s_add_u32 s{sT0}, s{sT0}, {FOFF}")
    e("v_and_b32 v31, 15, v1")
    e("v_lshlrev_b32 v31, 2, v31")
    poll_loop("L_poll1")
    e("s_barrier")
    stamp("poll_done")
    e(f"s_lshl_b32 s{sOB}, s{sB2}, 5")
    e(f"s_lshl_b32 s{sT0}, s{sKH}, 4")
    e(f"s_add_u32 s{sOB}, s{sOB}, s{sT0}")
    e(f"s_lshl_b32 s{sT0}, s{sW}, 2")
    e(f"s_add_u32 s{sOB}, s{sOB}, s{sT0}")
    e(f"s_mul_i32 s{sOB}, s{sOB}, 24576")
    e(f"s_mul_i32 s{sT0}, s{sQH}, 3072")
    e(f"s_add_u32 s{sOB}, s{sOB}, s{sT0}")
    OA = 200; oseq = {}; RING = 14
    def oload(ks):
        e(f"s_add_u32 s{sT0}, s{sROT}, {ks}")
        e(f"s_and_b32 s{sT0}, s{sT0}, 15")
        e(f"s_mul_i32 s{sT0}, s{sT0}, 6144")
        e(f"s_add_u32 s{sT0}, s{sT0}, s{sOB}")
        for jq in range(3):
            oseq[ks] = vm(f"buffer_load_dwordx4 {vr(32 + ((ks%RING)*3+jq)*4,4)}, v{vL16}, {srd(SWS)}, s{sT0} offen offset:{jq*1024} sc1")
    for ks in range(RING): oload(ks)
    wo_tr(1)
    for ks in range(16):
        wait_for(oseq[ks])
        for jq in range(3):
            for jj in range(4):
                d = OA + (jj*3+jq)*4
                cin = "0" if ks == 0 else vr(d,4)
                e(f"v_mfma_f32_16x16x32_bf16 {vr(d,4)}, {ar(FRG(ks,jj),4)}, {vr(32+((ks%RING)*3+jq)*4,4)}, {cin}")
        if ks + RING < 16: oload(ks+RING)
    nop(8)
    stamp("oproj_done")
    c("cross-wave reduce: wave w sums n16 tile jj=w (3 q tiles)")
    e(f"s_mul_i32 s{sT1}, s{sW}, 12288")
    e(f"v_add_u32 v30, s{sT1}, v{vL16}")
    e("s_barrier")
    for t in range(12):
        e(f"ds_write_b128 v30, {vr(OA+t*4,4)} offset:{t*1024}")
    e("s_waitcnt lgkmcnt(0)")
    e("s_barrier")
    e(f"s_mul_i32 s{sT1}, s{sW}, 3072")
    e(f"v_add_u32 v30, s{sT1}, v{vL16}")
    for ww in range(4):
        for jq in range(3):
            e(f"ds_read_b128 {vr(32+(ww*3+jq)*4,4)}, v30 offset:{ww*12288 + jq*1024}")
    e("s_waitcnt lgkmcnt(0)")
    for r in range(12):
        e(f"v_add_f32 v{32+r}, v{32+r}, v{44+r}")
        e(f"v_add_f32 v{56+r}, v{56+r}, v{68+r}")
        e(f"v_add_f32 v{32+r}, v{32+r}, v{56+r}")
    c("waves with (w>>1) != kh send their tile to the partner; others receive")
    e(f"s_lshr_b32 s{sT0}, s{sW}, 1")
    e(f"s_and_b32 s{sT2}, s{sW}, 1")
    e(f"s_mul_i32 s{sT2}, s{sT2}, 3072")
    e(f"s_cmp_eq_u32 s{sT0}, s{sKH}")
    e("s_cbranch_scc1 L_recv")
    e(f"s_mul_i32 s{sT1}, s2, 6144")
    e(f"s_add_u32 s{sT1}, s{sT1}, s{sT2}")
    e(f"s_add_u32 s{sT1}, s{sT1}, {POFF}")
    for jq in range(3):
        e(f"buffer_store_dwordx4 {vr(32+jq*4,4)}, v{vL16}, {srd(SWS)}, s{sT1} offen offset:{jq*1024} sc1")
    e("s_waitcnt vmcnt(0)")
    e(f"s_lshl_b32 s{sT0}, s2, 1")
    e(f"s_and_b32 s{sT1}, s{sW}, 1")
    e(f"s_add_u32 s{sT0}, s{sT0}, s{sT1}")
    e(f"s_lshl_b32 s{sT0}, s{sT0}, 6")
    e(f"s_add_u32 s{sT0}, s{sT0}, {FOFF + 4096}")
    flag_store()
    e("s_branch L_fin")
    lab("L_recv")
    e(f"s_xor_b32 s{sT3}, s2, 1")
    e(f"s_lshl_b32 s{sT0}, s{sT3}, 1")
    e(f"s_and_b32 s{sT1}, s{sW}, 1")
    e(f"s_add_u32 s{sT0}, s{sT0}, s{sT1}")
    e(f"s_lshl_b32 s{sT0}, s{sT0}, 6")
    e(f"s_add_u32 s{sT0}, s{sT0}, {FOFF + 4096}")
    e("v_mov_b32 v31, 0")
    poll_loop("L_poll2")
    e(f"s_mul_i32 s{sT1}, s{sT3}, 6144")
    e(f"s_add_u32 s{sT1}, s{sT1}, s{sT2}")
    e(f"s_add_u32 s{sT1}, s{sT1}, {POFF}")
    for jq in range(3):
        e(f"buffer_load_dwordx4 {vr(44+jq*4,4)}, v{vL16}, {srd(SWS)}, s{sT1} offen offset:{jq*1024} sc1")
    c("out offset = ((b2*96 + 48qh + 16jq + q)*512 + 64ct + 16w + 4g')*2")
    e(f"s_mul_i32 s{sT0}, s{sB2}, 96")
    e(f"s_mul_i32 s{sT1}, s{sQH}, 48")
    e(f"s_add_u32 s{sT0}, s{sT0}, s{sT1}")
    e(f"s_lshl_b32 s{sT0}, s{sT0}, 10")
    e(f"s_lshl_b32 s{sT1}, s{sCT}, 7")
    e(f"s_add_u32 s{sT0}, s{sT0}, s{sT1}")
    e(f"s_lshl_b32 s{sT1}, s{sW}, 5")
    e(f"s_add_u32 s{sT0}, s{sT0}, s{sT1}")
    e("v_and_b32 v31, 15, v1")
    e("v_lshlrev_b32 v31, 10, v31")
    e("v_lshrrev_b32 v2, 4, v1")
    e("v_lshl_add_u32 v31, v2, 3, v31")
    e("s_waitcnt vmcnt(0)")
    for jq in range(3):
        for i in range(4): e(f"v_add_f32 v{32+jq*4+i}, v{32+jq*4+i}, v{44+jq*4+i}")
        e(f"v_cvt_pk_bf16_f32 v{64+jq*2}, v{32+jq*4}, v{33+jq*4}")
        e(f"v_cvt_pk_bf16_f32 v{65+jq*2}, v{34+jq*4}, v{35+jq*4}")
        e(f"buffer_store_dwordx2 {vr(64+jq*2,2)}, v31, {srd(SOUT)}, s{sT0} offen")
        e(f"s_add_u32 s{sT0}, s{sT0}, 16384")
    lab("L_fin")

prologue(); qproj(); attention(); outproj_g()
stamp("end"); stamp_dump()
lab("L_end"); e("s_endpgm")
hdr = open("cdna_kernels/%s.s.ref" % NAME).read().split("; @launch")[0]
out = hdr + "; @launch grid=(256,1,1) block=(256,1,1) lds=163840\n"
out += f""".amdgcn_target "amdgcn-amd-amdhsa--gfx950"
.text
.globl {NAME}_kernel
.p2align 8
.type {NAME}_kernel,@function
{NAME}_kernel:
""" + "\n".join(L) + f"""
.section .rodata,"a"
.p2align 6
.amdhsa_kernel {NAME}_kernel
  .amdhsa_next_free_vgpr 512
  .amdhsa_next_free_sgpr 102
  .amdhsa_accum_offset 256
  .amdhsa_group_segment_fixed_size 0
  .amdhsa_kernarg_size 64
  .amdhsa_user_sgpr_count 2
  .amdhsa_user_sgpr_kernarg_segment_ptr 1
  .amdhsa_system_sgpr_workgroup_id_x 1
.end_amdhsa_kernel
"""
dst = sys.argv[1] if len(sys.argv) > 1 else "cdna_kernels/%s.s" % NAME
open(dst, "w").write(out)
print("wrote", dst, len(L), "lines")
```

```python
import sys, os
L = []
def e(s): L.append("    " + s)
def lab(s): L.append(s + ":")
def c(s): L.append("    ; " + s)
def nop(n):
    while n > 0:
        k = min(n, 16); e(f"s_nop {k-1}"); n -= k
NAME = "standalone__gqa_block_cached__near_ridge"
STAMP = os.environ.get("STAMP")
VPRE = int(os.environ.get("VPRE", "4"))
NT = os.environ.get("NT", " nt")
K1 = int(os.environ.get("K1", "12"))
K2 = int(os.environ.get("K2", "12"))
K3 = int(os.environ.get("K3", "16"))
VS = int(os.environ.get("VS", "2"))
WP = int(os.environ.get("WP", "8"))
ROT = int(os.environ.get("ROT", "1"))
WE = int(os.environ.get("WE", "16"))
OPRE = int(os.environ.get("OPRE", "5"))
WS2 = int(os.environ.get("WS2", "0"))
KPRE = int(os.environ.get("KPRE", "4"))
XOFF = 0; STG = 98304; QOFF = 131072; EXTRA = 131072
MAXOFF = 155648; SUMOFF = 160*1024 - 2048
SX, SK, SV, SWQ, SWO, SOUT, SWS, SDBG = 8, 12, 16, 20, 24, 28, 32, 36
sW, sB, sH, sT0, sT1, sT2, sT3 = 40, 41, 42, 43, 44, 45, 46
sKV, sXB, sC, sB2, sQH, sCT, sOB, sWN, sCNT = 47, 48, 49, 50, 51, 52, 53, 54, 55
sVb, sVl, sWo = 56, 57, 58
sKH = 5
sROT = 4; sR1 = 7; sXc = 63; sWc = 64; sWk = 65
sXm, sXs, sWq = 59, 60, 61
POFF = 0x800000
FOFF = 0xA00000
sTAG = 6
vTG = 122
def srd(r): return f"s[{r}:{r+3}]"
vKo = 2; vXo = [31]; vWq = 7; vL16 = 8; vStW = 9; vStR = 10
vXa = list(range(11,19)); vQw = 19; vVo = 20; vVr = [21,22,23,24]; vSl = [25,26]; vSr = [3,4,5,6]
vSt = 27; vStr = 28; vWo = 29
def S(a,j): return 32 + (a*6+j)*4
vM = 224; vLs = 230; vTmp = 236
def vr(b,n): return f"v[{b}:{b+n-1}]"
def ar(b,n): return f"a[{b}:{b+n-1}]"
stamps = []
def stamp(name):
    if STAMP is None: return
    if os.environ.get("FINE") and name in ("softmax_done","V3_ready","O_stored","poll_done","oproj_done"): return
    k = len(stamps); stamps.append(name)
    e(f"s_memrealtime s[{74+2*k}:{75+2*k}]")
    e("s_waitcnt lgkmcnt(0)")
def stamp_dump():
    if STAMP is None: return
    e(f"s_cmp_lg_u32 s{sW}, 0")
    e("s_cbranch_scc1 L_end")
    e("s_mov_b64 exec, 1")
    e(f"s_mov_b32 s{SWS+2}, 0x2000000")
    e(f"s_lshl_b32 s{sT1}, s2, 6")
    e(f"s_add_u32 s{sT1}, s{sT1}, 0x1800000")
    for k in range(len(stamps)):
        e(f"v_mov_b32 v30, s{74+2*k}")
        e(f"v_mov_b32 v31, {k*4}")
        e(f"buffer_store_dword v30, v31, {srd(SWS)}, s{sT1} offen")
        e("s_nop 1")
    L.append("; STAMPS " + ",".join(stamps))

class VM:
    n = 0
def vm(s):
    e(s); VM.n += 1; return VM.n
def wait_for(seq, extra=""):
    k = min(63, VM.n - seq)
    e(f"s_waitcnt vmcnt({k}){extra}")

def prologue():
    e("s_cmp_ge_u32 s2, 256")
    e("s_cbranch_scc1 L_end")
    stamp("start")
    e("s_load_dwordx16 s[56:71], s[0:1], 0")
    e("s_memrealtime s[6:7]")
    e("v_and_b32 v1, 63, v0")
    e("v_lshrrev_b32 v30, 6, v0")
    e("s_nop 0")
    e(f"v_readfirstlane_b32 s{sW}, v30")
    e(f"s_and_b32 s{sT0}, s2, 7")
    e(f"s_lshr_b32 s{sT1}, s2, 3")
    e(f"s_and_b32 s{sT2}, s{sT1}, 3")
    e(f"s_lshl_b32 s{sH}, s{sT0}, 2")
    e(f"s_add_u32 s{sH}, s{sH}, s{sT2}")
    e(f"s_lshr_b32 s{sB}, s{sT1}, 2")
    e(f"s_and_b32 s{sKH}, s{sT0}, 1")
    e(f"s_andn2_b32 s{sB2}, s{sT0}, 1")
    e(f"s_lshr_b32 s{sT3}, s{sT2}, 1")
    e(f"s_add_u32 s{sB2}, s{sB2}, s{sT3}")
    e(f"s_and_b32 s{sQH}, s{sT2}, 1")
    e(f"s_mov_b32 s{sCT}, s{sB}")
    e(f"s_lshl_b32 s{sROT}, s{sT2}, 1")
    e(f"s_add_u32 s{sROT}, s{sROT}, s{sCT}")
    e(f"s_lshl_b32 s{sROT}, s{sROT}, 1")
    e(f"s_and_b32 s{sROT}, s{sROT}, 15")
    e(f"s_lshl_b32 s{sKV}, s{sB}, 5")
    e(f"s_add_u32 s{sKV}, s{sKV}, s{sH}")
    e(f"s_lshl_b32 s{sKV}, s{sKV}, 17")
    e(f"s_lshl_b32 s{sT3}, s{sW}, 15")
    e(f"s_add_u32 s{sKV}, s{sKV}, s{sT3}")
    e(f"s_mul_i32 s{sXB}, s{sB}, 98304")
    e(f"s_add_u32 s{sWN}, s{sW}, 1")
    e(f"s_and_b32 s{sWN}, s{sWN}, 3")
    e(f"s_mov_b32 s{sC}, 0x3e0293ee")
    e("v_and_b32 v30, 15, v1")
    e("v_lshrrev_b32 v31, 4, v1")
    e(f"v_lshlrev_b32 v{vKo}, 8, v30")
    e(f"v_lshl_add_u32 v{vKo}, v31, 4, v{vKo}")
    e(f"v_lshlrev_b32 v{vL16}, 4, v1")
    e("s_waitcnt lgkmcnt(0)")
    e(f"s_or_b32 s{sTAG}, s{sTAG}, 1")
    e(f"s_add_u32 s{sR1}, s{sB}, s{sH}")
    sizes = [786432, 33554432, 33554432, 4194304, 4194304, 786432, 256, FOFF + 0x10000]
    regs = [SX, SK, SV, SWQ, SWO, SOUT, SDBG, SWS]
    for i,(r,sz) in enumerate(zip(regs,sizes)):
        e(f"s_mov_b32 s{r}, s{56+2*i}")
        e(f"s_and_b32 s{r+1}, s{57+2*i}, 0xffff")
        e(f"s_mov_b32 s{r+2}, {sz}")
        e(f"s_mov_b32 s{r+3}, 0x00020000")

kseq = {}; kn = [0]; TAGSEQ = [0]
def k1():
    if kn[0] >= 32: return
    a, s_ = kn[0]//4, kn[0]%4; kn[0] += 1
    if s_ == 0: e(f"s_add_u32 s{sCNT}, s{sKV}, {a*4096}")
    kseq[a] = vm(f"buffer_load_dwordx4 {ar((a*4+s_)*4,4)}, v{vKo}, {srd(SK)}, s{sCNT} offen offset:{s_*64}{NT}")
vseq = {}; vn = [0]
def v1():
    if vn[0] >= 32: return
    hf, i = vn[0]//16, vn[0]%16; vn[0] += 1
    if i == 0:
        e(f"s_lshr_b32 s{sVb}, s{sW}, 1")
        if hf == 0: e(f"s_xor_b32 s{sVb}, s{sVb}, 1")
        e(f"s_lshl_b32 s{sVb}, s{sVb}, 7")
        e(f"s_add_u32 s{sVb}, s{sVb}, s{sKV}")
    e(f"s_add_u32 m0, s{sVl}, {hf*16384 + i*1024}")
    e(f"s_add_u32 s{sCNT}, s{sVb}, {i*2048}")
    vseq[(hf,i//4)] = vm(f"buffer_load_dwordx4 v{vVo}, {srd(SV)}, s{sCNT} offen{NT} lds")
wn = [0]; WCAP = [56]; WSEQ = {}
def WR(i): return 224 + 4*i if i < 8 else 4*(i-8)
def w1():
    if wn[0] >= WCAP[0]: return
    i = wn[0]; wn[0] += 1
    if i % 4 == 0:
        e(f"s_add_u32 s{sWk}, s{sROT}, {i//4}")
        e(f"s_and_b32 s{sWk}, s{sWk}, 15")
        e(f"s_lshl_b32 s{sWk}, s{sWk}, 15")
        e(f"s_add_u32 s{sWk}, s{sWk}, s{sWo}")
    else: e(f"s_add_u32 s{sWk}, s{sWk}, 8192")
    WSEQ[i] = vm(f"buffer_load_dwordx4 {ar(WR(i),4)}, v{vWo}, {srd(SWO)}, s{sWk} offen")

def addr_setup():
    e(f"s_lshl_b32 s{sT1}, s{sW}, 14")
    e(f"s_add_u32 s{sT1}, s{sT1}, {STG}")
    c("staging write: cg*16384 + (32w + i/16)*64 + (i%4)*16")
    e("v_bfe_u32 v30, v1, 2, 2")
    e(f"v_lshlrev_b32 v{vStW}, 14, v30")
    e("v_lshrrev_b32 v30, 4, v1")
    e(f"v_lshl_add_u32 v{vStW}, v30, 6, v{vStW}")
    e("v_and_b32 v30, 3, v1")
    e(f"v_lshl_add_u32 v{vStW}, v30, 4, v{vStW}")
    e(f"s_lshl_b32 s{sT2}, s{sW}, 11")
    e(f"s_add_u32 s{sT2}, s{sT2}, {STG}")
    e(f"v_add_u32 v{vStW}, s{sT2}, v{vStW}")
    e("v_lshrrev_b32 v30, 5, v1")
    e("v_lshlrev_b32 v30, 3, v30")
    e("v_bfe_u32 v31, v1, 2, 2")
    e("v_add_u32 v30, v30, v31")
    e(f"v_lshlrev_b32 v{vStR}, 6, v30")
    e("v_bfe_u32 v30, v1, 4, 1")
    e(f"v_lshl_add_u32 v{vStR}, v30, 5, v{vStR}")
    e("v_and_b32 v30, 1, v1")
    e(f"v_lshl_add_u32 v{vStR}, v30, 4, v{vStR}")
    e("v_bfe_u32 v30, v1, 1, 1")
    e(f"v_lshl_add_u32 v{vStR}, v30, 3, v{vStR}")
    e(f"v_add_u32 v{vStR}, s{sT1}, v{vStR}")
    e("v_and_b32 v30, 31, v1")
    e("v_lshlrev_b32 v30, 8, v30")
    e("v_lshrrev_b32 v31, 5, v1")
    for lo in range(8):
        e(f"v_add_u32 v{vXa[lo]}, {2*lo}, v31")
        e(f"v_xor_b32 v{vXa[lo]}, v{vXa[lo]}, v1")
        e(f"v_and_b32 v{vXa[lo]}, 15, v{vXa[lo]}")
        e(f"v_lshl_add_u32 v{vXa[lo]}, v{vXa[lo]}, 4, v30")
        e(f"v_add_u32 v{112+lo}, 0xc000, v{vXa[lo]}")
    e("v_bfe_u32 v30, v1, 4, 1")
    e(f"v_lshlrev_b32 v{vQw}, 12, v30")
    e("v_and_b32 v30, 15, v1")
    e(f"v_lshl_add_u32 v{vQw}, v30, 4, v{vQw}")
    e("v_lshrrev_b32 v30, 5, v1")
    e(f"v_lshl_add_u32 v{vQw}, v30, 8, v{vQw}")
    e(f"s_lshl_b32 s{sT1}, s{sW}, 10")
    e(f"s_add_u32 s{sT1}, s{sT1}, {QOFF}")
    e(f"v_add_u32 v{vQw}, s{sT1}, v{vQw}")
    c("V dma: (i/8)*256 + (((i%8)/2 ^ ((i/16)&3))*2 + (i&1))*16 ; wo: (i/8)*1024 + (i%8)*16")
    e("v_lshrrev_b32 v30, 4, v1")
    e("v_lshlrev_b32 v30, 1, v30")
    e("v_xor_b32 v30, v30, v1")
    e("v_and_b32 v30, 7, v30")
    e("v_lshrrev_b32 v120, 3, v1")
    e(f"v_lshlrev_b32 v{vVo}, 8, v120")
    e(f"v_lshl_add_u32 v{vVo}, v30, 4, v{vVo}")
    e("v_and_b32 v30, 7, v1")
    e(f"v_lshlrev_b32 v{vWo}, 10, v120")
    e(f"v_lshl_add_u32 v{vWo}, v30, 4, v{vWo}")
    c("tr read base0: w*32768 + (lane>>2)*128 + (((lane>>3)&3)*32) + (lane&3)*8 ; blk b -> ^ b*32")
    e("v_lshrrev_b32 v30, 2, v1")
    e(f"v_lshlrev_b32 v{vVr[0]}, 7, v30")
    e("v_bfe_u32 v30, v1, 3, 2")
    e(f"v_lshl_add_u32 v{vVr[0]}, v30, 5, v{vVr[0]}")
    e("v_and_b32 v30, 3, v1")
    e(f"v_lshl_add_u32 v{vVr[0]}, v30, 3, v{vVr[0]}")
    e(f"s_lshl_b32 s{sVl}, s{sW}, 15")
    e(f"v_add_u32 v{vVr[0]}, s{sVl}, v{vVr[0]}")
    c("vVr[0..1]: group w^1|w^3 parity (blk 2*((w&1)^1)+j2); vVr[2..3]: own parity")
    e(f"s_and_b32 s{sT1}, s{sW}, 1")
    e(f"s_lshl_b32 s{sT1}, s{sT1}, 6")
    e(f"v_xor_b32 v{vVr[2]}, s{sT1}, v{vVr[0]}")
    e(f"v_xor_b32 v{vVr[3]}, 32, v{vVr[2]}")
    e(f"v_xor_b32 v{vVr[0]}, 64, v{vVr[2]}")
    e(f"v_xor_b32 v{vVr[1]}, 64, v{vVr[3]}")
    c("partial slots: own V region + extra")
    e(f"v_add_u32 v{vSl[0]}, s{sVl}, v{vL16}")
    e(f"s_lshl_b32 s{sT1}, s{sW}, 13")
    e(f"s_add_u32 s{sT1}, s{sT1}, {EXTRA}")
    e(f"v_add_u32 v{vSl[1]}, s{sT1}, v{vL16}")
    e(f"v_xor_b32 v{vSr[0]}, 0x18000, v{vSl[0]}")
    e(f"v_xor_b32 v{vSr[1]}, 0x10000, v{vSl[0]}")
    e(f"v_xor_b32 v{vSr[2]}, 0x4000, v{vSl[1]}")
    e(f"v_xor_b32 v{vSr[3]}, 0x8000, v{vSl[0]}")
    c("wo soffset: (kh*2048 + w*512)*1024 + ct*128")
    e(f"s_lshl_b32 s{sWo}, s{sKH}, 2")
    e(f"s_add_u32 s{sWo}, s{sWo}, s{sW}")
    e(f"s_lshl_b32 s{sWo}, s{sWo}, 19")
    e(f"s_lshl_b32 s{sT1}, s{sCT}, 7")
    e(f"s_add_u32 s{sWo}, s{sWo}, s{sT1}")
    e("v_and_b32 v30, 15, v1")
    e(f"v_lshlrev_b32 v{vStr}, 4, v30")
    e(f"v_add_u32 v{vStr}, {MAXOFF}, v{vStr}")
    e(f"s_lshl_b32 s{sT1}, s{sW}, 2")
    e(f"v_add_u32 v{vSt}, s{sT1}, v{vStr}")

ACC = 32; XF = 128; WF = 164
def qproj():
    c("x voffset: (4w+i/16)*1024 + ((i%16)^(4w+i/16))*16")
    e(f"s_lshl_b32 s{sT1}, s{sW}, 2")
    e("v_lshrrev_b32 v30, 4, v1")
    e(f"v_add_u32 v30, s{sT1}, v30")
    e("v_xor_b32 v29, v30, v1")
    e("v_and_b32 v29, 15, v29")
    e(f"v_lshlrev_b32 v{vXo[0]}, 10, v30")
    e(f"v_lshl_add_u32 v{vXo[0]}, v29, 4, v{vXo[0]}")
    e(f"s_lshl_b32 s{sXm}, s{sW}, 10")
    e("v_lshrrev_b32 v30, 4, v1")
    e(f"v_lshlrev_b32 v{vWq}, 13, v30")
    e("v_and_b32 v30, 15, v1")
    e(f"v_lshl_add_u32 v{vWq}, v30, 4, v{vWq}")
    e(f"s_lshl_b32 s{sWq}, s{sH}, 8")
    e(f"s_lshl_b32 s{sT1}, s{sW}, 18")
    e(f"s_add_u32 s{sWq}, s{sWq}, s{sT1}")
    xs = {}; wqs = {}
    def xl(ch, m):
        if m == 0:
            e(f"s_add_u32 s{sXc}, s{sR1}, {ch}")
            e(f"s_and_b32 s{sXc}, s{sXc}, {3 if ROT else 0}" if ROT else f"s_mov_b32 s{sXc}, {ch}")
            e(f"s_lshl_b32 s{sWc}, s{sXc}, 20")
            e(f"s_add_u32 s{sWc}, s{sWc}, s{sWq}")
            e(f"s_lshl_b32 s{sXc}, s{sXc}, 8")
            e(f"s_add_u32 s{sXc}, s{sXc}, s{sXB}")
        e(f"s_add_u32 m0, s{sXm}, {XOFF + ch*24576 + m*4096}")
        e(f"s_add_u32 s{sXs}, s{sXc}, {m*16384}")
        xs[ch] = vm(f"buffer_load_dwordx4 v{vXo[0]}, {srd(SX)}, s{sXs} offen lds")
    def wl(ch, i):
        k = ch*8 + i
        e(f"s_add_u32 s{sXs}, s{sWc}, {i*4*8192}")
        wqs[ch] = vm(f"buffer_load_dwordx4 {ar(128+4*k,4)}, v{vWq}, {srd(SWQ)}, s{sXs} offen")
    seqs = [[(xl,ch,m) for m in range(6)] + [(wl,ch,i) for i in range(8)] for ch in range(4)]
    def issue(q, n):
        for _ in range(n):
            if q: it = q.pop(0); it[0](it[1], it[2])
    c("WG0 wave0 publishes the launch tag")
    e(f"s_or_b32 s{sT0}, s2, s{sW}")
    e(f"s_cmp_lg_u32 s{sT0}, 0")
    e("s_cbranch_scc1 L_notag")
    e(f"v_mov_b32 v{vTG}, s{sTAG}")
    e(f"v_mov_b32 v{vTG+1}, 0")
    e("s_mov_b64 exec, 1")
    e(f"buffer_store_dword v{vTG}, v{vTG+1}, {srd(SDBG)}, 0 offen sc1")
    e("s_mov_b64 exec, -1")
    lab("L_notag")
    issue(seqs[0], 99)
    e(f"v_mov_b32 v121, v{vXo[0]}")
    vXo[0] = 121
    addr_setup()
    issue(seqs[1], 99)
    stamp("issued")
    def rd_frags(S_, buf):
        ch, s = S_//8, S_%8
        for u in range(2):
            e(f"ds_read_b64_tr_b16 {vr(WF+buf*4+u*2,2)}, v{vStR} offset:{(ch&1)*8192 + s*1024 + u*256}")
        for t3 in range(3):
            base = vXa[s] if ch < 2 else 112+s
            e(f"ds_read_b128 {vr(XF+buf*12+t3*4,4)}, v{base} offset:{(ch&1)*24576 + t3*8192}")
    def stage_w(ch, i):
        e(f"ds_write_b128 v{vStW}, {ar(128+(ch*8+i)*4,4)} offset:{(ch&1)*8192 + i*256}")
    wait_for(max(wqs[0], xs[0]))
    for i in range(8): stage_w(0, i)
    for ch in range(4):
        e("s_waitcnt lgkmcnt(0)")
        e("s_barrier")
        if ch == 0: stamp("x_ready")
        rd_frags(ch*8, 0); rd_frags(ch*8+1, 1)
        pend = 10
        q = [5, 5]
        for s in range(8):
            S_ = ch*8 + s; buf = s % 3
            if s < 6: rd_frags(S_+2, (s+2)%3); q.append(5)
            q.pop(0)
            e(f"s_waitcnt lgkmcnt({min(15, sum(q))})")
            for t3 in range(3):
                cin = "0" if S_ == 0 else vr(ACC+t3*16,16)
                e(f"v_mfma_f32_32x32x16_bf16 {vr(ACC+t3*16,16)}, {vr(WF+buf*4,4)}, {vr(XF+buf*12+t3*4,4)}, {cin}")
                if ch == 0: issue(seqs[2] if seqs[2] else seqs[3], 1)
                if ch == 1 and t3 != 1 and kn[0] < K1: k1()
                if ch == 2 and t3 == 0 and kn[0] < K2: k1()
                if ch == 3 and t3 == 0 and kn[0] < K3: k1()
            if ch == 0 and s == 7: issue(seqs[2], 99); issue(seqs[3], 99)
            if ch < 3 and s >= 4:
                if s == 4: wait_for(max(wqs[ch+1], xs[ch+1]))
                stage_w(ch+1, (s-4)*2); stage_w(ch+1, (s-4)*2+1)
                if q: q[-1] += 2
                else: q.append(2)
    e("s_barrier")
    stamp("qproj_done")
    nop(12)
    for t3 in range(3):
        for t in range(2):
            b0 = ACC + t3*16 + t*8
            for k in range(4):
                e(f"v_cvt_pk_bf16_f32 v{XF+(t3*2+t)*4+k}, v{b0+2*k}, v{b0+2*k+1}")
            e(f"ds_write_b128 v{vQw}, {vr(XF+(t3*2+t)*4,4)} offset:{t3*8192 + t*512}")
    for _ in range(4): k1()
    e("s_waitcnt lgkmcnt(0)")
    e("s_barrier")
    e(f"v_add_u32 v30, {QOFF}, v{vL16}")
    for j in range(6):
        for s in range(4):
            e(f"ds_read_b128 {ar(128+(j*4+s)*4,4)}, v30 offset:{(j*4+s)*1024}")

def xreduce(base, op):
    for sw in ("v_permlane32_swap_b32", "v_permlane16_swap_b32"):
        for j in range(6): e(f"v_mov_b32 v{vTmp+j}, v{base+j}")
        nop(2)
        for j in range(6): e(f"{sw} v{base+j}, v{vTmp+j}")
        nop(2)
        for j in range(6): e(f"{op} v{base+j}, v{base+j}, v{vTmp+j}")
def stat_read(off):
    for j in range(5):
        e(f"ds_read_b128 {vr(vTmp+j*4,4)}, v{vStr} offset:{off + j*256}")
    e(f"ds_read_b128 {vr(vXa[1],4)}, v{vStr} offset:{off + 5*256}")
    e("s_waitcnt lgkmcnt(0)")

def attention():
    for a in range(8):
        wait_for(kseq[a], " lgkmcnt(0)" if a == 0 else "")
        if a == 4:
            e("v_mov_b32 v7, 0")
            vm(f"buffer_load_dword v2, v7, {srd(SDBG)}, 0 offen sc1")
        for s in range(4):
            for j in range(6):
                cin = "0" if s == 0 else vr(S(a,j),4)
                e(f"v_mfma_f32_16x16x32_bf16 {vr(S(a,j),4)}, {ar((a*4+s)*4,4)}, {ar(128+(j*4+s)*4,4)}, {cin}")
                if j == 2:
                    if kn[0] < 32: k1()
                    elif s < VS: v1()
                if a > 0 and s in (1,2):
                    p = S(a-1,j) + (s-1)*2
                    if a == 1 and s == 1: e(f"v_max_f32 v{vM+j}, v{p}, v{p+1}")
                    else: e(f"v_max3_f32 v{vM+j}, v{vM+j}, v{p}, v{p+1}")
    nop(8)
    stamp("S_done")
    for j in range(6):
        e(f"v_max3_f32 v{vM+j}, v{vM+j}, v{S(7,j)}, v{S(7,j)+1}")
        e(f"v_max3_f32 v{vM+j}, v{vM+j}, v{S(7,j)+2}, v{S(7,j)+3}")
    xreduce(vM, "v_max_f32")
    for j in range(6): e(f"ds_write_b32 v{vSt}, v{vM+j} offset:{j*256}")
    e("s_waitcnt lgkmcnt(0)")
    e("s_barrier")
    stat_read(0)
    for j in range(6):
        b0 = vTmp + j*4 if j < 5 else vXa[1]
        e(f"v_max3_f32 v{vM+j}, v{b0}, v{b0+1}, v{b0+2}")
        e(f"v_max_f32 v{vM+j}, v{vM+j}, v{b0+3}")
        e(f"v_mul_f32 v{vM+j}, s{sC}, v{vM+j}")
    for j in range(6):
        for s in range(4):
            regs8 = [S(2*s,j)+i for i in range(4)] + [S(2*s+1,j)+i for i in range(4)]
            for r in regs8: e(f"v_fma_f32 v{r}, v{r}, s{sC}, -v{vM+j}")
            v1()
            for r in regs8: e(f"v_exp_f32 v{r}, v{r}")
            if WS2: w1()
            e("s_nop 0")
            if s == 0:
                e(f"v_add_f32 v{vLs+j}, v{regs8[0]}, v{regs8[1]}"); rest = regs8[2:]
            else: rest = regs8
            for r in rest: e(f"v_add_f32 v{vLs+j}, v{vLs+j}, v{r}")
            for k in range(4):
                e(f"v_cvt_pk_bf16_f32 v{S(2*s,j)+k}, v{regs8[2*k]}, v{regs8[2*k+1]}")
    xreduce(vLs, "v_add_f32")
    for j in range(6): e(f"ds_write_b32 v{vSt}, v{vLs+j} offset:{SUMOFF - MAXOFF + j*256}")
    e("s_waitcnt lgkmcnt(0)")
    e("s_barrier")
    stat_read(SUMOFF - MAXOFF)
    for j in range(6):
        b0 = vTmp + j*4 if j < 5 else vXa[1]
        e(f"v_add_f32 v{vLs+j}, v{b0}, v{b0+1}")
        e(f"v_add_f32 v{b0+2}, v{b0+2}, v{b0+3}")
        e(f"v_add_f32 v{vLs+j}, v{vLs+j}, v{b0+2}")
        e(f"v_rcp_f32 v{vLs+j}, v{vLs+j}")
    stamp("softmax_done")
    def vfr(hf, s, buf):
        for g4 in range(4):
            for u in range(2):
                e(f"ds_read_b64_tr_b16 {ar(VA+buf*16+g4*4+2*u,2)}, v{vVr[g4]} offset:{hf*16384 + s*4096 + u*2048}")
    def phase(hf, cinit):
        wait_for(vseq[(hf,0)])
        vfr(hf, 0, 0)
        for s in range(4):
            if s < 3:
                wait_for(vseq[(hf,s+1)])
                if s == 2 and hf == 1: stamp("V3_ready")
                vfr(hf, s+1, (s+1)&1)
                if hf == 1:
                    for _ in range(WP): w1()
                e("s_waitcnt lgkmcnt(8)")
            else: e("s_waitcnt lgkmcnt(0)")
            for g4 in range(4):
                for j in range(6):
                    d = ACCT(g4*6 + j)
                    cin = "0" if (s == 0 and not (cinit and g4 >= 2)) else vr(d,4)
                    e(f"v_mfma_f32_16x16x32_bf16 {vr(d,4)}, {ar(VA+(s&1)*16+g4*4,4)}, {vr(S(2*s,j),4)}, {cin}")
    while vn[0] < 32: v1()
    c("PV phase I: groups w^3 (tiles 0..11), w^2 (tiles 12..23)")
    phase(0, False)
    nop(4)
    for tt in range(24):
        if tt < 16: e(f"ds_write_b128 v{vSl[0]}, {vr(ACCT(tt),4)} offset:{tt*1024}")
        else: e(f"ds_write_b128 v{vSl[1]}, {vr(ACCT(tt),4)} offset:{(tt-16)*1024}")
    e("s_waitcnt lgkmcnt(0)")
    e("s_barrier")
    c("launch tag (fallback: poll until published)")
    e(f"v_readfirstlane_b32 s{sTAG}, v2")
    e(f"s_mov_b32 s{sCNT}, 0")
    lab("L_tagpoll")
    e(f"s_cmp_lg_u32 s{sTAG}, 0")
    e("s_cbranch_scc1 L_tagok")
    e(f"buffer_load_dword v2, v7, {srd(SDBG)}, 0 offen sc1")
    e("s_waitcnt vmcnt(0)")
    e(f"v_readfirstlane_b32 s{sTAG}, v2")
    e(f"s_add_u32 s{sCNT}, s{sCNT}, 1")
    e(f"s_cmp_lt_u32 s{sCNT}, 200000")
    e("s_cbranch_scc1 L_tagpoll")
    lab("L_tagok")
    c("own group init = partial(w^3 tiles 0..11) + partial(w^2 tiles 12..23)")
    for t in range(12):
        e(f"ds_read_b128 {vr(ACCT(12+t),4)}, v{vSr[0]} offset:{t*1024}")
        if t < 4: e(f"ds_read_b128 {vr(ACCT(t),4)}, v{vSr[1]} offset:{(12+t)*1024}")
        else: e(f"ds_read_b128 {vr(ACCT(t),4)}, v{vSr[2]} offset:{(t-4)*1024}")
    e("s_waitcnt lgkmcnt(0)")
    for t in range(12):
        for i in range(4): e(f"v_add_f32 v{ACCT(12+t)+i}, v{ACCT(12+t)+i}, v{ACCT(t)+i}")
    nop(2)
    c("PV phase II: groups w^1 (tiles 0..11, C=0), w (tiles 12..23)")
    phase(1, True)
    nop(4)
    for t in range(12):
        e(f"ds_write_b128 v{vSl[0]}, {vr(ACCT(t),4)} offset:{16384 + t*1024}")
    for _ in range(WE): w1()
    e("s_waitcnt lgkmcnt(0)")
    e("s_barrier")
    for t in range(12):
        e(f"ds_read_b128 {vr(ACCT(t),4)}, v{vSr[3]} offset:{16384 + t*1024}")
    e("s_waitcnt lgkmcnt(0)")
    for t in range(12):
        for i in range(4): e(f"v_add_f32 v{ACCT(12+t)+i}, v{ACCT(12+t)+i}, v{ACCT(t)+i}")
VA = 192
def ACCT(tt): return S(1 + 2*(tt//6), tt%6)
def poll_loop(lbl):
    e(f"s_mov_b32 s{sCNT}, 0")
    lab(lbl)
    e(f"buffer_load_dword v30, v31, {srd(SWS)}, s{sT0} offen sc1")
    e("s_waitcnt vmcnt(0)")
    e(f"v_cmp_ne_u32 vcc, s{sTAG}, v30")
    e(f"s_add_u32 s{sCNT}, s{sCNT}, 1")
    e("s_nop 3")
    e(f"s_cbranch_vccz {lbl}_done")
    e("s_sleep 2")
    e(f"s_cmp_lt_u32 s{sCNT}, 200000")
    e(f"s_cbranch_scc1 {lbl}")
    lab(lbl + "_done")
def flag_store():
    e(f"v_mov_b32 v30, s{sTAG}")
    e("v_mov_b32 v31, 0")
    e("s_mov_b64 exec, 1")
    e(f"buffer_store_dword v30, v31, {srd(SWS)}, s{sT0} offen sc1")
    e("s_mov_b64 exec, -1")
def outproj_g():
    f1p = [f"s_lshr_b32 s{sT0}, s{sH}, 4", f"s_lshl_b32 s{sT1}, s{sB}, 1", f"s_add_u32 s{sT0}, s{sT0}, s{sT1}", f"s_lshl_b32 s{sT0}, s{sT0}, 2"]
    f1c = [f"s_lshl_b32 s{sT1}, s{sB2}, 1", f"s_add_u32 s{sT0}, s{sKH}, s{sT1}", f"s_lshl_b32 s{sT0}, s{sT0}, 2"]
    c("normalize, pack, store O frags")
    e(f"s_lshl_b32 s{sT0}, s{sB}, 5")
    e(f"s_add_u32 s{sT0}, s{sT0}, s{sH}")
    e(f"s_lshl_b32 s{sT0}, s{sT0}, 2")
    e(f"s_add_u32 s{sT0}, s{sT0}, s{sW}")
    e(f"s_mul_i32 s{sT0}, s{sT0}, 6144")
    for j in range(6):
        for j2 in range(2):
            b0 = ACCT(12+j2*6+j)
            for i in range(4): e(f"v_mul_f32 v{b0+i}, v{b0+i}, v{vLs+j}")
        d = ACCT(j)
        for j2 in range(2):
            b0 = ACCT(12+j2*6+j)
            e(f"v_cvt_pk_bf16_f32 v{d+2*j2}, v{b0}, v{b0+1}")
            e(f"v_cvt_pk_bf16_f32 v{d+2*j2+1}, v{b0+2}, v{b0+3}")
        if j == 4: e(f"s_add_u32 s{sT0}, s{sT0}, 4096")
        vm(f"buffer_store_dwordx4 {vr(d,4)}, v{vL16}, {srd(SWS)}, s{sT0} offen offset:{(j%4)*1024} sc1")
    e("s_waitcnt vmcnt(0)")
    e("s_barrier")
    stamp("O_stored")
    e(f"s_cmp_lg_u32 s{sW}, 0")
    e("s_cbranch_scc1 L_sig1")
    e(f"s_lshr_b32 s{sT0}, s{sH}, 4")
    e(f"s_lshl_b32 s{sT1}, s{sB}, 1")
    e(f"s_add_u32 s{sT0}, s{sT0}, s{sT1}")
    e(f"s_lshl_b32 s{sT0}, s{sT0}, 7")
    e(f"s_and_b32 s{sT1}, s{sH}, 15")
    e(f"s_lshl_b32 s{sT1}, s{sT1}, 2")
    e(f"s_add_u32 s{sT0}, s{sT0}, s{sT1}")
    e(f"s_add_u32 s{sT0}, s{sT0}, {FOFF}")
    flag_store()
    lab("L_sig1")
    WCAP[0] = 64
    while wn[0] < 64: w1()
    c("transpose wo via own 32K LDS region; write addr = w*32768 + (lane ^ (2*((lane>>4)&3)))*16")
    e("v_lshrrev_b32 v30, 4, v1")
    e("v_lshlrev_b32 v30, 1, v30")
    e("v_xor_b32 v30, v30, v1")
    e(f"v_lshl_add_u32 v{vWo}, v30, 4, s{sVl}")
    c("blk-ordered read bases: v3..v6 = base0 ^ jj*32")
    e(f"s_and_b32 s{sT1}, s{sW}, 1")
    e(f"s_lshl_b32 s{sT1}, s{sT1}, 6")
    e(f"v_xor_b32 v3, s{sT1}, v{vVr[2]}")
    e("v_xor_b32 v4, 32, v3"); e("v_xor_b32 v5, 64, v3"); e("v_xor_b32 v6, 0x60, v3")
    def FRG(ks, jj): return WR(ks*4 + jj)
    def wo_tr(half):
        for i in range(32):
            e(f"ds_write_b128 v{vWo}, {ar(WR(half*32+i),4)} offset:{i*1024}")
        e("s_waitcnt lgkmcnt(0)")
        for ks in range(8):
            for jj in range(4):
                for u in range(2):
                    e(f"ds_read_b64_tr_b16 {ar(FRG(half*8+ks,jj)+u*2,2)}, v{3+jj} offset:{ks*4096 + u*2048}")
        e("s_waitcnt lgkmcnt(0)")
    wait_for(WSEQ[31])
    wo_tr(0)
    e("s_waitcnt vmcnt(0)")
    wo_tr(1)
    e(f"s_cmp_lg_u32 s{sW}, 0")
    e("s_cbranch_scc1 L_poll1_done")
    e(f"s_lshl_b32 s{sT0}, s{sB2}, 1")
    e(f"s_add_u32 s{sT0}, s{sT0}, s{sKH}")
    e(f"s_lshl_b32 s{sT0}, s{sT0}, 7")
    e(f"s_add_u32 s{sT0}, s{sT0}, {FOFF}")
    e("v_and_b32 v31, 15, v1")
    e("v_lshlrev_b32 v31, 2, v31")
    poll_loop("L_poll1")
    e("s_barrier")
    stamp("poll_done")
    e(f"s_lshl_b32 s{sOB}, s{sB2}, 5")
    e(f"s_lshl_b32 s{sT0}, s{sKH}, 4")
    e(f"s_add_u32 s{sOB}, s{sOB}, s{sT0}")
    e(f"s_lshl_b32 s{sT0}, s{sW}, 2")
    e(f"s_add_u32 s{sOB}, s{sOB}, s{sT0}")
    e(f"s_mul_i32 s{sOB}, s{sOB}, 24576")
    e(f"s_mul_i32 s{sT0}, s{sQH}, 3072")
    e(f"s_add_u32 s{sOB}, s{sOB}, s{sT0}")
    OA = 200; oseq = {}; RING = 14
    def oload(ks):
        e(f"s_add_u32 s{sT0}, s{sROT}, {ks}")
        e(f"s_and_b32 s{sT0}, s{sT0}, 15")
        e(f"s_mul_i32 s{sT0}, s{sT0}, 6144")
        e(f"s_add_u32 s{sT0}, s{sT0}, s{sOB}")
        for jq in range(3):
            oseq[ks] = vm(f"buffer_load_dwordx4 {vr(32 + ((ks%RING)*3+jq)*4,4)}, v{vL16}, {srd(SWS)}, s{sT0} offen offset:{jq*1024} sc1")
    for ks in range(OPRE): oload(ks)
    for ks in range(16):
        wait_for(oseq[ks])
        for jq in range(3):
            for jj in range(4):
                d = OA + (jj*3+jq)*4
                cin = "0" if ks == 0 else vr(d,4)
                e(f"v_mfma_f32_16x16x32_bf16 {vr(d,4)}, {ar(FRG(ks,jj),4)}, {vr(32+((ks%RING)*3+jq)*4,4)}, {cin}")
            if jq == 0 and ks + OPRE < 16: oload(ks+OPRE)
    nop(8)
    stamp("oproj_done")
    c("cross-wave reduce: wave w sums n16 tile jj=w (3 q tiles)")
    e(f"s_mul_i32 s{sT1}, s{sW}, 12288")
    e(f"v_add_u32 v30, s{sT1}, v{vL16}")
    e("s_barrier")
    for t in range(12):
        e(f"ds_write_b128 v30, {vr(OA+t*4,4)} offset:{t*1024}")
    e("s_waitcnt lgkmcnt(0)")
    e("s_barrier")
    e(f"s_mul_i32 s{sT1}, s{sW}, 3072")
    e(f"v_add_u32 v30, s{sT1}, v{vL16}")
    for ww in range(4):
        for jq in range(3):
            e(f"ds_read_b128 {vr(32+(ww*3+jq)*4,4)}, v30 offset:{ww*12288 + jq*1024}")
    e("s_waitcnt lgkmcnt(0)")
    for r in range(12):
        e(f"v_add_f32 v{32+r}, v{32+r}, v{44+r}")
        e(f"v_add_f32 v{56+r}, v{56+r}, v{68+r}")
        e(f"v_add_f32 v{32+r}, v{32+r}, v{56+r}")
    c("waves with (w>>1) != kh send their tile to the partner; others receive")
    e(f"s_lshr_b32 s{sT0}, s{sW}, 1")
    e(f"s_and_b32 s{sT2}, s{sW}, 1")
    e(f"s_mul_i32 s{sT2}, s{sT2}, 3072")
    e(f"s_cmp_eq_u32 s{sT0}, s{sKH}")
    e("s_cbranch_scc1 L_recv")
    e(f"s_mul_i32 s{sT1}, s2, 6144")
    e(f"s_add_u32 s{sT1}, s{sT1}, s{sT2}")
    e(f"s_add_u32 s{sT1}, s{sT1}, {POFF}")
    for jq in range(3):
        e(f"buffer_store_dwordx4 {vr(32+jq*4,4)}, v{vL16}, {srd(SWS)}, s{sT1} offen offset:{jq*1024} sc1")
    e("s_waitcnt vmcnt(0)")
    e(f"s_lshl_b32 s{sT0}, s2, 1")
    e(f"s_and_b32 s{sT1}, s{sW}, 1")
    e(f"s_add_u32 s{sT0}, s{sT0}, s{sT1}")
    e(f"s_lshl_b32 s{sT0}, s{sT0}, 6")
    e(f"s_add_u32 s{sT0}, s{sT0}, {FOFF + 4096}")
    flag_store()
    e("s_branch L_fin")
    lab("L_recv")
    e(f"s_xor_b32 s{sT3}, s2, 1")
    e(f"s_lshl_b32 s{sT0}, s{sT3}, 1")
    e(f"s_and_b32 s{sT1}, s{sW}, 1")
    e(f"s_add_u32 s{sT0}, s{sT0}, s{sT1}")
    e(f"s_lshl_b32 s{sT0}, s{sT0}, 6")
    e(f"s_add_u32 s{sT0}, s{sT0}, {FOFF + 4096}")
    e("v_mov_b32 v31, 0")
    poll_loop("L_poll2")
    e(f"s_mul_i32 s{sT1}, s{sT3}, 6144")
    e(f"s_add_u32 s{sT1}, s{sT1}, s{sT2}")
    e(f"s_add_u32 s{sT1}, s{sT1}, {POFF}")
    for jq in range(3):
        e(f"buffer_load_dwordx4 {vr(44+jq*4,4)}, v{vL16}, {srd(SWS)}, s{sT1} offen offset:{jq*1024} sc1")
    c("out offset = ((b2*96 + 48qh + 16jq + q)*512 + 64ct + 16w + 4g')*2")
    e(f"s_mul_i32 s{sT0}, s{sB2}, 96")
    e(f"s_mul_i32 s{sT1}, s{sQH}, 48")
    e(f"s_add_u32 s{sT0}, s{sT0}, s{sT1}")
    e(f"s_lshl_b32 s{sT0}, s{sT0}, 10")
    e(f"s_lshl_b32 s{sT1}, s{sCT}, 7")
    e(f"s_add_u32 s{sT0}, s{sT0}, s{sT1}")
    e(f"s_lshl_b32 s{sT1}, s{sW}, 5")
    e(f"s_add_u32 s{sT0}, s{sT0}, s{sT1}")
    e("v_and_b32 v31, 15, v1")
    e("v_lshlrev_b32 v31, 10, v31")
    e("v_lshrrev_b32 v2, 4, v1")
    e("v_lshl_add_u32 v31, v2, 3, v31")
    e("s_waitcnt vmcnt(0)")
    for jq in range(3):
        for i in range(4): e(f"v_add_f32 v{32+jq*4+i}, v{32+jq*4+i}, v{44+jq*4+i}")
        e(f"v_cvt_pk_bf16_f32 v{64+jq*2}, v{32+jq*4}, v{33+jq*4}")
        e(f"v_cvt_pk_bf16_f32 v{65+jq*2}, v{34+jq*4}, v{35+jq*4}")
        e(f"buffer_store_dwordx2 {vr(64+jq*2,2)}, v31, {srd(SOUT)}, s{sT0} offen")
        e(f"s_add_u32 s{sT0}, s{sT0}, 16384")
    lab("L_fin")

prologue(); qproj(); attention(); outproj_g()
stamp("end"); stamp_dump()
lab("L_end"); e("s_endpgm")
hdr = open("cdna_kernels/%s.s.ref" % NAME).read().split("; @launch")[0]
out = hdr + "; @launch grid=(256,1,1) block=(256,1,1) lds=163840\n"
out += f""".amdgcn_target "amdgcn-amd-amdhsa--gfx950"
.text
.globl {NAME}_kernel
.p2align 8
.type {NAME}_kernel,@function
{NAME}_kernel:
""" + "\n".join(L) + f"""
.section .rodata,"a"
.p2align 6
.amdhsa_kernel {NAME}_kernel
  .amdhsa_next_free_vgpr 512
  .amdhsa_next_free_sgpr 102
  .amdhsa_accum_offset 256
  .amdhsa_group_segment_fixed_size 0
  .amdhsa_kernarg_size 64
  .amdhsa_user_sgpr_count 2
  .amdhsa_user_sgpr_kernarg_segment_ptr 1
  .amdhsa_system_sgpr_workgroup_id_x 1
.end_amdhsa_kernel
"""
dst = sys.argv[1] if len(sys.argv) > 1 else "cdna_kernels/%s.s" % NAME
open(dst, "w").write(out)
print("wrote", dst, len(L), "lines")
```

```python
import sys, os
L = []
def e(s): L.append("    " + s)
def lab(s): L.append(s + ":")
def c(s): L.append("    ; " + s)
def nop(n):
    while n > 0:
        k = min(n, 16); e(f"s_nop {k-1}"); n -= k
NAME = "standalone__gqa_block_cached__near_ridge"
STAMP = os.environ.get("STAMP")
VPRE = int(os.environ.get("VPRE", "4"))
NT = os.environ.get("NT", " nt")
K1 = int(os.environ.get("K1", "12"))
K2 = int(os.environ.get("K2", "12"))
K3 = int(os.environ.get("K3", "16"))
VS = int(os.environ.get("VS", "2"))
WP = int(os.environ.get("WP", "8"))
ROT = int(os.environ.get("ROT", "1"))
WE = int(os.environ.get("WE", "0"))
OPRE = int(os.environ.get("OPRE", "5"))
WA = int(os.environ.get("WA", "10"))
WS2 = int(os.environ.get("WS2", "0"))
KPRE = int(os.environ.get("KPRE", "4"))
XOFF = 0; STG = 98304; QOFF = 131072; EXTRA = 131072
MAXOFF = 155648; SUMOFF = 160*1024 - 2048
SX, SK, SV, SWQ, SWO, SOUT, SWS, SDBG = 8, 12, 16, 20, 24, 28, 32, 36
sW, sB, sH, sT0, sT1, sT2, sT3 = 40, 41, 42, 43, 44, 45, 46
sKV, sXB, sC, sB2, sQH, sCT, sOB, sWN, sCNT = 47, 48, 49, 50, 51, 52, 53, 54, 55
sVb, sVl, sWo = 56, 57, 58
sKH = 5
sROT = 4; sR1 = 7; sXc = 63; sWc = 64; sWk = 65
sXm, sXs, sWq = 59, 60, 61
POFF = 0x800000
FOFF = 0xA00000
sTAG = 6
vTG = 122
def srd(r): return f"s[{r}:{r+3}]"
vKo = 2; vXo = [31]; vWq = 7; vL16 = 8; vStW = 9; vStR = 10
vXa = list(range(11,19)); vQw = 19; vVo = 20; vVr = [21,22,23,24]; vSl = [25,26]; vSr = [3,4,5,6]
vSt = 27; vStr = 28; vWo = 29
def S(a,j): return 32 + (a*6+j)*4
vM = 224; vLs = 230; vTmp = 236
def vr(b,n): return f"v[{b}:{b+n-1}]"
def ar(b,n): return f"a[{b}:{b+n-1}]"
stamps = []
def stamp(name):
    if STAMP is None: return
    if os.environ.get("FINE") and name in ("softmax_done","V3_ready","O_stored","poll_done","oproj_done"): return
    k = len(stamps); stamps.append(name)
    e(f"s_memrealtime s[{74+2*k}:{75+2*k}]")
    e("s_waitcnt lgkmcnt(0)")
def stamp_dump():
    if STAMP is None: return
    e(f"s_cmp_lg_u32 s{sW}, 0")
    e("s_cbranch_scc1 L_end")
    e("s_mov_b64 exec, 1")
    e(f"s_mov_b32 s{SWS+2}, 0x2000000")
    e(f"s_lshl_b32 s{sT1}, s2, 6")
    e(f"s_add_u32 s{sT1}, s{sT1}, 0x1800000")
    for k in range(len(stamps)):
        e(f"v_mov_b32 v30, s{74+2*k}")
        e(f"v_mov_b32 v31, {k*4}")
        e(f"buffer_store_dword v30, v31, {srd(SWS)}, s{sT1} offen")
        e("s_nop 1")
    L.append("; STAMPS " + ",".join(stamps))

class VM:
    n = 0
def vm(s):
    e(s); VM.n += 1; return VM.n
def wait_for(seq, extra=""):
    k = min(63, VM.n - seq)
    e(f"s_waitcnt vmcnt({k}){extra}")

def prologue():
    e("s_cmp_ge_u32 s2, 256")
    e("s_cbranch_scc1 L_end")
    stamp("start")
    e("s_load_dwordx16 s[56:71], s[0:1], 0")
    e("s_memrealtime s[6:7]")
    e("v_and_b32 v1, 63, v0")
    e("v_lshrrev_b32 v30, 6, v0")
    e("s_nop 0")
    e(f"v_readfirstlane_b32 s{sW}, v30")
    e(f"s_and_b32 s{sT0}, s2, 7")
    e(f"s_lshr_b32 s{sT1}, s2, 3")
    e(f"s_and_b32 s{sT2}, s{sT1}, 3")
    e(f"s_lshl_b32 s{sH}, s{sT0}, 2")
    e(f"s_add_u32 s{sH}, s{sH}, s{sT2}")
    e(f"s_lshr_b32 s{sB}, s{sT1}, 2")
    e(f"s_and_b32 s{sKH}, s{sT0}, 1")
    e(f"s_andn2_b32 s{sB2}, s{sT0}, 1")
    e(f"s_lshr_b32 s{sT3}, s{sT2}, 1")
    e(f"s_add_u32 s{sB2}, s{sB2}, s{sT3}")
    e(f"s_and_b32 s{sQH}, s{sT2}, 1")
    e(f"s_mov_b32 s{sCT}, s{sB}")
    e(f"s_lshl_b32 s{sROT}, s{sT2}, 1")
    e(f"s_add_u32 s{sROT}, s{sROT}, s{sCT}")
    e(f"s_lshl_b32 s{sROT}, s{sROT}, 1")
    e(f"s_and_b32 s{sROT}, s{sROT}, 15")
    e(f"s_lshl_b32 s{sKV}, s{sB}, 5")
    e(f"s_add_u32 s{sKV}, s{sKV}, s{sH}")
    e(f"s_lshl_b32 s{sKV}, s{sKV}, 17")
    e(f"s_lshl_b32 s{sT3}, s{sW}, 15")
    e(f"s_add_u32 s{sKV}, s{sKV}, s{sT3}")
    e(f"s_mul_i32 s{sXB}, s{sB}, 98304")
    e(f"s_add_u32 s{sWN}, s{sW}, 1")
    e(f"s_and_b32 s{sWN}, s{sWN}, 3")
    e(f"s_mov_b32 s{sC}, 0x3e0293ee")
    e("v_and_b32 v30, 15, v1")
    e("v_lshrrev_b32 v31, 4, v1")
    e(f"v_lshlrev_b32 v{vKo}, 8, v30")
    e(f"v_lshl_add_u32 v{vKo}, v31, 4, v{vKo}")
    e(f"v_lshlrev_b32 v{vL16}, 4, v1")
    e("s_waitcnt lgkmcnt(0)")
    e(f"s_or_b32 s{sTAG}, s{sTAG}, 1")
    e(f"s_add_u32 s{sR1}, s{sB}, s{sH}")
    sizes = [786432, 33554432, 33554432, 4194304, 4194304, 786432, 256, FOFF + 0x10000]
    regs = [SX, SK, SV, SWQ, SWO, SOUT, SDBG, SWS]
    for i,(r,sz) in enumerate(zip(regs,sizes)):
        e(f"s_mov_b32 s{r}, s{56+2*i}")
        e(f"s_and_b32 s{r+1}, s{57+2*i}, 0xffff")
        e(f"s_mov_b32 s{r+2}, {sz}")
        e(f"s_mov_b32 s{r+3}, 0x00020000")

kseq = {}; kn = [0]; TAGSEQ = [0]
def k1():
    if kn[0] >= 32: return
    a, s_ = kn[0]//4, kn[0]%4; kn[0] += 1
    if s_ == 0: e(f"s_add_u32 s{sCNT}, s{sKV}, {a*4096}")
    kseq[a] = vm(f"buffer_load_dwordx4 {ar((a*4+s_)*4,4)}, v{vKo}, {srd(SK)}, s{sCNT} offen offset:{s_*64}{NT}")
vseq = {}; vn = [0]
def v1():
    if vn[0] >= 32: return
    hf, i = vn[0]//16, vn[0]%16; vn[0] += 1
    if i == 0:
        e(f"s_lshr_b32 s{sVb}, s{sW}, 1")
        if hf == 0: e(f"s_xor_b32 s{sVb}, s{sVb}, 1")
        e(f"s_lshl_b32 s{sVb}, s{sVb}, 7")
        e(f"s_add_u32 s{sVb}, s{sVb}, s{sKV}")
    e(f"s_add_u32 m0, s{sVl}, {hf*16384 + i*1024}")
    e(f"s_add_u32 s{sCNT}, s{sVb}, {i*2048}")
    vseq[(hf,i//4)] = vm(f"buffer_load_dwordx4 v{vVo}, {srd(SV)}, s{sCNT} offen{NT} lds")
wn = [0]; WCAP = [56]; WSEQ = {}
def WR(i): return 224 + 4*i if i < 8 else 4*(i-8)
def w1():
    if wn[0] >= WCAP[0]: return
    i = wn[0]; wn[0] += 1
    if i % 4 == 0:
        e(f"s_add_u32 s{sWk}, s{sROT}, {i//4}")
        e(f"s_and_b32 s{sWk}, s{sWk}, 15")
        e(f"s_lshl_b32 s{sWk}, s{sWk}, 15")
        e(f"s_add_u32 s{sWk}, s{sWk}, s{sWo}")
    else: e(f"s_add_u32 s{sWk}, s{sWk}, 8192")
    WSEQ[i] = vm(f"buffer_load_dwordx4 {ar(WR(i),4)}, v{vWo}, {srd(SWO)}, s{sWk} offen")

def addr_setup():
    e(f"s_lshl_b32 s{sT1}, s{sW}, 14")
    e(f"s_add_u32 s{sT1}, s{sT1}, {STG}")
    c("staging write: cg*16384 + (32w + i/16)*64 + (i%4)*16")
    e("v_bfe_u32 v30, v1, 2, 2")
    e(f"v_lshlrev_b32 v{vStW}, 14, v30")
    e("v_lshrrev_b32 v30, 4, v1")
    e(f"v_lshl_add_u32 v{vStW}, v30, 6, v{vStW}")
    e("v_and_b32 v30, 3, v1")
    e(f"v_lshl_add_u32 v{vStW}, v30, 4, v{vStW}")
    e(f"s_lshl_b32 s{sT2}, s{sW}, 11")
    e(f"s_add_u32 s{sT2}, s{sT2}, {STG}")
    e(f"v_add_u32 v{vStW}, s{sT2}, v{vStW}")
    e("v_lshrrev_b32 v30, 5, v1")
    e("v_lshlrev_b32 v30, 3, v30")
    e("v_bfe_u32 v31, v1, 2, 2")
    e("v_add_u32 v30, v30, v31")
    e(f"v_lshlrev_b32 v{vStR}, 6, v30")
    e("v_bfe_u32 v30, v1, 4, 1")
    e(f"v_lshl_add_u32 v{vStR}, v30, 5, v{vStR}")
    e("v_and_b32 v30, 1, v1")
    e(f"v_lshl_add_u32 v{vStR}, v30, 4, v{vStR}")
    e("v_bfe_u32 v30, v1, 1, 1")
    e(f"v_lshl_add_u32 v{vStR}, v30, 3, v{vStR}")
    e(f"v_add_u32 v{vStR}, s{sT1}, v{vStR}")
    e("v_and_b32 v30, 31, v1")
    e("v_lshlrev_b32 v30, 8, v30")
    e("v_lshrrev_b32 v31, 5, v1")
    for lo in range(8):
        e(f"v_add_u32 v{vXa[lo]}, {2*lo}, v31")
        e(f"v_xor_b32 v{vXa[lo]}, v{vXa[lo]}, v1")
        e(f"v_and_b32 v{vXa[lo]}, 15, v{vXa[lo]}")
        e(f"v_lshl_add_u32 v{vXa[lo]}, v{vXa[lo]}, 4, v30")
        e(f"v_add_u32 v{112+lo}, 0xc000, v{vXa[lo]}")
    e("v_bfe_u32 v30, v1, 4, 1")
    e(f"v_lshlrev_b32 v{vQw}, 12, v30")
    e("v_and_b32 v30, 15, v1")
    e(f"v_lshl_add_u32 v{vQw}, v30, 4, v{vQw}")
    e("v_lshrrev_b32 v30, 5, v1")
    e(f"v_lshl_add_u32 v{vQw}, v30, 8, v{vQw}")
    e(f"s_lshl_b32 s{sT1}, s{sW}, 10")
    e(f"s_add_u32 s{sT1}, s{sT1}, {QOFF}")
    e(f"v_add_u32 v{vQw}, s{sT1}, v{vQw}")
    c("V dma: (i/8)*256 + (((i%8)/2 ^ ((i/16)&3))*2 + (i&1))*16 ; wo: (i/8)*1024 + (i%8)*16")
    e("v_lshrrev_b32 v30, 4, v1")
    e("v_lshlrev_b32 v30, 1, v30")
    e("v_xor_b32 v30, v30, v1")
    e("v_and_b32 v30, 7, v30")
    e("v_lshrrev_b32 v120, 3, v1")
    e(f"v_lshlrev_b32 v{vVo}, 8, v120")
    e(f"v_lshl_add_u32 v{vVo}, v30, 4, v{vVo}")
    e("v_and_b32 v30, 7, v1")
    e(f"v_lshlrev_b32 v{vWo}, 10, v120")
    e(f"v_lshl_add_u32 v{vWo}, v30, 4, v{vWo}")
    c("tr read base0: w*32768 + (lane>>2)*128 + (((lane>>3)&3)*32) + (lane&3)*8 ; blk b -> ^ b*32")
    e("v_lshrrev_b32 v30, 2, v1")
    e(f"v_lshlrev_b32 v{vVr[0]}, 7, v30")
    e("v_bfe_u32 v30, v1, 3, 2")
    e(f"v_lshl_add_u32 v{vVr[0]}, v30, 5, v{vVr[0]}")
    e("v_and_b32 v30, 3, v1")
    e(f"v_lshl_add_u32 v{vVr[0]}, v30, 3, v{vVr[0]}")
    e(f"s_lshl_b32 s{sVl}, s{sW}, 15")
    e(f"v_add_u32 v{vVr[0]}, s{sVl}, v{vVr[0]}")
    c("vVr[0..1]: group w^1|w^3 parity (blk 2*((w&1)^1)+j2); vVr[2..3]: own parity")
    e(f"s_and_b32 s{sT1}, s{sW}, 1")
    e(f"s_lshl_b32 s{sT1}, s{sT1}, 6")
    e(f"v_xor_b32 v{vVr[2]}, s{sT1}, v{vVr[0]}")
    e(f"v_xor_b32 v{vVr[3]}, 32, v{vVr[2]}")
    e(f"v_xor_b32 v{vVr[0]}, 64, v{vVr[2]}")
    e(f"v_xor_b32 v{vVr[1]}, 64, v{vVr[3]}")
    c("partial slots: own V region + extra")
    e(f"v_add_u32 v{vSl[0]}, s{sVl}, v{vL16}")
    e(f"s_lshl_b32 s{sT1}, s{sW}, 13")
    e(f"s_add_u32 s{sT1}, s{sT1}, {EXTRA}")
    e(f"v_add_u32 v{vSl[1]}, s{sT1}, v{vL16}")
    e(f"v_xor_b32 v{vSr[0]}, 0x18000, v{vSl[0]}")
    e(f"v_xor_b32 v{vSr[1]}, 0x10000, v{vSl[0]}")
    e(f"v_xor_b32 v{vSr[2]}, 0x4000, v{vSl[1]}")
    e(f"v_xor_b32 v{vSr[3]}, 0x8000, v{vSl[0]}")
    c("wo soffset: (kh*2048 + w*512)*1024 + ct*128")
    e(f"s_lshl_b32 s{sWo}, s{sKH}, 2")
    e(f"s_add_u32 s{sWo}, s{sWo}, s{sW}")
    e(f"s_lshl_b32 s{sWo}, s{sWo}, 19")
    e(f"s_lshl_b32 s{sT1}, s{sCT}, 7")
    e(f"s_add_u32 s{sWo}, s{sWo}, s{sT1}")
    e("v_and_b32 v30, 15, v1")
    e(f"v_lshlrev_b32 v{vStr}, 4, v30")
    e(f"v_add_u32 v{vStr}, {MAXOFF}, v{vStr}")
    e(f"s_lshl_b32 s{sT1}, s{sW}, 2")
    e(f"v_add_u32 v{vSt}, s{sT1}, v{vStr}")

ACC = 32; XF = 128; WF = 164
def qproj():
    c("x voffset: (4w+i/16)*1024 + ((i%16)^(4w+i/16))*16")
    e(f"s_lshl_b32 s{sT1}, s{sW}, 2")
    e("v_lshrrev_b32 v30, 4, v1")
    e(f"v_add_u32 v30, s{sT1}, v30")
    e("v_xor_b32 v29, v30, v1")
    e("v_and_b32 v29, 15, v29")
    e(f"v_lshlrev_b32 v{vXo[0]}, 10, v30")
    e(f"v_lshl_add_u32 v{vXo[0]}, v29, 4, v{vXo[0]}")
    e(f"s_lshl_b32 s{sXm}, s{sW}, 10")
    e("v_lshrrev_b32 v30, 4, v1")
    e(f"v_lshlrev_b32 v{vWq}, 13, v30")
    e("v_and_b32 v30, 15, v1")
    e(f"v_lshl_add_u32 v{vWq}, v30, 4, v{vWq}")
    e(f"s_lshl_b32 s{sWq}, s{sH}, 8")
    e(f"s_lshl_b32 s{sT1}, s{sW}, 18")
    e(f"s_add_u32 s{sWq}, s{sWq}, s{sT1}")
    xs = {}; wqs = {}
    def xl(ch, m):
        if m == 0:
            e(f"s_add_u32 s{sXc}, s{sR1}, {ch}")
            e(f"s_and_b32 s{sXc}, s{sXc}, {3 if ROT else 0}" if ROT else f"s_mov_b32 s{sXc}, {ch}")
            e(f"s_lshl_b32 s{sWc}, s{sXc}, 20")
            e(f"s_add_u32 s{sWc}, s{sWc}, s{sWq}")
            e(f"s_lshl_b32 s{sXc}, s{sXc}, 8")
            e(f"s_add_u32 s{sXc}, s{sXc}, s{sXB}")
        e(f"s_add_u32 m0, s{sXm}, {XOFF + ch*24576 + m*4096}")
        e(f"s_add_u32 s{sXs}, s{sXc}, {m*16384}")
        xs[ch] = vm(f"buffer_load_dwordx4 v{vXo[0]}, {srd(SX)}, s{sXs} offen lds")
    def wl(ch, i):
        k = ch*8 + i
        e(f"s_add_u32 s{sXs}, s{sWc}, {i*4*8192}")
        wqs[ch] = vm(f"buffer_load_dwordx4 {ar(128+4*k,4)}, v{vWq}, {srd(SWQ)}, s{sXs} offen")
    seqs = [[(xl,ch,m) for m in range(6)] + [(wl,ch,i) for i in range(8)] for ch in range(4)]
    def issue(q, n):
        for _ in range(n):
            if q: it = q.pop(0); it[0](it[1], it[2])
    c("WG0 wave0 publishes the launch tag")
    e(f"s_or_b32 s{sT0}, s2, s{sW}")
    e(f"s_cmp_lg_u32 s{sT0}, 0")
    e("s_cbranch_scc1 L_notag")
    e(f"v_mov_b32 v{vTG}, s{sTAG}")
    e(f"v_mov_b32 v{vTG+1}, 0")
    e("s_mov_b64 exec, 1")
    e(f"buffer_store_dword v{vTG}, v{vTG+1}, {srd(SDBG)}, 0 offen sc1")
    e("s_mov_b64 exec, -1")
    lab("L_notag")
    issue(seqs[0], 99)
    e(f"v_mov_b32 v121, v{vXo[0]}")
    vXo[0] = 121
    addr_setup()
    issue(seqs[1], 99)
    stamp("issued")
    def rd_frags(S_, buf):
        ch, s = S_//8, S_%8
        for u in range(2):
            e(f"ds_read_b64_tr_b16 {vr(WF+buf*4+u*2,2)}, v{vStR} offset:{(ch&1)*8192 + s*1024 + u*256}")
        for t3 in range(3):
            base = vXa[s] if ch < 2 else 112+s
            e(f"ds_read_b128 {vr(XF+buf*12+t3*4,4)}, v{base} offset:{(ch&1)*24576 + t3*8192}")
    def stage_w(ch, i):
        e(f"ds_write_b128 v{vStW}, {ar(128+(ch*8+i)*4,4)} offset:{(ch&1)*8192 + i*256}")
    wait_for(max(wqs[0], xs[0]))
    for i in range(8): stage_w(0, i)
    for ch in range(4):
        e("s_waitcnt lgkmcnt(0)")
        e("s_barrier")
        if ch == 0: stamp("x_ready")
        rd_frags(ch*8, 0); rd_frags(ch*8+1, 1)
        pend = 10
        q = [5, 5]
        for s in range(8):
            S_ = ch*8 + s; buf = s % 3
            if s < 6: rd_frags(S_+2, (s+2)%3); q.append(5)
            q.pop(0)
            e(f"s_waitcnt lgkmcnt({min(15, sum(q))})")
            for t3 in range(3):
                cin = "0" if S_ == 0 else vr(ACC+t3*16,16)
                e(f"v_mfma_f32_32x32x16_bf16 {vr(ACC+t3*16,16)}, {vr(WF+buf*4,4)}, {vr(XF+buf*12+t3*4,4)}, {cin}")
                if ch == 0: issue(seqs[2] if seqs[2] else seqs[3], 1)
                if ch == 1 and t3 != 1 and kn[0] < K1: k1()
                if ch == 2 and t3 == 0 and kn[0] < K2: k1()
                if ch == 3 and t3 == 0 and kn[0] < K3: k1()
            if ch == 0 and s == 7: issue(seqs[2], 99); issue(seqs[3], 99)
            if ch < 3 and s >= 4:
                if s == 4: wait_for(max(wqs[ch+1], xs[ch+1]))
                stage_w(ch+1, (s-4)*2); stage_w(ch+1, (s-4)*2+1)
                if q: q[-1] += 2
                else: q.append(2)
    e("s_barrier")
    stamp("qproj_done")
    nop(12)
    for t3 in range(3):
        for t in range(2):
            b0 = ACC + t3*16 + t*8
            for k in range(4):
                e(f"v_cvt_pk_bf16_f32 v{XF+(t3*2+t)*4+k}, v{b0+2*k}, v{b0+2*k+1}")
            e(f"ds_write_b128 v{vQw}, {vr(XF+(t3*2+t)*4,4)} offset:{t3*8192 + t*512}")
    for _ in range(4): k1()
    e("s_waitcnt lgkmcnt(0)")
    e("s_barrier")
    e(f"v_add_u32 v30, {QOFF}, v{vL16}")
    for j in range(6):
        for s in range(4):
            e(f"ds_read_b128 {ar(128+(j*4+s)*4,4)}, v30 offset:{(j*4+s)*1024}")

def xreduce(base, op):
    for sw in ("v_permlane32_swap_b32", "v_permlane16_swap_b32"):
        for j in range(6): e(f"v_mov_b32 v{vTmp+j}, v{base+j}")
        nop(2)
        for j in range(6): e(f"{sw} v{base+j}, v{vTmp+j}")
        nop(2)
        for j in range(6): e(f"{op} v{base+j}, v{base+j}, v{vTmp+j}")
def stat_read(off):
    for j in range(5):
        e(f"ds_read_b128 {vr(vTmp+j*4,4)}, v{vStr} offset:{off + j*256}")
    e(f"ds_read_b128 {vr(vXa[1],4)}, v{vStr} offset:{off + 5*256}")
    e("s_waitcnt lgkmcnt(0)")

def attention():
    for a in range(8):
        wait_for(kseq[a], " lgkmcnt(0)" if a == 0 else "")
        if a == 4:
            e("v_mov_b32 v7, 0")
            vm(f"buffer_load_dword v2, v7, {srd(SDBG)}, 0 offen sc1")
        for s in range(4):
            for j in range(6):
                cin = "0" if s == 0 else vr(S(a,j),4)
                e(f"v_mfma_f32_16x16x32_bf16 {vr(S(a,j),4)}, {ar((a*4+s)*4,4)}, {ar(128+(j*4+s)*4,4)}, {cin}")
                if j == 2:
                    if kn[0] < 32: k1()
                    elif s < VS: v1()
                if a > 0 and s in (1,2):
                    p = S(a-1,j) + (s-1)*2
                    if a == 1 and s == 1: e(f"v_max_f32 v{vM+j}, v{p}, v{p+1}")
                    else: e(f"v_max3_f32 v{vM+j}, v{vM+j}, v{p}, v{p+1}")
    nop(8)
    stamp("S_done")
    for j in range(6):
        e(f"v_max3_f32 v{vM+j}, v{vM+j}, v{S(7,j)}, v{S(7,j)+1}")
        e(f"v_max3_f32 v{vM+j}, v{vM+j}, v{S(7,j)+2}, v{S(7,j)+3}")
    xreduce(vM, "v_max_f32")
    for j in range(6): e(f"ds_write_b32 v{vSt}, v{vM+j} offset:{j*256}")
    e("s_waitcnt lgkmcnt(0)")
    e("s_barrier")
    stat_read(0)
    for j in range(6):
        b0 = vTmp + j*4 if j < 5 else vXa[1]
        e(f"v_max3_f32 v{vM+j}, v{b0}, v{b0+1}, v{b0+2}")
        e(f"v_max_f32 v{vM+j}, v{vM+j}, v{b0+3}")
        e(f"v_mul_f32 v{vM+j}, s{sC}, v{vM+j}")
    for j in range(6):
        for s in range(4):
            regs8 = [S(2*s,j)+i for i in range(4)] + [S(2*s+1,j)+i for i in range(4)]
            for r in regs8: e(f"v_fma_f32 v{r}, v{r}, s{sC}, -v{vM+j}")
            v1()
            for r in regs8: e(f"v_exp_f32 v{r}, v{r}")
            if WS2: w1()
            e("s_nop 0")
            if s == 0:
                e(f"v_add_f32 v{vLs+j}, v{regs8[0]}, v{regs8[1]}"); rest = regs8[2:]
            else: rest = regs8
            for r in rest: e(f"v_add_f32 v{vLs+j}, v{vLs+j}, v{r}")
            for k in range(4):
                e(f"v_cvt_pk_bf16_f32 v{S(2*s,j)+k}, v{regs8[2*k]}, v{regs8[2*k+1]}")
    xreduce(vLs, "v_add_f32")
    for j in range(6): e(f"ds_write_b32 v{vSt}, v{vLs+j} offset:{SUMOFF - MAXOFF + j*256}")
    e("s_waitcnt lgkmcnt(0)")
    e("s_barrier")
    stat_read(SUMOFF - MAXOFF)
    for j in range(6):
        b0 = vTmp + j*4 if j < 5 else vXa[1]
        e(f"v_add_f32 v{vLs+j}, v{b0}, v{b0+1}")
        e(f"v_add_f32 v{b0+2}, v{b0+2}, v{b0+3}")
        e(f"v_add_f32 v{vLs+j}, v{vLs+j}, v{b0+2}")
        e(f"v_rcp_f32 v{vLs+j}, v{vLs+j}")
    stamp("softmax_done")
    def vfr(hf, s, buf):
        for g4 in range(4):
            for u in range(2):
                e(f"ds_read_b64_tr_b16 {ar(VA+buf*16+g4*4+2*u,2)}, v{vVr[g4]} offset:{hf*16384 + s*4096 + u*2048}")
    def phase(hf, cinit):
        wait_for(vseq[(hf,0)])
        vfr(hf, 0, 0)
        for s in range(4):
            if s < 3:
                wait_for(vseq[(hf,s+1)])
                if s == 2 and hf == 1: stamp("V3_ready")
                vfr(hf, s+1, (s+1)&1)
                if hf == 1:
                    for _ in range(WP): w1()
                e("s_waitcnt lgkmcnt(8)")
            else: e("s_waitcnt lgkmcnt(0)")
            for g4 in range(4):
                for j in range(6):
                    d = ACCT(g4*6 + j)
                    cin = "0" if (s == 0 and not (cinit and g4 >= 2)) else vr(d,4)
                    e(f"v_mfma_f32_16x16x32_bf16 {vr(d,4)}, {ar(VA+(s&1)*16+g4*4,4)}, {vr(S(2*s,j),4)}, {cin}")
    while vn[0] < 32: v1()
    c("PV phase I: groups w^3 (tiles 0..11), w^2 (tiles 12..23)")
    phase(0, False)
    nop(4)
    for tt in range(24):
        if tt < 16: e(f"ds_write_b128 v{vSl[0]}, {vr(ACCT(tt),4)} offset:{tt*1024}")
        else: e(f"ds_write_b128 v{vSl[1]}, {vr(ACCT(tt),4)} offset:{(tt-16)*1024}")
    e("s_waitcnt lgkmcnt(0)")
    e("s_barrier")
    c("launch tag (fallback: poll until published)")
    e(f"v_readfirstlane_b32 s{sTAG}, v2")
    e(f"s_mov_b32 s{sCNT}, 0")
    lab("L_tagpoll")
    e(f"s_cmp_lg_u32 s{sTAG}, 0")
    e("s_cbranch_scc1 L_tagok")
    e(f"buffer_load_dword v2, v7, {srd(SDBG)}, 0 offen sc1")
    e("s_waitcnt vmcnt(0)")
    e(f"v_readfirstlane_b32 s{sTAG}, v2")
    e(f"s_add_u32 s{sCNT}, s{sCNT}, 1")
    e(f"s_cmp_lt_u32 s{sCNT}, 200000")
    e("s_cbranch_scc1 L_tagpoll")
    lab("L_tagok")
    c("own group init = partial(w^3 tiles 0..11) + partial(w^2 tiles 12..23)")
    for t in range(12):
        e(f"ds_read_b128 {vr(ACCT(12+t),4)}, v{vSr[0]} offset:{t*1024}")
        if t < 4: e(f"ds_read_b128 {vr(ACCT(t),4)}, v{vSr[1]} offset:{(12+t)*1024}")
        else: e(f"ds_read_b128 {vr(ACCT(t),4)}, v{vSr[2]} offset:{(t-4)*1024}")
    e("s_waitcnt lgkmcnt(0)")
    for t in range(12):
        for i in range(4): e(f"v_add_f32 v{ACCT(12+t)+i}, v{ACCT(12+t)+i}, v{ACCT(t)+i}")
    nop(2)
    c("PV phase II: groups w^1 (tiles 0..11, C=0), w (tiles 12..23)")
    phase(1, True)
    nop(4)
    for t in range(12):
        e(f"ds_write_b128 v{vSl[0]}, {vr(ACCT(t),4)} offset:{16384 + t*1024}")
    for _ in range(WE): w1()
    e("s_waitcnt lgkmcnt(0)")
    e("s_barrier")
    for t in range(12):
        e(f"ds_read_b128 {vr(ACCT(t),4)}, v{vSr[3]} offset:{16384 + t*1024}")
    e("s_waitcnt lgkmcnt(0)")
    for t in range(12):
        for i in range(4): e(f"v_add_f32 v{ACCT(12+t)+i}, v{ACCT(12+t)+i}, v{ACCT(t)+i}")
VA = 192
def ACCT(tt): return S(1 + 2*(tt//6), tt%6)
def poll_loop(lbl):
    e(f"s_mov_b32 s{sCNT}, 0")
    lab(lbl)
    e(f"buffer_load_dword v30, v31, {srd(SWS)}, s{sT0} offen sc1")
    e("s_waitcnt vmcnt(0)")
    e(f"v_cmp_ne_u32 vcc, s{sTAG}, v30")
    e(f"s_add_u32 s{sCNT}, s{sCNT}, 1")
    e("s_nop 3")
    e(f"s_cbranch_vccz {lbl}_done")
    e("s_sleep 2")
    e(f"s_cmp_lt_u32 s{sCNT}, 200000")
    e(f"s_cbranch_scc1 {lbl}")
    lab(lbl + "_done")
def flag_store():
    e(f"v_mov_b32 v30, s{sTAG}")
    e("v_mov_b32 v31, 0")
    e("s_mov_b64 exec, 1")
    e(f"buffer_store_dword v30, v31, {srd(SWS)}, s{sT0} offen sc1")
    e("s_mov_b64 exec, -1")
def outproj_g():
    f1p = [f"s_lshr_b32 s{sT0}, s{sH}, 4", f"s_lshl_b32 s{sT1}, s{sB}, 1", f"s_add_u32 s{sT0}, s{sT0}, s{sT1}", f"s_lshl_b32 s{sT0}, s{sT0}, 2"]
    f1c = [f"s_lshl_b32 s{sT1}, s{sB2}, 1", f"s_add_u32 s{sT0}, s{sKH}, s{sT1}", f"s_lshl_b32 s{sT0}, s{sT0}, 2"]
    c("normalize, pack, store O frags")
    e(f"s_lshl_b32 s{sT0}, s{sB}, 5")
    e(f"s_add_u32 s{sT0}, s{sT0}, s{sH}")
    e(f"s_lshl_b32 s{sT0}, s{sT0}, 2")
    e(f"s_add_u32 s{sT0}, s{sT0}, s{sW}")
    e(f"s_mul_i32 s{sT0}, s{sT0}, 6144")
    for j in range(6):
        for j2 in range(2):
            b0 = ACCT(12+j2*6+j)
            for i in range(4): e(f"v_mul_f32 v{b0+i}, v{b0+i}, v{vLs+j}")
        d = ACCT(j)
        for j2 in range(2):
            b0 = ACCT(12+j2*6+j)
            e(f"v_cvt_pk_bf16_f32 v{d+2*j2}, v{b0}, v{b0+1}")
            e(f"v_cvt_pk_bf16_f32 v{d+2*j2+1}, v{b0+2}, v{b0+3}")
        if j == 4: e(f"s_add_u32 s{sT0}, s{sT0}, 4096")
        ost = vm(f"buffer_store_dwordx4 {vr(d,4)}, v{vL16}, {srd(SWS)}, s{sT0} offen offset:{(j%4)*1024} sc1")
    WCAP[0] = 64
    for _ in range(WA): w1()
    wait_for(ost)
    e("s_barrier")
    stamp("O_stored")
    e(f"s_cmp_lg_u32 s{sW}, 0")
    e("s_cbranch_scc1 L_sig1")
    e(f"s_lshr_b32 s{sT0}, s{sH}, 4")
    e(f"s_lshl_b32 s{sT1}, s{sB}, 1")
    e(f"s_add_u32 s{sT0}, s{sT0}, s{sT1}")
    e(f"s_lshl_b32 s{sT0}, s{sT0}, 7")
    e(f"s_and_b32 s{sT1}, s{sH}, 15")
    e(f"s_lshl_b32 s{sT1}, s{sT1}, 2")
    e(f"s_add_u32 s{sT0}, s{sT0}, s{sT1}")
    e(f"s_add_u32 s{sT0}, s{sT0}, {FOFF}")
    flag_store()
    lab("L_sig1")
    WCAP[0] = 64
    while wn[0] < 64: w1()
    c("transpose wo via own 32K LDS region; write addr = w*32768 + (lane ^ (2*((lane>>4)&3)))*16")
    e("v_lshrrev_b32 v30, 4, v1")
    e("v_lshlrev_b32 v30, 1, v30")
    e("v_xor_b32 v30, v30, v1")
    e(f"v_lshl_add_u32 v{vWo}, v30, 4, s{sVl}")
    c("blk-ordered read bases: v3..v6 = base0 ^ jj*32")
    e(f"s_and_b32 s{sT1}, s{sW}, 1")
    e(f"s_lshl_b32 s{sT1}, s{sT1}, 6")
    e(f"v_xor_b32 v3, s{sT1}, v{vVr[2]}")
    e("v_xor_b32 v4, 32, v3"); e("v_xor_b32 v5, 64, v3"); e("v_xor_b32 v6, 0x60, v3")
    def FRG(ks, jj): return WR(ks*4 + jj)
    def wo_tr(half):
        for i in range(32):
            e(f"ds_write_b128 v{vWo}, {ar(WR(half*32+i),4)} offset:{i*1024}")
        e("s_waitcnt lgkmcnt(0)")
        for ks in range(8):
            for jj in range(4):
                for u in range(2):
                    e(f"ds_read_b64_tr_b16 {ar(FRG(half*8+ks,jj)+u*2,2)}, v{3+jj} offset:{ks*4096 + u*2048}")
        e("s_waitcnt lgkmcnt(0)")
    wait_for(WSEQ[31])
    wo_tr(0)
    e("s_waitcnt vmcnt(0)")
    e(f"s_cmp_lg_u32 s{sW}, 0")
    e("s_cbranch_scc1 L_poll1_done")
    e(f"s_lshl_b32 s{sT0}, s{sB2}, 1")
    e(f"s_add_u32 s{sT0}, s{sT0}, s{sKH}")
    e(f"s_lshl_b32 s{sT0}, s{sT0}, 7")
    e(f"s_add_u32 s{sT0}, s{sT0}, {FOFF}")
    e("v_and_b32 v31, 15, v1")
    e("v_lshlrev_b32 v31, 2, v31")
    poll_loop("L_poll1")
    e("s_barrier")
    stamp("poll_done")
    e(f"s_lshl_b32 s{sOB}, s{sB2}, 5")
    e(f"s_lshl_b32 s{sT0}, s{sKH}, 4")
    e(f"s_add_u32 s{sOB}, s{sOB}, s{sT0}")
    e(f"s_lshl_b32 s{sT0}, s{sW}, 2")
    e(f"s_add_u32 s{sOB}, s{sOB}, s{sT0}")
    e(f"s_mul_i32 s{sOB}, s{sOB}, 24576")
    e(f"s_mul_i32 s{sT0}, s{sQH}, 3072")
    e(f"s_add_u32 s{sOB}, s{sOB}, s{sT0}")
    OA = 200; oseq = {}; RING = 14
    def oload(ks):
        e(f"s_add_u32 s{sT0}, s{sROT}, {ks}")
        e(f"s_and_b32 s{sT0}, s{sT0}, 15")
        e(f"s_mul_i32 s{sT0}, s{sT0}, 6144")
        e(f"s_add_u32 s{sT0}, s{sT0}, s{sOB}")
        for jq in range(3):
            oseq[ks] = vm(f"buffer_load_dwordx4 {vr(32 + ((ks%RING)*3+jq)*4,4)}, v{vL16}, {srd(SWS)}, s{sT0} offen offset:{jq*1024} sc1")
    for ks in range(OPRE): oload(ks)
    wo_tr(1)
    for ks in range(16):
        wait_for(oseq[ks])
        for jq in range(3):
            for jj in range(4):
                d = OA + (jj*3+jq)*4
                cin = "0" if ks == 0 else vr(d,4)
                e(f"v_mfma_f32_16x16x32_bf16 {vr(d,4)}, {ar(FRG(ks,jj),4)}, {vr(32+((ks%RING)*3+jq)*4,4)}, {cin}")
            if jq == 0 and ks + OPRE < 16: oload(ks+OPRE)
    nop(8)
    stamp("oproj_done")
    c("cross-wave reduce: wave w sums n16 tile jj=w (3 q tiles)")
    e(f"s_mul_i32 s{sT1}, s{sW}, 12288")
    e(f"v_add_u32 v30, s{sT1}, v{vL16}")
    e("s_barrier")
    for t in range(12):
        e(f"ds_write_b128 v30, {vr(OA+t*4,4)} offset:{t*1024}")
    e("s_waitcnt lgkmcnt(0)")
    e("s_barrier")
    e(f"s_mul_i32 s{sT1}, s{sW}, 3072")
    e(f"v_add_u32 v30, s{sT1}, v{vL16}")
    for ww in range(4):
        for jq in range(3):
            e(f"ds_read_b128 {vr(32+(ww*3+jq)*4,4)}, v30 offset:{ww*12288 + jq*1024}")
    e("s_waitcnt lgkmcnt(0)")
    for r in range(12):
        e(f"v_add_f32 v{32+r}, v{32+r}, v{44+r}")
        e(f"v_add_f32 v{56+r}, v{56+r}, v{68+r}")
        e(f"v_add_f32 v{32+r}, v{32+r}, v{56+r}")
    c("waves with (w>>1) != kh send their tile to the partner; others receive")
    e(f"s_lshr_b32 s{sT0}, s{sW}, 1")
    e(f"s_and_b32 s{sT2}, s{sW}, 1")
    e(f"s_lshl_b32 s{sT2}, s{sT2}, 12")
    e(f"s_cmp_eq_u32 s{sT0}, s{sKH}")
    e("s_cbranch_scc1 L_recv")
    e(f"s_lshl_b32 s{sT1}, s2, 13")
    e(f"s_add_u32 s{sT1}, s{sT1}, s{sT2}")
    e(f"s_add_u32 s{sT1}, s{sT1}, {POFF}")
    for g_ in range(4):
        for i in range(3): e(f"v_mov_b32 v{80+g_*4+i}, v{32+g_*3+i}")
        e(f"v_mov_b32 v{83+g_*4}, s{sTAG}")
        e(f"buffer_store_dwordx4 {vr(80+g_*4,4)}, v{vL16}, {srd(SWS)}, s{sT1} offen offset:{g_*1024} sc1")
    e("s_branch L_fin")
    lab("L_recv")
    e(f"s_xor_b32 s{sT3}, s2, 1")
    e(f"s_lshl_b32 s{sT3}, s{sT3}, 13")
    e(f"s_add_u32 s{sT3}, s{sT3}, s{sT2}")
    e(f"s_add_u32 s{sT3}, s{sT3}, {POFF}")
    c("out offset = ((b2*96 + 48qh + 16jq + q)*512 + 64ct + 16w + 4g')*2")
    e(f"s_mul_i32 s{sT0}, s{sB2}, 96")
    e(f"s_mul_i32 s{sT1}, s{sQH}, 48")
    e(f"s_add_u32 s{sT0}, s{sT0}, s{sT1}")
    e(f"s_lshl_b32 s{sT0}, s{sT0}, 10")
    e(f"s_lshl_b32 s{sT1}, s{sCT}, 7")
    e(f"s_add_u32 s{sT0}, s{sT0}, s{sT1}")
    e(f"s_lshl_b32 s{sT1}, s{sW}, 5")
    e(f"s_add_u32 s{sT0}, s{sT0}, s{sT1}")
    e("v_and_b32 v31, 15, v1")
    e("v_lshlrev_b32 v31, 10, v31")
    e("v_lshrrev_b32 v2, 4, v1")
    e("v_lshl_add_u32 v31, v2, 3, v31")
    e(f"s_mov_b32 s{sCNT}, 0")
    lab("L_poll2")
    for g_ in range(4):
        e(f"buffer_load_dwordx4 {vr(80+g_*4,4)}, v{vL16}, {srd(SWS)}, s{sT3} offen offset:{g_*1024} sc1")
    e("s_waitcnt vmcnt(0)")
    e("v_xor_b32 v2, v83, v87")
    e("v_xor_b32 v3, v91, v95")
    e(f"v_xor_b32 v4, s{sTAG}, v83")
    e("v_xor_b32 v5, v87, v91")
    e("v_or_b32 v2, v2, v3")
    e("v_or3_b32 v2, v2, v4, v5")
    e("v_cmp_ne_u32 vcc, 0, v2")
    e(f"s_add_u32 s{sCNT}, s{sCNT}, 1")
    e("s_nop 3")
    e("s_cbranch_vccz L_poll2_done")
    e("s_sleep 1")
    e(f"s_cmp_lt_u32 s{sCNT}, 200000")
    e("s_cbranch_scc1 L_poll2")
    lab("L_poll2_done")
    for r in range(12): e(f"v_add_f32 v{32+r}, v{32+r}, v{80+(r//3)*4+r%3}")
    for jq in range(3):
        e(f"v_cvt_pk_bf16_f32 v{64+jq*2}, v{32+jq*4}, v{33+jq*4}")
        e(f"v_cvt_pk_bf16_f32 v{65+jq*2}, v{34+jq*4}, v{35+jq*4}")
        e(f"buffer_store_dwordx2 {vr(64+jq*2,2)}, v31, {srd(SOUT)}, s{sT0} offen")
        e(f"s_add_u32 s{sT0}, s{sT0}, 16384")
    lab("L_fin")

prologue(); qproj(); attention(); outproj_g()
stamp("end"); stamp_dump()
lab("L_end"); e("s_endpgm")
hdr = open("cdna_kernels/%s.s.ref" % NAME).read().split("; @launch")[0]
out = hdr + "; @launch grid=(256,1,1) block=(256,1,1) lds=163840\n"
out += f""".amdgcn_target "amdgcn-amd-amdhsa--gfx950"
.text
.globl {NAME}_kernel
.p2align 8
.type {NAME}_kernel,@function
{NAME}_kernel:
""" + "\n".join(L) + f"""
.section .rodata,"a"
.p2align 6
.amdhsa_kernel {NAME}_kernel
  .amdhsa_next_free_vgpr 512
  .amdhsa_next_free_sgpr 102
  .amdhsa_accum_offset 256
  .amdhsa_group_segment_fixed_size 0
  .amdhsa_kernarg_size 64
  .amdhsa_user_sgpr_count 2
  .amdhsa_user_sgpr_kernarg_segment_ptr 1
  .amdhsa_system_sgpr_workgroup_id_x 1
.end_amdhsa_kernel
"""
dst = sys.argv[1] if len(sys.argv) > 1 else "cdna_kernels/%s.s" % NAME
open(dst, "w").write(out)
print("wrote", dst, len(L), "lines")
```

```python
import sys, os
L = []
def e(s): L.append("    " + s)
def lab(s): L.append(s + ":")
def c(s): L.append("    ; " + s)
def nop(n):
    while n > 0:
        k = min(n, 16); e(f"s_nop {k-1}"); n -= k
NAME = "standalone__gqa_block_cached__near_ridge"
STAMP = os.environ.get("STAMP")
VPRE = int(os.environ.get("VPRE", "4"))
NT = os.environ.get("NT", " nt")
K1 = int(os.environ.get("K1", "12"))
K2 = int(os.environ.get("K2", "12"))
K3 = int(os.environ.get("K3", "16"))
VS = int(os.environ.get("VS", "2"))
WP = int(os.environ.get("WP", "8"))
ROT = int(os.environ.get("ROT", "1"))
WE = int(os.environ.get("WE", "0"))
OPRE = int(os.environ.get("OPRE", "5"))
WA = int(os.environ.get("WA", "10"))
WS2 = int(os.environ.get("WS2", "0"))
KPRE = int(os.environ.get("KPRE", "4"))
XOFF = 0; STG = 98304; QOFF = 131072; EXTRA = 131072
MAXOFF = 155648; SUMOFF = 160*1024 - 2048
SX, SK, SV, SWQ, SWO, SOUT, SWS, SDBG = 8, 12, 16, 20, 24, 28, 32, 36
sW, sB, sH, sT0, sT1, sT2, sT3 = 40, 41, 42, 43, 44, 45, 46
sKV, sXB, sC, sB2, sQH, sCT, sOB, sWN, sCNT = 47, 48, 49, 50, 51, 52, 53, 54, 55
sVb, sVl, sWo = 56, 57, 58
sKH = 5
sROT = 4; sR1 = 7; sXc = 63; sWc = 64; sWk = 65
sXm, sXs, sWq = 59, 60, 61
POFF = 0x800000
FOFF = 0xA00000
WTOFF = 0xC00000
sTAG = 6
vTG = 122
def srd(r): return f"s[{r}:{r+3}]"
vKo = 2; vXo = [31]; vWq = 7; vL16 = 8; vStW = 9; vStR = 10
vXa = list(range(11,19)); vQw = 19; vVo = 20; vVr = [21,22,23,24]; vSl = [25,26]; vSr = [3,4,5,6]
vSt = 27; vStr = 28; vWo = 29
def S(a,j): return 32 + (a*6+j)*4
vM = 224; vLs = 230; vTmp = 236
def vr(b,n): return f"v[{b}:{b+n-1}]"
def ar(b,n): return f"a[{b}:{b+n-1}]"
stamps = []
def stamp(name):
    if STAMP is None: return
    if os.environ.get("FINE") and name in ("softmax_done","V3_ready","O_stored","poll_done","oproj_done"): return
    k = len(stamps); stamps.append(name)
    e(f"s_memrealtime s[{74+2*k}:{75+2*k}]")
    e("s_waitcnt lgkmcnt(0)")
def stamp_dump():
    if STAMP is None: return
    e(f"s_cmp_lg_u32 s{sW}, 0")
    e("s_cbranch_scc1 L_end")
    e("s_mov_b64 exec, 1")
    e(f"s_mov_b32 s{SWS+2}, 0x2000000")
    e(f"s_lshl_b32 s{sT1}, s2, 6")
    e(f"s_add_u32 s{sT1}, s{sT1}, 0x1800000")
    for k in range(len(stamps)):
        e(f"v_mov_b32 v30, s{74+2*k}")
        e(f"v_mov_b32 v31, {k*4}")
        e(f"buffer_store_dword v30, v31, {srd(SWS)}, s{sT1} offen")
        e("s_nop 1")
    L.append("; STAMPS " + ",".join(stamps))

class VM:
    n = 0
def vm(s):
    e(s); VM.n += 1; return VM.n
def wait_for(seq, extra=""):
    k = min(63, VM.n - seq)
    e(f"s_waitcnt vmcnt({k}){extra}")

def prologue():
    e("s_cmp_ge_u32 s2, 256")
    e("s_cbranch_scc1 L_end")
    stamp("start")
    e("s_load_dwordx16 s[56:71], s[0:1], 0")
    e("s_memrealtime s[6:7]")
    e("v_and_b32 v1, 63, v0")
    e("v_lshrrev_b32 v30, 6, v0")
    e("s_nop 0")
    e(f"v_readfirstlane_b32 s{sW}, v30")
    e(f"s_and_b32 s{sT0}, s2, 7")
    e(f"s_lshr_b32 s{sT1}, s2, 3")
    e(f"s_and_b32 s{sT2}, s{sT1}, 3")
    e(f"s_lshl_b32 s{sH}, s{sT0}, 2")
    e(f"s_add_u32 s{sH}, s{sH}, s{sT2}")
    e(f"s_lshr_b32 s{sB}, s{sT1}, 2")
    e(f"s_and_b32 s{sKH}, s{sT0}, 1")
    e(f"s_andn2_b32 s{sB2}, s{sT0}, 1")
    e(f"s_lshr_b32 s{sT3}, s{sT2}, 1")
    e(f"s_add_u32 s{sB2}, s{sB2}, s{sT3}")
    e(f"s_and_b32 s{sQH}, s{sT2}, 1")
    e(f"s_mov_b32 s{sCT}, s{sB}")
    e(f"s_lshl_b32 s{sROT}, s{sT2}, 1")
    e(f"s_add_u32 s{sROT}, s{sROT}, s{sCT}")
    e(f"s_lshl_b32 s{sROT}, s{sROT}, 1")
    e(f"s_and_b32 s{sROT}, s{sROT}, 15")
    e(f"s_lshl_b32 s{sKV}, s{sB}, 5")
    e(f"s_add_u32 s{sKV}, s{sKV}, s{sH}")
    e(f"s_lshl_b32 s{sKV}, s{sKV}, 17")
    e(f"s_lshl_b32 s{sT3}, s{sW}, 15")
    e(f"s_add_u32 s{sKV}, s{sKV}, s{sT3}")
    e(f"s_mul_i32 s{sXB}, s{sB}, 98304")
    e(f"s_add_u32 s{sWN}, s{sW}, 1")
    e(f"s_and_b32 s{sWN}, s{sWN}, 3")
    e(f"s_mov_b32 s{sC}, 0x3e0293ee")
    e("v_and_b32 v30, 15, v1")
    e("v_lshrrev_b32 v31, 4, v1")
    e(f"v_lshlrev_b32 v{vKo}, 8, v30")
    e(f"v_lshl_add_u32 v{vKo}, v31, 4, v{vKo}")
    e(f"v_lshlrev_b32 v{vL16}, 4, v1")
    e("s_waitcnt lgkmcnt(0)")
    e(f"s_or_b32 s{sTAG}, s{sTAG}, 1")
    e(f"s_add_u32 s{sR1}, s{sB}, s{sH}")
    sizes = [786432, 33554432, 33554432, 4194304, 4194304, 786432, 256, WTOFF + 0x400000]
    regs = [SX, SK, SV, SWQ, SWO, SOUT, SDBG, SWS]
    for i,(r,sz) in enumerate(zip(regs,sizes)):
        e(f"s_mov_b32 s{r}, s{56+2*i}")
        e(f"s_and_b32 s{r+1}, s{57+2*i}, 0xffff")
        e(f"s_mov_b32 s{r+2}, {sz}")
        e(f"s_mov_b32 s{r+3}, 0x00020000")

kseq = {}; kn = [0]; TAGSEQ = [0]; PST = [0]
def k1():
    if kn[0] >= 32: return
    a, s_ = kn[0]//4, kn[0]%4; kn[0] += 1
    if s_ == 0: e(f"s_add_u32 s{sCNT}, s{sKV}, {a*4096}")
    kseq[a] = vm(f"buffer_load_dwordx4 {ar((a*4+s_)*4,4)}, v{vKo}, {srd(SK)}, s{sCNT} offen offset:{s_*64}{NT}")
vseq = {}; vn = [0]
def v1():
    if vn[0] >= 32: return
    hf, i = vn[0]//16, vn[0]%16; vn[0] += 1
    if hf == 1 and i == 4:
        e(f"s_lshl_b32 s{sWk}, s{sCT}, 7")
        e(f"s_lshl_b32 s{sCNT}, s{sKH}, 6")
        e(f"s_add_u32 s{sWk}, s{sWk}, s{sCNT}")
        e(f"s_add_u32 s{sXc}, s{sWk}, {FOFF + 4096}")
        e("v_and_b32 v19, 15, v1")
        e("v_lshlrev_b32 v19, 2, v19")
        vm(f"buffer_load_dword v7, v19, {srd(SWS)}, s{sXc} offen sc1")
    if i == 0:
        e(f"s_lshr_b32 s{sVb}, s{sW}, 1")
        if hf == 0: e(f"s_xor_b32 s{sVb}, s{sVb}, 1")
        e(f"s_lshl_b32 s{sVb}, s{sVb}, 7")
        e(f"s_add_u32 s{sVb}, s{sVb}, s{sKV}")
    e(f"s_add_u32 m0, s{sVl}, {hf*16384 + i*1024}")
    e(f"s_add_u32 s{sCNT}, s{sVb}, {i*2048}")
    vseq[(hf,i//4)] = vm(f"buffer_load_dwordx4 v{vVo}, {srd(SV)}, s{sCNT} offen{NT} lds")
wn = [0]; WCAP = [56]; WSEQ = {}
def WR(i): return 224 + 4*i if i < 8 else 4*(i-8)
def w1():
    if wn[0] >= WCAP[0]: return
    i = wn[0]; wn[0] += 1
    if i % 4 == 0:
        e(f"s_add_u32 s{sWk}, s{sROT}, {i//4}")
        e(f"s_and_b32 s{sWk}, s{sWk}, 15")
        e(f"s_lshl_b32 s{sWk}, s{sWk}, 12")
        e(f"s_add_u32 s{sWk}, s{sWk}, s{sWo}")
    WSEQ[i] = vm(f"buffer_load_dwordx4 {ar(WR(i),4)}, v{vL16}, {srd(SWS)}, s{sWk} offen offset:{(i%4)*1024} sc1")

def addr_setup():
    e(f"s_lshl_b32 s{sT1}, s{sW}, 14")
    e(f"s_add_u32 s{sT1}, s{sT1}, {STG}")
    c("staging write: cg*16384 + (32w + i/16)*64 + (i%4)*16")
    e("v_bfe_u32 v30, v1, 2, 2")
    e(f"v_lshlrev_b32 v{vStW}, 14, v30")
    e("v_lshrrev_b32 v30, 4, v1")
    e(f"v_lshl_add_u32 v{vStW}, v30, 6, v{vStW}")
    e("v_and_b32 v30, 3, v1")
    e(f"v_lshl_add_u32 v{vStW}, v30, 4, v{vStW}")
    e(f"s_lshl_b32 s{sT2}, s{sW}, 11")
    e(f"s_add_u32 s{sT2}, s{sT2}, {STG}")
    e(f"v_add_u32 v{vStW}, s{sT2}, v{vStW}")
    e("v_lshrrev_b32 v30, 5, v1")
    e("v_lshlrev_b32 v30, 3, v30")
    e("v_bfe_u32 v31, v1, 2, 2")
    e("v_add_u32 v30, v30, v31")
    e(f"v_lshlrev_b32 v{vStR}, 6, v30")
    e("v_bfe_u32 v30, v1, 4, 1")
    e(f"v_lshl_add_u32 v{vStR}, v30, 5, v{vStR}")
    e("v_and_b32 v30, 1, v1")
    e(f"v_lshl_add_u32 v{vStR}, v30, 4, v{vStR}")
    e("v_bfe_u32 v30, v1, 1, 1")
    e(f"v_lshl_add_u32 v{vStR}, v30, 3, v{vStR}")
    e(f"v_add_u32 v{vStR}, s{sT1}, v{vStR}")
    e("v_and_b32 v30, 31, v1")
    e("v_lshlrev_b32 v30, 8, v30")
    e("v_lshrrev_b32 v31, 5, v1")
    for lo in range(8):
        e(f"v_add_u32 v{vXa[lo]}, {2*lo}, v31")
        e(f"v_xor_b32 v{vXa[lo]}, v{vXa[lo]}, v1")
        e(f"v_and_b32 v{vXa[lo]}, 15, v{vXa[lo]}")
        e(f"v_lshl_add_u32 v{vXa[lo]}, v{vXa[lo]}, 4, v30")
        e(f"v_add_u32 v{112+lo}, 0xc000, v{vXa[lo]}")
    e("v_bfe_u32 v30, v1, 4, 1")
    e(f"v_lshlrev_b32 v{vQw}, 12, v30")
    e("v_and_b32 v30, 15, v1")
    e(f"v_lshl_add_u32 v{vQw}, v30, 4, v{vQw}")
    e("v_lshrrev_b32 v30, 5, v1")
    e(f"v_lshl_add_u32 v{vQw}, v30, 8, v{vQw}")
    e(f"s_lshl_b32 s{sT1}, s{sW}, 10")
    e(f"s_add_u32 s{sT1}, s{sT1}, {QOFF}")
    e(f"v_add_u32 v{vQw}, s{sT1}, v{vQw}")
    c("V dma: (i/8)*256 + (((i%8)/2 ^ ((i/16)&3))*2 + (i&1))*16 ; wo: (i/8)*1024 + (i%8)*16")
    e("v_lshrrev_b32 v30, 4, v1")
    e("v_lshlrev_b32 v30, 1, v30")
    e("v_xor_b32 v30, v30, v1")
    e("v_and_b32 v30, 7, v30")
    e("v_lshrrev_b32 v120, 3, v1")
    e(f"v_lshlrev_b32 v{vVo}, 8, v120")
    e(f"v_lshl_add_u32 v{vVo}, v30, 4, v{vVo}")
    e("v_and_b32 v30, 7, v1")
    e(f"v_lshlrev_b32 v{vWo}, 10, v120")
    e(f"v_lshl_add_u32 v{vWo}, v30, 4, v{vWo}")
    c("tr read base0: w*32768 + (lane>>2)*128 + (((lane>>3)&3)*32) + (lane&3)*8 ; blk b -> ^ b*32")
    e("v_lshrrev_b32 v30, 2, v1")
    e(f"v_lshlrev_b32 v{vVr[0]}, 7, v30")
    e("v_bfe_u32 v30, v1, 3, 2")
    e(f"v_lshl_add_u32 v{vVr[0]}, v30, 5, v{vVr[0]}")
    e("v_and_b32 v30, 3, v1")
    e(f"v_lshl_add_u32 v{vVr[0]}, v30, 3, v{vVr[0]}")
    e(f"s_lshl_b32 s{sVl}, s{sW}, 15")
    e(f"v_add_u32 v{vVr[0]}, s{sVl}, v{vVr[0]}")
    c("vVr[0..1]: group w^1|w^3 parity (blk 2*((w&1)^1)+j2); vVr[2..3]: own parity")
    e(f"s_and_b32 s{sT1}, s{sW}, 1")
    e(f"s_lshl_b32 s{sT1}, s{sT1}, 6")
    e(f"v_xor_b32 v{vVr[2]}, s{sT1}, v{vVr[0]}")
    e(f"v_xor_b32 v{vVr[3]}, 32, v{vVr[2]}")
    e(f"v_xor_b32 v{vVr[0]}, 64, v{vVr[2]}")
    e(f"v_xor_b32 v{vVr[1]}, 64, v{vVr[3]}")
    c("partial slots: own V region + extra")
    e(f"v_add_u32 v{vSl[0]}, s{sVl}, v{vL16}")
    e(f"s_lshl_b32 s{sT1}, s{sW}, 13")
    e(f"s_add_u32 s{sT1}, s{sT1}, {EXTRA}")
    e(f"v_add_u32 v{vSl[1]}, s{sT1}, v{vL16}")
    e(f"v_xor_b32 v{vSr[0]}, 0x18000, v{vSl[0]}")
    e(f"v_xor_b32 v{vSr[1]}, 0x10000, v{vSl[0]}")
    e(f"v_xor_b32 v{vSr[2]}, 0x4000, v{vSl[1]}")
    e(f"v_xor_b32 v{vSr[3]}, 0x8000, v{vSl[0]}")
    c("woT base: WTOFF + (ct*128 + kh*64 + w*16)*4096")
    e(f"s_lshl_b32 s{sWo}, s{sCT}, 3")
    e(f"s_lshl_b32 s{sT1}, s{sKH}, 2")
    e(f"s_add_u32 s{sWo}, s{sWo}, s{sT1}")
    e(f"s_add_u32 s{sWo}, s{sWo}, s{sW}")
    e(f"s_lshl_b32 s{sWo}, s{sWo}, 16")
    e(f"s_add_u32 s{sWo}, s{sWo}, {WTOFF}")
    e("v_and_b32 v30, 15, v1")
    e(f"v_lshlrev_b32 v{vStr}, 4, v30")
    e(f"v_add_u32 v{vStr}, {MAXOFF}, v{vStr}")
    e(f"s_lshl_b32 s{sT1}, s{sW}, 2")
    e(f"v_add_u32 v{vSt}, s{sT1}, v{vStr}")

ACC = 32; XF = 128; WF = 164
def qproj():
    c("x voffset: (4w+i/16)*1024 + ((i%16)^(4w+i/16))*16")
    e(f"s_lshl_b32 s{sT1}, s{sW}, 2")
    e("v_lshrrev_b32 v30, 4, v1")
    e(f"v_add_u32 v30, s{sT1}, v30")
    e("v_xor_b32 v29, v30, v1")
    e("v_and_b32 v29, 15, v29")
    e(f"v_lshlrev_b32 v{vXo[0]}, 10, v30")
    e(f"v_lshl_add_u32 v{vXo[0]}, v29, 4, v{vXo[0]}")
    e(f"s_lshl_b32 s{sXm}, s{sW}, 10")
    e("v_lshrrev_b32 v30, 4, v1")
    e(f"v_lshlrev_b32 v{vWq}, 13, v30")
    e("v_and_b32 v30, 15, v1")
    e(f"v_lshl_add_u32 v{vWq}, v30, 4, v{vWq}")
    e(f"s_lshl_b32 s{sWq}, s{sH}, 8")
    e(f"s_lshl_b32 s{sT1}, s{sW}, 18")
    e(f"s_add_u32 s{sWq}, s{sWq}, s{sT1}")
    xs = {}; wqs = {}
    def xl(ch, m):
        if m == 0:
            e(f"s_add_u32 s{sXc}, s{sR1}, {ch}")
            e(f"s_and_b32 s{sXc}, s{sXc}, {3 if ROT else 0}" if ROT else f"s_mov_b32 s{sXc}, {ch}")
            e(f"s_lshl_b32 s{sWc}, s{sXc}, 20")
            e(f"s_add_u32 s{sWc}, s{sWc}, s{sWq}")
            e(f"s_lshl_b32 s{sXc}, s{sXc}, 8")
            e(f"s_add_u32 s{sXc}, s{sXc}, s{sXB}")
        e(f"s_add_u32 m0, s{sXm}, {XOFF + ch*24576 + m*4096}")
        e(f"s_add_u32 s{sXs}, s{sXc}, {m*16384}")
        xs[ch] = vm(f"buffer_load_dwordx4 v{vXo[0]}, {srd(SX)}, s{sXs} offen lds")
    def wl(ch, i):
        k = ch*8 + i
        e(f"s_add_u32 s{sXs}, s{sWc}, {i*4*8192}")
        wqs[ch] = vm(f"buffer_load_dwordx4 {ar(128+4*k,4)}, v{vWq}, {srd(SWQ)}, s{sXs} offen")
    seqs = [[(xl,ch,m) for m in range(6)] + [(wl,ch,i) for i in range(8)] for ch in range(4)]
    def issue(q, n):
        for _ in range(n):
            if q: it = q.pop(0); it[0](it[1], it[2])
    c("WG0 wave0 publishes the launch tag")
    e(f"s_or_b32 s{sT0}, s2, s{sW}")
    e(f"s_cmp_lg_u32 s{sT0}, 0")
    e("s_cbranch_scc1 L_notag")
    e(f"v_mov_b32 v{vTG}, s{sTAG}")
    e(f"v_mov_b32 v{vTG+1}, 0")
    e("s_mov_b64 exec, 1")
    e(f"buffer_store_dword v{vTG}, v{vTG+1}, {srd(SDBG)}, 0 offen sc1")
    e("s_mov_b64 exec, -1")
    lab("L_notag")
    issue(seqs[0], 99)
    e(f"v_mov_b32 v121, v{vXo[0]}")
    vXo[0] = 121
    addr_setup()
    issue(seqs[1], 99)
    stamp("issued")
    def rd_frags(S_, buf):
        ch, s = S_//8, S_%8
        for u in range(2):
            e(f"ds_read_b64_tr_b16 {vr(WF+buf*4+u*2,2)}, v{vStR} offset:{(ch&1)*8192 + s*1024 + u*256}")
        for t3 in range(3):
            base = vXa[s] if ch < 2 else 112+s
            e(f"ds_read_b128 {vr(XF+buf*12+t3*4,4)}, v{base} offset:{(ch&1)*24576 + t3*8192}")
    def stage_w(ch, i):
        e(f"ds_write_b128 v{vStW}, {ar(128+(ch*8+i)*4,4)} offset:{(ch&1)*8192 + i*256}")
    wait_for(max(wqs[0], xs[0]))
    for i in range(8): stage_w(0, i)
    for ch in range(4):
        e("s_waitcnt lgkmcnt(0)")
        e("s_barrier")
        if ch == 0: stamp("x_ready")
        rd_frags(ch*8, 0); rd_frags(ch*8+1, 1)
        pend = 10
        q = [5, 5]
        for s in range(8):
            S_ = ch*8 + s; buf = s % 3
            if s < 6: rd_frags(S_+2, (s+2)%3); q.append(5)
            q.pop(0)
            e(f"s_waitcnt lgkmcnt({min(15, sum(q))})")
            for t3 in range(3):
                cin = "0" if S_ == 0 else vr(ACC+t3*16,16)
                e(f"v_mfma_f32_32x32x16_bf16 {vr(ACC+t3*16,16)}, {vr(WF+buf*4,4)}, {vr(XF+buf*12+t3*4,4)}, {cin}")
                if ch == 0: issue(seqs[2] if seqs[2] else seqs[3], 1)
                if ch == 1 and t3 != 1 and kn[0] < K1: k1()
                if ch == 2 and t3 == 0 and kn[0] < K2: k1()
                if ch == 3 and t3 == 0 and kn[0] < K3: k1()
            if ch == 0 and s == 7:
                issue(seqs[2], 99); issue(seqs[3], 99)
                c("wo piece raw: rows (id>>3)*128 + 32w + 8i + lane/8, cols (id&7)*64")
                e(f"s_lshr_b32 s{sT0}, s2, 3")
                e(f"s_lshl_b32 s{sT0}, s{sT0}, 2")
                e(f"s_add_u32 s{sT0}, s{sT0}, s{sW}")
                e(f"s_lshl_b32 s{sT0}, s{sT0}, 15")
                e(f"s_and_b32 s{sT1}, s2, 7")
                e(f"s_lshl_b32 s{sT1}, s{sT1}, 7")
                e(f"s_add_u32 s{sT0}, s{sT0}, s{sT1}")
                for i in range(4):
                    vm(f"buffer_load_dwordx4 {vr(vTmp+4*i,4)}, v{vWo}, {srd(SWO)}, s{sT0} offen")
                    e(f"s_add_u32 s{sT0}, s{sT0}, 8192")
            if ch < 3 and s >= 4:
                if s == 4: wait_for(max(wqs[ch+1], xs[ch+1]))
                stage_w(ch+1, (s-4)*2); stage_w(ch+1, (s-4)*2+1)
                if q: q[-1] += 2
                else: q.append(2)
    e("s_barrier")
    stamp("qproj_done")
    nop(12)
    for t3 in range(3):
        for t in range(2):
            b0 = ACC + t3*16 + t*8
            for k in range(4):
                e(f"v_cvt_pk_bf16_f32 v{XF+(t3*2+t)*4+k}, v{b0+2*k}, v{b0+2*k+1}")
            e(f"ds_write_b128 v{vQw}, {vr(XF+(t3*2+t)*4,4)} offset:{t3*8192 + t*512}")
    for _ in range(4): k1()
    e("s_waitcnt lgkmcnt(0)")
    e("s_barrier")
    e(f"v_add_u32 v30, {QOFF}, v{vL16}")
    for j in range(6):
        for s in range(4):
            e(f"ds_read_b128 {ar(128+(j*4+s)*4,4)}, v30 offset:{(j*4+s)*1024}")

def xreduce(base, op):
    for sw in ("v_permlane32_swap_b32", "v_permlane16_swap_b32"):
        for j in range(6): e(f"v_mov_b32 v{vTmp+j}, v{base+j}")
        nop(2)
        for j in range(6): e(f"{sw} v{base+j}, v{vTmp+j}")
        nop(2)
        for j in range(6): e(f"{op} v{base+j}, v{base+j}, v{vTmp+j}")
def stat_read(off):
    for j in range(5):
        e(f"ds_read_b128 {vr(vTmp+j*4,4)}, v{vStr} offset:{off + j*256}")
    e(f"ds_read_b128 {vr(vXa[1],4)}, v{vStr} offset:{off + 5*256}")
    e("s_waitcnt lgkmcnt(0)")

def poll_loop(lbl):
    e(f"s_mov_b32 s{sCNT}, 0")
    lab(lbl)
    e(f"buffer_load_dword v30, v31, {srd(SWS)}, s{sT0} offen sc1")
    e("s_waitcnt vmcnt(0)")
    e(f"v_cmp_ne_u32 vcc, s{sTAG}, v30")
    e(f"s_add_u32 s{sCNT}, s{sCNT}, 1")
    e("s_nop 3")
    e(f"s_cbranch_vccz {lbl}_done")
    e("s_sleep 2")
    e(f"s_cmp_lt_u32 s{sCNT}, 200000")
    e(f"s_cbranch_scc1 {lbl}")
    lab(lbl + "_done")
def flag_store():
    e(f"v_mov_b32 v30, s{sTAG}")
    e("v_mov_b32 v31, 0")
    e("s_mov_b64 exec, 1")
    e(f"buffer_store_dword v30, v31, {srd(SWS)}, s{sT0} offen sc1")
    e("s_mov_b64 exec, -1")
def attention():
    for a in range(8):
        wait_for(kseq[a], " lgkmcnt(0)" if a == 0 else "")
        if a == 0:
            e("v_mov_b32 v19, 0")
            vm(f"buffer_load_dword v7, v19, {srd(SDBG)}, 0 offen sc1")
            c("wo piece: raw -> LDS (own V half-1 region)")
            e("v_lshrrev_b32 v30, 4, v1")
            e("v_lshlrev_b32 v30, 1, v30")
            e("v_xor_b32 v30, v30, v1")
            e(f"v_lshl_add_u32 v30, v30, 4, s{sVl}")
            for i in range(4): e(f"ds_write_b128 v30, {vr(vTmp+4*i,4)} offset:{16384 + i*1024}")
        if a == 1:
            e("s_waitcnt lgkmcnt(0)")
            for g4 in range(4):
                for u in range(2):
                    e(f"ds_read_b64_tr_b16 {vr(vTmp+g4*4+2*u,2)}, v{vVr[g4]} offset:{16384 + u*2048}")
        if a == 2:
            c("store frags: WTOFF + ((id&7)*128 + (id>>3)*4 + w)*4096 + jj*1024")
            e(f"s_and_b32 s{sT0}, s2, 7")
            e(f"s_lshl_b32 s{sT0}, s{sT0}, 7")
            e(f"s_lshr_b32 s{sT1}, s2, 3")
            e(f"s_lshl_b32 s{sT1}, s{sT1}, 2")
            e(f"s_add_u32 s{sT0}, s{sT0}, s{sT1}")
            e(f"s_add_u32 s{sT0}, s{sT0}, s{sW}")
            e(f"s_lshl_b32 s{sT0}, s{sT0}, 12")
            e(f"s_add_u32 s{sT0}, s{sT0}, {WTOFF}")
            e(f"s_and_b32 s{sT1}, s{sW}, 1")
            e(f"s_lshl_b32 s{sT1}, s{sT1}, 11")
            e(f"s_add_u32 s{sT2}, s{sT0}, s{sT1}")
            e(f"s_xor_b32 s{sT1}, s{sT1}, 2048")
            e(f"s_add_u32 s{sT0}, s{sT0}, s{sT1}")
            e("s_waitcnt lgkmcnt(0)")
            for g4 in range(4):
                PST[0] = vm(f"buffer_store_dwordx4 {vr(vTmp+g4*4,4)}, v{vL16}, {srd(SWS)}, s{sT0 if g4 < 2 else sT2} offen offset:{(g4&1)*1024} sc1")
        for s in range(4):
            for j in range(6):
                cin = "0" if s == 0 else vr(S(a,j),4)
                e(f"v_mfma_f32_16x16x32_bf16 {vr(S(a,j),4)}, {ar((a*4+s)*4,4)}, {ar(128+(j*4+s)*4,4)}, {cin}")
                if j == 2:
                    if kn[0] < 32: k1()
                    elif s < VS: v1()
                if a > 0 and s in (1,2):
                    p = S(a-1,j) + (s-1)*2
                    if a == 1 and s == 1: e(f"v_max_f32 v{vM+j}, v{p}, v{p+1}")
                    else: e(f"v_max3_f32 v{vM+j}, v{vM+j}, v{p}, v{p+1}")
    nop(8)
    stamp("S_done")
    for j in range(6):
        e(f"v_max3_f32 v{vM+j}, v{vM+j}, v{S(7,j)}, v{S(7,j)+1}")
        e(f"v_max3_f32 v{vM+j}, v{vM+j}, v{S(7,j)+2}, v{S(7,j)+3}")
    xreduce(vM, "v_max_f32")
    for j in range(6): e(f"ds_write_b32 v{vSt}, v{vM+j} offset:{j*256}")
    e("s_waitcnt lgkmcnt(0)")
    assert kseq[7] > PST[0]
    e("s_barrier")
    c("launch tag (fallback: poll until published)")
    e(f"v_readfirstlane_b32 s{sTAG}, v7")
    e(f"s_mov_b32 s{sCNT}, 0")
    lab("L_tagpoll")
    e(f"s_cmp_lg_u32 s{sTAG}, 0")
    e("s_cbranch_scc1 L_tagok")
    e(f"buffer_load_dword v7, v19, {srd(SDBG)}, 0 offen sc1")
    e("s_waitcnt vmcnt(0)")
    e(f"v_readfirstlane_b32 s{sTAG}, v7")
    e(f"s_add_u32 s{sCNT}, s{sCNT}, 1")
    e(f"s_cmp_lt_u32 s{sCNT}, 200000")
    e("s_cbranch_scc1 L_tagpoll")
    lab("L_tagok")
    e(f"s_cmp_lg_u32 s{sW}, 0")
    e("s_cbranch_scc1 L_sigw")
    e(f"s_and_b32 s{sT0}, s2, 7")
    e(f"s_lshl_b32 s{sT0}, s{sT0}, 7")
    e(f"s_lshr_b32 s{sT1}, s2, 3")
    e(f"s_lshl_b32 s{sT1}, s{sT1}, 2")
    e(f"s_add_u32 s{sT0}, s{sT0}, s{sT1}")
    e(f"s_add_u32 s{sT0}, s{sT0}, {FOFF + 4096}")
    flag_store()
    lab("L_sigw")
    stat_read(0)
    for j in range(6):
        b0 = vTmp + j*4 if j < 5 else vXa[1]
        e(f"v_max3_f32 v{vM+j}, v{b0}, v{b0+1}, v{b0+2}")
        e(f"v_max_f32 v{vM+j}, v{vM+j}, v{b0+3}")
        e(f"v_mul_f32 v{vM+j}, s{sC}, v{vM+j}")
    for j in range(6):
        for s in range(4):
            regs8 = [S(2*s,j)+i for i in range(4)] + [S(2*s+1,j)+i for i in range(4)]
            for r in regs8: e(f"v_fma_f32 v{r}, v{r}, s{sC}, -v{vM+j}")
            v1()
            for r in regs8: e(f"v_exp_f32 v{r}, v{r}")
            if WS2: w1()
            e("s_nop 0")
            if s == 0:
                e(f"v_add_f32 v{vLs+j}, v{regs8[0]}, v{regs8[1]}"); rest = regs8[2:]
            else: rest = regs8
            for r in rest: e(f"v_add_f32 v{vLs+j}, v{vLs+j}, v{r}")
            for k in range(4):
                e(f"v_cvt_pk_bf16_f32 v{S(2*s,j)+k}, v{regs8[2*k]}, v{regs8[2*k+1]}")
    xreduce(vLs, "v_add_f32")
    for j in range(6): e(f"ds_write_b32 v{vSt}, v{vLs+j} offset:{SUMOFF - MAXOFF + j*256}")
    e("s_waitcnt lgkmcnt(0)")
    e("s_barrier")
    stat_read(SUMOFF - MAXOFF)
    for j in range(6):
        b0 = vTmp + j*4 if j < 5 else vXa[1]
        e(f"v_add_f32 v{vLs+j}, v{b0}, v{b0+1}")
        e(f"v_add_f32 v{b0+2}, v{b0+2}, v{b0+3}")
        e(f"v_add_f32 v{vLs+j}, v{vLs+j}, v{b0+2}")
        e(f"v_rcp_f32 v{vLs+j}, v{vLs+j}")
    stamp("softmax_done")
    def vfr(hf, s, buf):
        for g4 in range(4):
            for u in range(2):
                e(f"ds_read_b64_tr_b16 {ar(VA+buf*16+g4*4+2*u,2)}, v{vVr[g4]} offset:{hf*16384 + s*4096 + u*2048}")
    def phase(hf, cinit):
        wait_for(vseq[(hf,0)])
        vfr(hf, 0, 0)
        for s in range(4):
            if s < 3:
                wait_for(vseq[(hf,s+1)])
                if s == 2 and hf == 1: stamp("V3_ready")
                vfr(hf, s+1, (s+1)&1)
                if hf == 1:
                    if s == 0:
                        e(f"v_cmp_ne_u32 vcc, s{sTAG}, v7")
                        e("s_nop 4")
                        e("s_cbranch_vccz L_pollw_done")
                        e(f"s_mov_b32 s{sT0}, s{sXc}")
                        e("v_mov_b32 v31, v19")
                        poll_loop("L_pollw")
                    for _ in range(WP): w1()
                e("s_waitcnt lgkmcnt(8)")
            else: e("s_waitcnt lgkmcnt(0)")
            for g4 in range(4):
                for j in range(6):
                    d = ACCT(g4*6 + j)
                    cin = "0" if (s == 0 and not (cinit and g4 >= 2)) else vr(d,4)
                    e(f"v_mfma_f32_16x16x32_bf16 {vr(d,4)}, {ar(VA+(s&1)*16+g4*4,4)}, {vr(S(2*s,j),4)}, {cin}")
    while vn[0] < 32: v1()
    c("PV phase I: groups w^3 (tiles 0..11), w^2 (tiles 12..23)")
    phase(0, False)
    nop(4)
    for tt in range(24):
        if tt < 16: e(f"ds_write_b128 v{vSl[0]}, {vr(ACCT(tt),4)} offset:{tt*1024}")
        else: e(f"ds_write_b128 v{vSl[1]}, {vr(ACCT(tt),4)} offset:{(tt-16)*1024}")
    e("s_waitcnt lgkmcnt(0)")
    e("s_barrier")
    c("own group init = partial(w^3 tiles 0..11) + partial(w^2 tiles 12..23)")
    for t in range(12):
        e(f"ds_read_b128 {vr(ACCT(12+t),4)}, v{vSr[0]} offset:{t*1024}")
        if t < 4: e(f"ds_read_b128 {vr(ACCT(t),4)}, v{vSr[1]} offset:{(12+t)*1024}")
        else: e(f"ds_read_b128 {vr(ACCT(t),4)}, v{vSr[2]} offset:{(t-4)*1024}")
    e("s_waitcnt lgkmcnt(0)")
    for t in range(12):
        for i in range(4): e(f"v_add_f32 v{ACCT(12+t)+i}, v{ACCT(12+t)+i}, v{ACCT(t)+i}")
    nop(2)
    c("PV phase II: groups w^1 (tiles 0..11, C=0), w (tiles 12..23)")
    phase(1, True)
    nop(4)
    for t in range(12):
        e(f"ds_write_b128 v{vSl[0]}, {vr(ACCT(t),4)} offset:{16384 + t*1024}")
    for _ in range(WE): w1()
    e("s_waitcnt lgkmcnt(0)")
    e("s_barrier")
    for t in range(12):
        e(f"ds_read_b128 {vr(ACCT(t),4)}, v{vSr[3]} offset:{16384 + t*1024}")
    e("s_waitcnt lgkmcnt(0)")
    for t in range(12):
        for i in range(4): e(f"v_add_f32 v{ACCT(12+t)+i}, v{ACCT(12+t)+i}, v{ACCT(t)+i}")
VA = 192
def ACCT(tt): return S(1 + 2*(tt//6), tt%6)
def outproj_g():
    f1p = [f"s_lshr_b32 s{sT0}, s{sH}, 4", f"s_lshl_b32 s{sT1}, s{sB}, 1", f"s_add_u32 s{sT0}, s{sT0}, s{sT1}", f"s_lshl_b32 s{sT0}, s{sT0}, 2"]
    f1c = [f"s_lshl_b32 s{sT1}, s{sB2}, 1", f"s_add_u32 s{sT0}, s{sKH}, s{sT1}", f"s_lshl_b32 s{sT0}, s{sT0}, 2"]
    c("normalize, pack, store O frags")
    e(f"s_lshl_b32 s{sT0}, s{sB}, 5")
    e(f"s_add_u32 s{sT0}, s{sT0}, s{sH}")
    e(f"s_lshl_b32 s{sT0}, s{sT0}, 2")
    e(f"s_add_u32 s{sT0}, s{sT0}, s{sW}")
    e(f"s_mul_i32 s{sT0}, s{sT0}, 6144")
    for j in range(6):
        for j2 in range(2):
            b0 = ACCT(12+j2*6+j)
            for i in range(4): e(f"v_mul_f32 v{b0+i}, v{b0+i}, v{vLs+j}")
        d = ACCT(j)
        for j2 in range(2):
            b0 = ACCT(12+j2*6+j)
            e(f"v_cvt_pk_bf16_f32 v{d+2*j2}, v{b0}, v{b0+1}")
            e(f"v_cvt_pk_bf16_f32 v{d+2*j2+1}, v{b0+2}, v{b0+3}")
        if j == 4: e(f"s_add_u32 s{sT0}, s{sT0}, 4096")
        ost = vm(f"buffer_store_dwordx4 {vr(d,4)}, v{vL16}, {srd(SWS)}, s{sT0} offen offset:{(j%4)*1024} sc1")
    WCAP[0] = 64
    for _ in range(WA): w1()
    wait_for(ost)
    e("s_barrier")
    stamp("O_stored")
    e(f"s_cmp_lg_u32 s{sW}, 0")
    e("s_cbranch_scc1 L_sig1")
    e(f"s_lshr_b32 s{sT0}, s{sH}, 4")
    e(f"s_lshl_b32 s{sT1}, s{sB}, 1")
    e(f"s_add_u32 s{sT0}, s{sT0}, s{sT1}")
    e(f"s_lshl_b32 s{sT0}, s{sT0}, 7")
    e(f"s_and_b32 s{sT1}, s{sH}, 15")
    e(f"s_lshl_b32 s{sT1}, s{sT1}, 2")
    e(f"s_add_u32 s{sT0}, s{sT0}, s{sT1}")
    e(f"s_add_u32 s{sT0}, s{sT0}, {FOFF}")
    flag_store()
    lab("L_sig1")
    WCAP[0] = 64
    while wn[0] < 64: w1()
    def FRG(ks, jj): return WR(ks*4 + jj)
    e(f"s_cmp_lg_u32 s{sW}, 0")
    e("s_cbranch_scc1 L_poll1_done")
    e(f"s_lshl_b32 s{sT0}, s{sB2}, 1")
    e(f"s_add_u32 s{sT0}, s{sT0}, s{sKH}")
    e(f"s_lshl_b32 s{sT0}, s{sT0}, 7")
    e(f"s_add_u32 s{sT0}, s{sT0}, {FOFF}")
    e("v_and_b32 v31, 15, v1")
    e("v_lshlrev_b32 v31, 2, v31")
    poll_loop("L_poll1")
    e("s_barrier")
    stamp("poll_done")
    e(f"s_lshl_b32 s{sOB}, s{sB2}, 5")
    e(f"s_lshl_b32 s{sT0}, s{sKH}, 4")
    e(f"s_add_u32 s{sOB}, s{sOB}, s{sT0}")
    e(f"s_lshl_b32 s{sT0}, s{sW}, 2")
    e(f"s_add_u32 s{sOB}, s{sOB}, s{sT0}")
    e(f"s_mul_i32 s{sOB}, s{sOB}, 24576")
    e(f"s_mul_i32 s{sT0}, s{sQH}, 3072")
    e(f"s_add_u32 s{sOB}, s{sOB}, s{sT0}")
    OA = 200; oseq = {}; RING = 14
    def oload(ks):
        e(f"s_add_u32 s{sT0}, s{sROT}, {ks}")
        e(f"s_and_b32 s{sT0}, s{sT0}, 15")
        e(f"s_mul_i32 s{sT0}, s{sT0}, 6144")
        e(f"s_add_u32 s{sT0}, s{sT0}, s{sOB}")
        for jq in range(3):
            oseq[ks] = vm(f"buffer_load_dwordx4 {vr(32 + ((ks%RING)*3+jq)*4,4)}, v{vL16}, {srd(SWS)}, s{sT0} offen offset:{jq*1024} sc1")
    for ks in range(OPRE): oload(ks)
    for ks in range(16):
        wait_for(oseq[ks])
        for jq in range(3):
            for jj in range(4):
                d = OA + (jj*3+jq)*4
                cin = "0" if ks == 0 else vr(d,4)
                e(f"v_mfma_f32_16x16x32_bf16 {vr(d,4)}, {ar(FRG(ks,jj),4)}, {vr(32+((ks%RING)*3+jq)*4,4)}, {cin}")
            if jq == 0 and ks + OPRE < 16: oload(ks+OPRE)
    nop(8)
    stamp("oproj_done")
    c("cross-wave reduce: wave w sums n16 tile jj=w (3 q tiles)")
    e(f"s_mul_i32 s{sT1}, s{sW}, 12288")
    e(f"v_add_u32 v30, s{sT1}, v{vL16}")
    e("s_barrier")
    for t in range(12):
        e(f"ds_write_b128 v30, {vr(OA+t*4,4)} offset:{t*1024}")
    e("s_waitcnt lgkmcnt(0)")
    e("s_barrier")
    e(f"s_mul_i32 s{sT1}, s{sW}, 3072")
    e(f"v_add_u32 v30, s{sT1}, v{vL16}")
    for ww in range(4):
        for jq in range(3):
            e(f"ds_read_b128 {vr(32+(ww*3+jq)*4,4)}, v30 offset:{ww*12288 + jq*1024}")
    e("s_waitcnt lgkmcnt(0)")
    for r in range(12):
        e(f"v_add_f32 v{32+r}, v{32+r}, v{44+r}")
        e(f"v_add_f32 v{56+r}, v{56+r}, v{68+r}")
        e(f"v_add_f32 v{32+r}, v{32+r}, v{56+r}")
    c("waves with (w>>1) != kh send their tile to the partner; others receive")
    e(f"s_lshr_b32 s{sT0}, s{sW}, 1")
    e(f"s_and_b32 s{sT2}, s{sW}, 1")
    e(f"s_lshl_b32 s{sT2}, s{sT2}, 12")
    e(f"s_cmp_eq_u32 s{sT0}, s{sKH}")
    e("s_cbranch_scc1 L_recv")
    e(f"s_lshl_b32 s{sT1}, s2, 13")
    e(f"s_add_u32 s{sT1}, s{sT1}, s{sT2}")
    e(f"s_add_u32 s{sT1}, s{sT1}, {POFF}")
    for g_ in range(4):
        for i in range(3): e(f"v_mov_b32 v{80+g_*4+i}, v{32+g_*3+i}")
        e(f"v_mov_b32 v{83+g_*4}, s{sTAG}")
        e(f"buffer_store_dwordx4 {vr(80+g_*4,4)}, v{vL16}, {srd(SWS)}, s{sT1} offen offset:{g_*1024} sc1")
    e("s_branch L_fin")
    lab("L_recv")
    e(f"s_xor_b32 s{sT3}, s2, 1")
    e(f"s_lshl_b32 s{sT3}, s{sT3}, 13")
    e(f"s_add_u32 s{sT3}, s{sT3}, s{sT2}")
    e(f"s_add_u32 s{sT3}, s{sT3}, {POFF}")
    c("out offset = ((b2*96 + 48qh + 16jq + q)*512 + 64ct + 16w + 4g')*2")
    e(f"s_mul_i32 s{sT0}, s{sB2}, 96")
    e(f"s_mul_i32 s{sT1}, s{sQH}, 48")
    e(f"s_add_u32 s{sT0}, s{sT0}, s{sT1}")
    e(f"s_lshl_b32 s{sT0}, s{sT0}, 10")
    e(f"s_lshl_b32 s{sT1}, s{sCT}, 7")
    e(f"s_add_u32 s{sT0}, s{sT0}, s{sT1}")
    e(f"s_lshl_b32 s{sT1}, s{sW}, 5")
    e(f"s_add_u32 s{sT0}, s{sT0}, s{sT1}")
    e("v_and_b32 v31, 15, v1")
    e("v_lshlrev_b32 v31, 10, v31")
    e("v_lshrrev_b32 v2, 4, v1")
    e("v_lshl_add_u32 v31, v2, 3, v31")
    e(f"s_mov_b32 s{sCNT}, 0")
    lab("L_poll2")
    for g_ in range(4):
        e(f"buffer_load_dwordx4 {vr(80+g_*4,4)}, v{vL16}, {srd(SWS)}, s{sT3} offen offset:{g_*1024} sc1")
    e("s_waitcnt vmcnt(0)")
    e("v_xor_b32 v2, v83, v87")
    e("v_xor_b32 v3, v91, v95")
    e(f"v_xor_b32 v4, s{sTAG}, v83")
    e("v_xor_b32 v5, v87, v91")
    e("v_or_b32 v2, v2, v3")
    e("v_or3_b32 v2, v2, v4, v5")
    e("v_cmp_ne_u32 vcc, 0, v2")
    e(f"s_add_u32 s{sCNT}, s{sCNT}, 1")
    e("s_nop 3")
    e("s_cbranch_vccz L_poll2_done")
    e("s_sleep 1")
    e(f"s_cmp_lt_u32 s{sCNT}, 200000")
    e("s_cbranch_scc1 L_poll2")
    lab("L_poll2_done")
    for r in range(12): e(f"v_add_f32 v{32+r}, v{32+r}, v{80+(r//3)*4+r%3}")
    for jq in range(3):
        e(f"v_cvt_pk_bf16_f32 v{64+jq*2}, v{32+jq*4}, v{33+jq*4}")
        e(f"v_cvt_pk_bf16_f32 v{65+jq*2}, v{34+jq*4}, v{35+jq*4}")
        e(f"buffer_store_dwordx2 {vr(64+jq*2,2)}, v31, {srd(SOUT)}, s{sT0} offen")
        e(f"s_add_u32 s{sT0}, s{sT0}, 16384")
    lab("L_fin")

prologue(); qproj(); attention(); outproj_g()
stamp("end"); stamp_dump()
lab("L_end"); e("s_endpgm")
hdr = open("cdna_kernels/%s.s.ref" % NAME).read().split("; @launch")[0]
out = hdr + "; @launch grid=(256,1,1) block=(256,1,1) lds=163840\n"
out += f""".amdgcn_target "amdgcn-amd-amdhsa--gfx950"
.text
.globl {NAME}_kernel
.p2align 8
.type {NAME}_kernel,@function
{NAME}_kernel:
""" + "\n".join(L) + f"""
.section .rodata,"a"
.p2align 6
.amdhsa_kernel {NAME}_kernel
  .amdhsa_next_free_vgpr 512
  .amdhsa_next_free_sgpr 102
  .amdhsa_accum_offset 256
  .amdhsa_group_segment_fixed_size 0
  .amdhsa_kernarg_size 64
  .amdhsa_user_sgpr_count 2
  .amdhsa_user_sgpr_kernarg_segment_ptr 1
  .amdhsa_system_sgpr_workgroup_id_x 1
.end_amdhsa_kernel
"""
dst = sys.argv[1] if len(sys.argv) > 1 else "cdna_kernels/%s.s" % NAME
open(dst, "w").write(out)
print("wrote", dst, len(L), "lines")
```

```python
import sys, os
L = []
def e(s): L.append("    " + s)
def lab(s): L.append(s + ":")
def c(s): L.append("    ; " + s)
def nop(n):
    while n > 0:
        k = min(n, 16); e(f"s_nop {k-1}"); n -= k
NAME = "standalone__gqa_block_cached__near_ridge"
STAMP = os.environ.get("STAMP")
VPRE = int(os.environ.get("VPRE", "4"))
NT = os.environ.get("NT", " nt")
K1 = int(os.environ.get("K1", "12"))
K2 = int(os.environ.get("K2", "12"))
K3 = int(os.environ.get("K3", "16"))
VS = int(os.environ.get("VS", "2"))
WP = int(os.environ.get("WP", "6"))
ROT = int(os.environ.get("ROT", "0"))
WE = int(os.environ.get("WE", "0"))
OPRE = int(os.environ.get("OPRE", "5"))
WA = int(os.environ.get("WA", "12"))
KB = int(os.environ.get("KB", "4"))
WS2 = int(os.environ.get("WS2", "0"))
KPRE = int(os.environ.get("KPRE", "4"))
XOFF = 0; STG = 98304; QOFF = 131072; EXTRA = 131072
MAXOFF = 155648; SUMOFF = 160*1024 - 2048
SX, SK, SV, SWQ, SWO, SOUT, SWS, SDBG = 8, 12, 16, 20, 24, 28, 32, 36
sW, sB, sH, sT0, sT1, sT2, sT3 = 40, 41, 42, 43, 44, 45, 46
sKV, sXB, sC, sB2, sQH, sCT, sOB, sWN, sCNT = 47, 48, 49, 50, 51, 52, 53, 54, 55
sVb, sVl, sWo = 56, 57, 58
sKH = 5
sROT = 4; sR1 = 7; sXc = 63; sWc = 64; sWk = 65
sXm, sXs, sWq = 59, 60, 61
POFF = 0x800000
FOFF = 0xA00000
WTOFF = 0xC00000
sTAG = 6
vTG = 122
def srd(r): return f"s[{r}:{r+3}]"
vKo = 2; vXo = [31]; vWq = 7; vL16 = 8; vStW = 9; vStR = 10
vXa = list(range(11,19)); vQw = 19; vVo = 20; vVr = [21,22,23,24]; vSl = [25,26]; vSr = [3,4,5,6]
vSt = 27; vStr = 28; vWo = 29
def S(a,j): return 32 + (a*6+j)*4
vM = 224; vLs = 230; vTmp = 236
def vr(b,n): return f"v[{b}:{b+n-1}]"
def ar(b,n): return f"a[{b}:{b+n-1}]"
stamps = []
def stamp(name):
    if STAMP is None: return
    if os.environ.get("FINE") and name in ("softmax_done","V3_ready","O_stored","poll_done","oproj_done"): return
    k = len(stamps); stamps.append(name)
    e(f"s_memrealtime s[{74+2*k}:{75+2*k}]")
    e("s_waitcnt lgkmcnt(0)")
def stamp_dump():
    if STAMP is None: return
    e(f"s_cmp_lg_u32 s{sW}, 0")
    e("s_cbranch_scc1 L_end")
    e("s_mov_b64 exec, 1")
    e(f"s_mov_b32 s{SWS+2}, 0x2000000")
    e(f"s_lshl_b32 s{sT1}, s2, 6")
    e(f"s_add_u32 s{sT1}, s{sT1}, 0x1800000")
    for k in range(len(stamps)):
        e(f"v_mov_b32 v30, s{74+2*k}")
        e(f"v_mov_b32 v31, {k*4}")
        e(f"buffer_store_dword v30, v31, {srd(SWS)}, s{sT1} offen")
        e("s_nop 1")
    L.append("; STAMPS " + ",".join(stamps))

class VM:
    n = 0
def vm(s):
    e(s); VM.n += 1; return VM.n
def wait_for(seq, extra=""):
    k = min(63, VM.n - seq)
    e(f"s_waitcnt vmcnt({k}){extra}")

def prologue():
    e("s_cmp_ge_u32 s2, 256")
    e("s_cbranch_scc1 L_end")
    stamp("start")
    e("s_load_dwordx16 s[56:71], s[0:1], 0")
    e("s_memrealtime s[6:7]")
    e("v_and_b32 v1, 63, v0")
    e("v_lshrrev_b32 v30, 6, v0")
    e("s_nop 0")
    e(f"v_readfirstlane_b32 s{sW}, v30")
    e(f"s_and_b32 s{sT0}, s2, 7")
    e(f"s_lshr_b32 s{sT1}, s2, 3")
    e(f"s_and_b32 s{sT2}, s{sT1}, 3")
    e(f"s_lshl_b32 s{sH}, s{sT0}, 2")
    e(f"s_add_u32 s{sH}, s{sH}, s{sT2}")
    e(f"s_lshr_b32 s{sB}, s{sT1}, 2")
    e(f"s_and_b32 s{sKH}, s{sT0}, 1")
    e(f"s_andn2_b32 s{sB2}, s{sT0}, 1")
    e(f"s_lshr_b32 s{sT3}, s{sT2}, 1")
    e(f"s_add_u32 s{sB2}, s{sB2}, s{sT3}")
    e(f"s_and_b32 s{sQH}, s{sT2}, 1")
    e(f"s_mov_b32 s{sCT}, s{sB}")
    e(f"s_lshl_b32 s{sROT}, s{sT2}, 1")
    e(f"s_add_u32 s{sROT}, s{sROT}, s{sCT}")
    e(f"s_lshl_b32 s{sROT}, s{sROT}, 1")
    e(f"s_and_b32 s{sROT}, s{sROT}, 15")
    e(f"s_lshl_b32 s{sKV}, s{sB}, 5")
    e(f"s_add_u32 s{sKV}, s{sKV}, s{sH}")
    e(f"s_lshl_b32 s{sKV}, s{sKV}, 17")
    e(f"s_lshl_b32 s{sT3}, s{sW}, 15")
    e(f"s_add_u32 s{sKV}, s{sKV}, s{sT3}")
    e(f"s_mul_i32 s{sXB}, s{sB}, 98304")
    e(f"s_add_u32 s{sWN}, s{sW}, 1")
    e(f"s_and_b32 s{sWN}, s{sWN}, 3")
    e(f"s_mov_b32 s{sC}, 0x3e0293ee")
    e("v_and_b32 v30, 15, v1")
    e("v_lshrrev_b32 v31, 4, v1")
    e(f"v_lshlrev_b32 v{vKo}, 8, v30")
    e(f"v_lshl_add_u32 v{vKo}, v31, 4, v{vKo}")
    e(f"v_lshlrev_b32 v{vL16}, 4, v1")
    e("s_waitcnt lgkmcnt(0)")
    e(f"s_or_b32 s{sTAG}, s{sTAG}, 1")
    e(f"s_add_u32 s{sR1}, s{sB}, s{sH}")
    sizes = [786432, 33554432, 33554432, 4194304, 4194304, 786432, 256, WTOFF + 0x400000]
    regs = [SX, SK, SV, SWQ, SWO, SOUT, SDBG, SWS]
    for i,(r,sz) in enumerate(zip(regs,sizes)):
        e(f"s_mov_b32 s{r}, s{56+2*i}")
        e(f"s_and_b32 s{r+1}, s{57+2*i}, 0xffff")
        e(f"s_mov_b32 s{r+2}, {sz}")
        e(f"s_mov_b32 s{r+3}, 0x00020000")

kseq = {}; kn = [0]; TAGSEQ = [0]; PST = [0]
def k1():
    if kn[0] >= 32: return
    a, s_ = kn[0]//4, kn[0]%4; kn[0] += 1
    if s_ == 0: e(f"s_add_u32 s{sCNT}, s{sKV}, {a*4096}")
    kseq[a] = vm(f"buffer_load_dwordx4 {ar((a*4+s_)*4,4)}, v{vKo}, {srd(SK)}, s{sCNT} offen offset:{s_*64}{NT}")
vseq = {}; vn = [0]
def v1():
    if vn[0] >= 32: return
    hf, i = vn[0]//16, vn[0]%16; vn[0] += 1
    if hf == 1 and i == 4:
        e(f"s_lshl_b32 s{sWk}, s{sCT}, 7")
        e(f"s_lshl_b32 s{sCNT}, s{sKH}, 6")
        e(f"s_add_u32 s{sWk}, s{sWk}, s{sCNT}")
        e(f"s_add_u32 s{sXc}, s{sWk}, {FOFF + 4096}")
        e("v_and_b32 v19, 15, v1")
        e("v_lshlrev_b32 v19, 2, v19")
        vm(f"buffer_load_dword v7, v19, {srd(SWS)}, s{sXc} offen sc1")
    if i == 0:
        e(f"s_lshr_b32 s{sVb}, s{sW}, 1")
        if hf == 0: e(f"s_xor_b32 s{sVb}, s{sVb}, 1")
        e(f"s_lshl_b32 s{sVb}, s{sVb}, 7")
        e(f"s_add_u32 s{sVb}, s{sVb}, s{sKV}")
    e(f"s_add_u32 m0, s{sVl}, {hf*16384 + i*1024}")
    e(f"s_add_u32 s{sCNT}, s{sVb}, {i*2048}")
    vseq[(hf,i//4)] = vm(f"buffer_load_dwordx4 v{vVo}, {srd(SV)}, s{sCNT} offen{NT} lds")
wn = [0]; WCAP = [56]; WSEQ = {}
def WR(i): return 224 + 4*i if i < 8 else 4*(i-8)
def w1():
    if wn[0] >= WCAP[0]: return
    i = wn[0]; wn[0] += 1
    if i % 4 == 0:
        e(f"s_add_u32 s{sWk}, s{sROT}, {i//4}")
        e(f"s_and_b32 s{sWk}, s{sWk}, 15")
        e(f"s_lshl_b32 s{sWk}, s{sWk}, 12")
        e(f"s_add_u32 s{sWk}, s{sWk}, s{sWo}")
    WSEQ[i] = vm(f"buffer_load_dwordx4 {ar(WR(i),4)}, v{vL16}, {srd(SWS)}, s{sWk} offen offset:{(i%4)*1024} sc1")

def addr_setup():
    e(f"s_lshl_b32 s{sT1}, s{sW}, 14")
    e(f"s_add_u32 s{sT1}, s{sT1}, {STG}")
    c("staging write: cg*16384 + (32w + i/16)*64 + (i%4)*16")
    e("v_bfe_u32 v30, v1, 2, 2")
    e(f"v_lshlrev_b32 v{vStW}, 14, v30")
    e("v_lshrrev_b32 v30, 4, v1")
    e(f"v_lshl_add_u32 v{vStW}, v30, 6, v{vStW}")
    e("v_and_b32 v30, 3, v1")
    e(f"v_lshl_add_u32 v{vStW}, v30, 4, v{vStW}")
    e(f"s_lshl_b32 s{sT2}, s{sW}, 11")
    e(f"s_add_u32 s{sT2}, s{sT2}, {STG}")
    e(f"v_add_u32 v{vStW}, s{sT2}, v{vStW}")
    e("v_lshrrev_b32 v30, 5, v1")
    e("v_lshlrev_b32 v30, 3, v30")
    e("v_bfe_u32 v31, v1, 2, 2")
    e("v_add_u32 v30, v30, v31")
    e(f"v_lshlrev_b32 v{vStR}, 6, v30")
    e("v_bfe_u32 v30, v1, 4, 1")
    e(f"v_lshl_add_u32 v{vStR}, v30, 5, v{vStR}")
    e("v_and_b32 v30, 1, v1")
    e(f"v_lshl_add_u32 v{vStR}, v30, 4, v{vStR}")
    e("v_bfe_u32 v30, v1, 1, 1")
    e(f"v_lshl_add_u32 v{vStR}, v30, 3, v{vStR}")
    e(f"v_add_u32 v{vStR}, s{sT1}, v{vStR}")
    e("v_and_b32 v30, 31, v1")
    e("v_lshlrev_b32 v30, 8, v30")
    e("v_lshrrev_b32 v31, 5, v1")
    for lo in range(8):
        e(f"v_add_u32 v{vXa[lo]}, {2*lo}, v31")
        e(f"v_xor_b32 v{vXa[lo]}, v{vXa[lo]}, v1")
        e(f"v_and_b32 v{vXa[lo]}, 15, v{vXa[lo]}")
        e(f"v_lshl_add_u32 v{vXa[lo]}, v{vXa[lo]}, 4, v30")
        e(f"v_add_u32 v{112+lo}, 0xc000, v{vXa[lo]}")
    e("v_bfe_u32 v30, v1, 4, 1")
    e(f"v_lshlrev_b32 v{vQw}, 12, v30")
    e("v_and_b32 v30, 15, v1")
    e(f"v_lshl_add_u32 v{vQw}, v30, 4, v{vQw}")
    e("v_lshrrev_b32 v30, 5, v1")
    e(f"v_lshl_add_u32 v{vQw}, v30, 8, v{vQw}")
    e(f"s_lshl_b32 s{sT1}, s{sW}, 10")
    e(f"s_add_u32 s{sT1}, s{sT1}, {QOFF}")
    e(f"v_add_u32 v{vQw}, s{sT1}, v{vQw}")
    c("V dma: (i/8)*256 + (((i%8)/2 ^ ((i/16)&3))*2 + (i&1))*16 ; wo: (i/8)*1024 + (i%8)*16")
    e("v_lshrrev_b32 v30, 4, v1")
    e("v_lshlrev_b32 v30, 1, v30")
    e("v_xor_b32 v30, v30, v1")
    e("v_and_b32 v30, 7, v30")
    e("v_lshrrev_b32 v120, 3, v1")
    e(f"v_lshlrev_b32 v{vVo}, 8, v120")
    e(f"v_lshl_add_u32 v{vVo}, v30, 4, v{vVo}")
    e("v_and_b32 v30, 7, v1")
    e(f"v_lshlrev_b32 v{vWo}, 10, v120")
    e(f"v_lshl_add_u32 v{vWo}, v30, 4, v{vWo}")
    c("tr read base0: w*32768 + (lane>>2)*128 + (((lane>>3)&3)*32) + (lane&3)*8 ; blk b -> ^ b*32")
    e("v_lshrrev_b32 v30, 2, v1")
    e(f"v_lshlrev_b32 v{vVr[0]}, 7, v30")
    e("v_bfe_u32 v30, v1, 3, 2")
    e(f"v_lshl_add_u32 v{vVr[0]}, v30, 5, v{vVr[0]}")
    e("v_and_b32 v30, 3, v1")
    e(f"v_lshl_add_u32 v{vVr[0]}, v30, 3, v{vVr[0]}")
    e(f"s_lshl_b32 s{sVl}, s{sW}, 15")
    e(f"v_add_u32 v{vVr[0]}, s{sVl}, v{vVr[0]}")
    c("vVr[0..1]: group w^1|w^3 parity (blk 2*((w&1)^1)+j2); vVr[2..3]: own parity")
    e(f"s_and_b32 s{sT1}, s{sW}, 1")
    e(f"s_lshl_b32 s{sT1}, s{sT1}, 6")
    e(f"v_xor_b32 v{vVr[2]}, s{sT1}, v{vVr[0]}")
    e(f"v_xor_b32 v{vVr[3]}, 32, v{vVr[2]}")
    e(f"v_xor_b32 v{vVr[0]}, 64, v{vVr[2]}")
    e(f"v_xor_b32 v{vVr[1]}, 64, v{vVr[3]}")
    c("partial slots: own V region + extra")
    e(f"v_add_u32 v{vSl[0]}, s{sVl}, v{vL16}")
    e(f"s_lshl_b32 s{sT1}, s{sW}, 13")
    e(f"s_add_u32 s{sT1}, s{sT1}, {EXTRA}")
    e(f"v_add_u32 v{vSl[1]}, s{sT1}, v{vL16}")
    e(f"v_xor_b32 v{vSr[0]}, 0x18000, v{vSl[0]}")
    e(f"v_xor_b32 v{vSr[1]}, 0x10000, v{vSl[0]}")
    e(f"v_xor_b32 v{vSr[2]}, 0x4000, v{vSl[1]}")
    e(f"v_xor_b32 v{vSr[3]}, 0x8000, v{vSl[0]}")
    c("woT base: WTOFF + (ct*128 + kh*64 + w*16)*4096")
    e(f"s_lshl_b32 s{sWo}, s{sCT}, 3")
    e(f"s_lshl_b32 s{sT1}, s{sKH}, 2")
    e(f"s_add_u32 s{sWo}, s{sWo}, s{sT1}")
    e(f"s_add_u32 s{sWo}, s{sWo}, s{sW}")
    e(f"s_lshl_b32 s{sWo}, s{sWo}, 16")
    e(f"s_add_u32 s{sWo}, s{sWo}, {WTOFF}")
    e("v_and_b32 v30, 15, v1")
    e(f"v_lshlrev_b32 v{vStr}, 4, v30")
    e(f"v_add_u32 v{vStr}, {MAXOFF}, v{vStr}")
    e(f"s_lshl_b32 s{sT1}, s{sW}, 2")
    e(f"v_add_u32 v{vSt}, s{sT1}, v{vStr}")

ACC = 32; XF = 128; WF = 164
def qproj():
    c("x voffset: (4w+i/16)*1024 + ((i%16)^(4w+i/16))*16")
    e(f"s_lshl_b32 s{sT1}, s{sW}, 2")
    e("v_lshrrev_b32 v30, 4, v1")
    e(f"v_add_u32 v30, s{sT1}, v30")
    e("v_xor_b32 v29, v30, v1")
    e("v_and_b32 v29, 15, v29")
    e(f"v_lshlrev_b32 v{vXo[0]}, 10, v30")
    e(f"v_lshl_add_u32 v{vXo[0]}, v29, 4, v{vXo[0]}")
    e(f"s_lshl_b32 s{sXm}, s{sW}, 10")
    e("v_lshrrev_b32 v30, 4, v1")
    e(f"v_lshlrev_b32 v{vWq}, 13, v30")
    e("v_and_b32 v30, 15, v1")
    e(f"v_lshl_add_u32 v{vWq}, v30, 4, v{vWq}")
    e(f"s_lshl_b32 s{sWq}, s{sH}, 8")
    e(f"s_lshl_b32 s{sT1}, s{sW}, 18")
    e(f"s_add_u32 s{sWq}, s{sWq}, s{sT1}")
    xs = {}; wqs = {}
    def xl(ch, m):
        if m == 0:
            e(f"s_add_u32 s{sXc}, s{sR1}, {ch}")
            e(f"s_and_b32 s{sXc}, s{sXc}, {3 if ROT else 0}" if ROT else f"s_mov_b32 s{sXc}, {ch}")
            e(f"s_lshl_b32 s{sWc}, s{sXc}, 20")
            e(f"s_add_u32 s{sWc}, s{sWc}, s{sWq}")
            e(f"s_lshl_b32 s{sXc}, s{sXc}, 8")
            e(f"s_add_u32 s{sXc}, s{sXc}, s{sXB}")
        e(f"s_add_u32 m0, s{sXm}, {XOFF + ch*24576 + m*4096}")
        e(f"s_add_u32 s{sXs}, s{sXc}, {m*16384}")
        xs[ch] = vm(f"buffer_load_dwordx4 v{vXo[0]}, {srd(SX)}, s{sXs} offen lds")
    def wl(ch, i):
        k = ch*8 + i
        e(f"s_add_u32 s{sXs}, s{sWc}, {i*4*8192}")
        wqs[ch] = vm(f"buffer_load_dwordx4 {ar(128+4*k,4)}, v{vWq}, {srd(SWQ)}, s{sXs} offen")
    seqs = [[(xl,ch,m) for m in range(6)] + [(wl,ch,i) for i in range(8)] for ch in range(4)]
    def issue(q, n):
        for _ in range(n):
            if q: it = q.pop(0); it[0](it[1], it[2])
    c("WG0 wave0 publishes the launch tag")
    e(f"s_or_b32 s{sT0}, s2, s{sW}")
    e(f"s_cmp_lg_u32 s{sT0}, 0")
    e("s_cbranch_scc1 L_notag")
    e(f"v_mov_b32 v{vTG}, s{sTAG}")
    e(f"v_mov_b32 v{vTG+1}, 0")
    e("s_mov_b64 exec, 1")
    e(f"buffer_store_dword v{vTG}, v{vTG+1}, {srd(SDBG)}, 0 offen sc1")
    e("s_mov_b64 exec, -1")
    lab("L_notag")
    issue(seqs[0], 99)
    e(f"v_mov_b32 v121, v{vXo[0]}")
    vXo[0] = 121
    addr_setup()
    issue(seqs[1], 99)
    stamp("issued")
    def rd_frags(S_, buf):
        ch, s = S_//8, S_%8
        for u in range(2):
            e(f"ds_read_b64_tr_b16 {vr(WF+buf*4+u*2,2)}, v{vStR} offset:{(ch&1)*8192 + s*1024 + u*256}")
        for t3 in range(3):
            base = vXa[s] if ch < 2 else 112+s
            e(f"ds_read_b128 {vr(XF+buf*12+t3*4,4)}, v{base} offset:{(ch&1)*24576 + t3*8192}")
    def stage_w(ch, i):
        e(f"ds_write_b128 v{vStW}, {ar(128+(ch*8+i)*4,4)} offset:{(ch&1)*8192 + i*256}")
    wait_for(max(wqs[0], xs[0]))
    for i in range(8): stage_w(0, i)
    for ch in range(4):
        e("s_waitcnt lgkmcnt(0)")
        e("s_barrier")
        if ch == 0: stamp("x_ready")
        rd_frags(ch*8, 0); rd_frags(ch*8+1, 1)
        pend = 10
        q = [5, 5]
        for s in range(8):
            S_ = ch*8 + s; buf = s % 3
            if s < 6: rd_frags(S_+2, (s+2)%3); q.append(5)
            q.pop(0)
            e(f"s_waitcnt lgkmcnt({min(15, sum(q))})")
            for t3 in range(3):
                cin = "0" if S_ == 0 else vr(ACC+t3*16,16)
                e(f"v_mfma_f32_32x32x16_bf16 {vr(ACC+t3*16,16)}, {vr(WF+buf*4,4)}, {vr(XF+buf*12+t3*4,4)}, {cin}")
                if ch == 0: issue(seqs[2] if seqs[2] else seqs[3], 1)
                if ch == 1 and t3 != 1 and kn[0] < K1: k1()
                if ch == 2 and t3 != 1 and kn[0] < K2: k1()
                if ch == 3 and t3 != 1 and kn[0] < K3: k1()
            if ch == 0 and s == 7:
                issue(seqs[2], 99); issue(seqs[3], 99)
                c("wo piece raw: rows (id>>3)*128 + 32w + 8i + lane/8, cols (id&7)*64")
                e(f"s_lshr_b32 s{sT0}, s2, 3")
                e(f"s_lshl_b32 s{sT0}, s{sT0}, 2")
                e(f"s_add_u32 s{sT0}, s{sT0}, s{sW}")
                e(f"s_lshl_b32 s{sT0}, s{sT0}, 15")
                e(f"s_and_b32 s{sT1}, s2, 7")
                e(f"s_lshl_b32 s{sT1}, s{sT1}, 7")
                e(f"s_add_u32 s{sT0}, s{sT0}, s{sT1}")
                for i in range(4):
                    vm(f"buffer_load_dwordx4 {vr(vTmp+4*i,4)}, v{vWo}, {srd(SWO)}, s{sT0} offen")
                    e(f"s_add_u32 s{sT0}, s{sT0}, 8192")
            if ch < 3 and s >= 4:
                if s == 4: wait_for(max(wqs[ch+1], xs[ch+1]))
                stage_w(ch+1, (s-4)*2); stage_w(ch+1, (s-4)*2+1)
                if q: q[-1] += 2
                else: q.append(2)
    e("s_barrier")
    stamp("qproj_done")
    nop(12)
    for t3 in range(3):
        for t in range(2):
            b0 = ACC + t3*16 + t*8
            for k in range(4):
                e(f"v_cvt_pk_bf16_f32 v{XF+(t3*2+t)*4+k}, v{b0+2*k}, v{b0+2*k+1}")
            e(f"ds_write_b128 v{vQw}, {vr(XF+(t3*2+t)*4,4)} offset:{t3*8192 + t*512}")
    for _ in range(KB):
        if kn[0] < 32: k1()
        else: v1()
    e("s_waitcnt lgkmcnt(0)")
    e("s_barrier")
    e(f"v_add_u32 v30, {QOFF}, v{vL16}")
    for j in range(6):
        for s in range(4):
            e(f"ds_read_b128 {ar(128+(j*4+s)*4,4)}, v30 offset:{(j*4+s)*1024}")

def xreduce(base, op):
    for sw in ("v_permlane32_swap_b32", "v_permlane16_swap_b32"):
        for j in range(6): e(f"v_mov_b32 v{vTmp+j}, v{base+j}")
        nop(2)
        for j in range(6): e(f"{sw} v{base+j}, v{vTmp+j}")
        nop(2)
        for j in range(6): e(f"{op} v{base+j}, v{base+j}, v{vTmp+j}")
def stat_read(off):
    for j in range(5):
        e(f"ds_read_b128 {vr(vTmp+j*4,4)}, v{vStr} offset:{off + j*256}")
    e(f"ds_read_b128 {vr(vXa[1],4)}, v{vStr} offset:{off + 5*256}")
    e("s_waitcnt lgkmcnt(0)")

def poll_loop(lbl):
    e(f"s_mov_b32 s{sCNT}, 0")
    lab(lbl)
    e(f"buffer_load_dword v30, v31, {srd(SWS)}, s{sT0} offen sc1")
    e("s_waitcnt vmcnt(0)")
    e(f"v_cmp_ne_u32 vcc, s{sTAG}, v30")
    e(f"s_add_u32 s{sCNT}, s{sCNT}, 1")
    e("s_nop 3")
    e(f"s_cbranch_vccz {lbl}_done")
    e("s_sleep 2")
    e(f"s_cmp_lt_u32 s{sCNT}, 200000")
    e(f"s_cbranch_scc1 {lbl}")
    lab(lbl + "_done")
def flag_store():
    e(f"v_mov_b32 v30, s{sTAG}")
    e("v_mov_b32 v31, 0")
    e("s_mov_b64 exec, 1")
    e(f"buffer_store_dword v30, v31, {srd(SWS)}, s{sT0} offen sc1")
    e("s_mov_b64 exec, -1")
def attention():
    for a in range(8):
        wait_for(kseq[a], " lgkmcnt(0)" if a == 0 else "")
        if a == 0:
            e("v_mov_b32 v19, 0")
            vm(f"buffer_load_dword v7, v19, {srd(SDBG)}, 0 offen sc1")
            c("wo piece: raw -> LDS (own V half-1 region)")
            e("v_lshrrev_b32 v30, 4, v1")
            e("v_lshlrev_b32 v30, 1, v30")
            e("v_xor_b32 v30, v30, v1")
            e(f"v_lshl_add_u32 v30, v30, 4, s{sVl}")
            for i in range(4): e(f"ds_write_b128 v30, {vr(vTmp+4*i,4)} offset:{16384 + i*1024}")
        if a == 1:
            e("s_waitcnt lgkmcnt(0)")
            for g4 in range(4):
                for u in range(2):
                    e(f"ds_read_b64_tr_b16 {vr(vTmp+g4*4+2*u,2)}, v{vVr[g4]} offset:{16384 + u*2048}")
        if a == 2:
            c("store frags: WTOFF + ((id&7)*128 + (id>>3)*4 + w)*4096 + jj*1024")
            e(f"s_and_b32 s{sT0}, s2, 7")
            e(f"s_lshl_b32 s{sT0}, s{sT0}, 7")
            e(f"s_lshr_b32 s{sT1}, s2, 3")
            e(f"s_lshl_b32 s{sT1}, s{sT1}, 2")
            e(f"s_add_u32 s{sT0}, s{sT0}, s{sT1}")
            e(f"s_add_u32 s{sT0}, s{sT0}, s{sW}")
            e(f"s_lshl_b32 s{sT0}, s{sT0}, 12")
            e(f"s_add_u32 s{sT0}, s{sT0}, {WTOFF}")
            e(f"s_and_b32 s{sT1}, s{sW}, 1")
            e(f"s_lshl_b32 s{sT1}, s{sT1}, 11")
            e(f"s_add_u32 s{sT2}, s{sT0}, s{sT1}")
            e(f"s_xor_b32 s{sT1}, s{sT1}, 2048")
            e(f"s_add_u32 s{sT0}, s{sT0}, s{sT1}")
            e("s_waitcnt lgkmcnt(0)")
            for g4 in range(4):
                PST[0] = vm(f"buffer_store_dwordx4 {vr(vTmp+g4*4,4)}, v{vL16}, {srd(SWS)}, s{sT0 if g4 < 2 else sT2} offen offset:{(g4&1)*1024} sc1")
        for s in range(4):
            for j in range(6):
                cin = "0" if s == 0 else vr(S(a,j),4)
                e(f"v_mfma_f32_16x16x32_bf16 {vr(S(a,j),4)}, {ar((a*4+s)*4,4)}, {ar(128+(j*4+s)*4,4)}, {cin}")
                if j == 2:
                    if kn[0] < 32: k1()
                    elif s < VS: v1()
                if a > 0 and s in (1,2):
                    p = S(a-1,j) + (s-1)*2
                    if a == 1 and s == 1: e(f"v_max_f32 v{vM+j}, v{p}, v{p+1}")
                    else: e(f"v_max3_f32 v{vM+j}, v{vM+j}, v{p}, v{p+1}")
    nop(8)
    stamp("S_done")
    for j in range(6):
        e(f"v_max3_f32 v{vM+j}, v{vM+j}, v{S(7,j)}, v{S(7,j)+1}")
        e(f"v_max3_f32 v{vM+j}, v{vM+j}, v{S(7,j)+2}, v{S(7,j)+3}")
    xreduce(vM, "v_max_f32")
    for j in range(6): e(f"ds_write_b32 v{vSt}, v{vM+j} offset:{j*256}")
    e("s_waitcnt lgkmcnt(0)")
    if kseq[7] < PST[0]: wait_for(PST[0])
    e("s_barrier")
    c("launch tag (fallback: poll until published)")
    e(f"v_readfirstlane_b32 s{sTAG}, v7")
    e(f"s_mov_b32 s{sCNT}, 0")
    lab("L_tagpoll")
    e(f"s_cmp_lg_u32 s{sTAG}, 0")
    e("s_cbranch_scc1 L_tagok")
    e(f"buffer_load_dword v7, v19, {srd(SDBG)}, 0 offen sc1")
    e("s_waitcnt vmcnt(0)")
    e(f"v_readfirstlane_b32 s{sTAG}, v7")
    e(f"s_add_u32 s{sCNT}, s{sCNT}, 1")
    e(f"s_cmp_lt_u32 s{sCNT}, 200000")
    e("s_cbranch_scc1 L_tagpoll")
    lab("L_tagok")
    e(f"s_cmp_lg_u32 s{sW}, 0")
    e("s_cbranch_scc1 L_sigw")
    e(f"s_and_b32 s{sT0}, s2, 7")
    e(f"s_lshl_b32 s{sT0}, s{sT0}, 7")
    e(f"s_lshr_b32 s{sT1}, s2, 3")
    e(f"s_lshl_b32 s{sT1}, s{sT1}, 2")
    e(f"s_add_u32 s{sT0}, s{sT0}, s{sT1}")
    e(f"s_add_u32 s{sT0}, s{sT0}, {FOFF + 4096}")
    flag_store()
    lab("L_sigw")
    stat_read(0)
    for j in range(6):
        b0 = vTmp + j*4 if j < 5 else vXa[1]
        e(f"v_max3_f32 v{b0}, v{b0}, v{b0+1}, v{b0+2}")
        e(f"v_max_f32 v{b0}, v{b0}, v{b0+3}")
        e(f"v_mul_f32 v{224+2*j}, s{sC}, v{b0}")
        e(f"v_mul_f32 v{225+2*j}, s{sC}, v{b0}")
    e(f"s_mov_b32 s66, s{sC}"); e(f"s_mov_b32 s67, s{sC}")
    e("v_mov_b32 v30, 0x3f803f80")
    for i in range(4): e(f"v_accvgpr_write_b32 a{96+i}, v30")
    pend = None
    def summ(p):
        j_, s_ = p
        cin = "0" if s_ == 0 else ar(112+4*j_,4)
        e(f"v_mfma_f32_16x16x32_bf16 {ar(112+4*j_,4)}, a[96:99], {vr(S(2*s_,j_),4)}, {cin}")
    for j in range(6):
        for s in range(4):
            regs8 = [S(2*s,j)+i for i in range(4)] + [S(2*s+1,j)+i for i in range(4)]
            for r in regs8[::2]: e(f"v_pk_fma_f32 {vr(r,2)}, {vr(r,2)}, s[66:67], {vr(224+2*j,2)} neg_lo:[0,0,1] neg_hi:[0,0,1]")
            if pend: summ(pend)
            v1()
            for r in regs8: e(f"v_exp_f32 v{r}, v{r}")
            e("s_nop 0")
            for k in range(4):
                e(f"v_cvt_pk_bf16_f32 v{S(2*s,j)+k}, v{regs8[2*k]}, v{regs8[2*k+1]}")
            pend = (j, s)
    nop(2)
    summ(pend)
    nop(8)
    for j in range(6): e(f"v_accvgpr_read_b32 v{vTmp+j}, a{112+4*j}")
    for j in range(6): e(f"ds_write_b32 v{vSt}, v{vTmp+j} offset:{SUMOFF - MAXOFF + j*256}")
    e("s_waitcnt lgkmcnt(0)")
    e("s_barrier")
    stat_read(SUMOFF - MAXOFF)
    for j in range(6):
        b0 = vTmp + j*4 if j < 5 else vXa[1]
        e(f"v_add_f32 v{b0}, v{b0}, v{b0+1}")
        e(f"v_add_f32 v{b0+2}, v{b0+2}, v{b0+3}")
        e(f"v_add_f32 v{b0}, v{b0}, v{b0+2}")
        e(f"v_rcp_f32 v{224+2*j}, v{b0}")
        e(f"v_rcp_f32 v{225+2*j}, v{b0}")
    stamp("softmax_done")
    def vfr(hf, s, buf):
        for g4 in range(4):
            for u in range(2):
                e(f"ds_read_b64_tr_b16 {ar(VA+buf*16+g4*4+2*u,2)}, v{vVr[g4]} offset:{hf*16384 + s*4096 + u*2048}")
    def phase(hf, cinit):
        wait_for(vseq[(hf,0)])
        vfr(hf, 0, 0)
        for s in range(4):
            if s < 3:
                wait_for(vseq[(hf,s+1)])
                if s == 2 and hf == 1: stamp("V3_ready")
                vfr(hf, s+1, (s+1)&1)
                if hf == 1:
                    if s == 0:
                        e(f"v_cmp_ne_u32 vcc, s{sTAG}, v7")
                        e("s_nop 4")
                        e("s_cbranch_vccz L_pollw_done")
                        e(f"s_mov_b32 s{sT0}, s{sXc}")
                        e("v_mov_b32 v31, v19")
                        poll_loop("L_pollw")
                    for _ in range(WP): w1()
                e("s_waitcnt lgkmcnt(8)")
            else: e("s_waitcnt lgkmcnt(0)")
            for g4 in range(4):
                for j in range(6):
                    d = ACCT(g4*6 + j)
                    cin = "0" if (s == 0 and not (cinit and g4 >= 2)) else vr(d,4)
                    e(f"v_mfma_f32_16x16x32_bf16 {vr(d,4)}, {ar(VA+(s&1)*16+g4*4,4)}, {vr(S(2*s,j),4)}, {cin}")
    while vn[0] < 32: v1()
    c("PV phase I: groups w^3 (tiles 0..11), w^2 (tiles 12..23)")
    phase(0, False)
    nop(4)
    for tt in range(24):
        if tt < 16: e(f"ds_write_b128 v{vSl[0]}, {vr(ACCT(tt),4)} offset:{tt*1024}")
        else: e(f"ds_write_b128 v{vSl[1]}, {vr(ACCT(tt),4)} offset:{(tt-16)*1024}")
    e("s_waitcnt lgkmcnt(0)")
    e("s_barrier")
    c("own group init = partial(w^3 tiles 0..11) + partial(w^2 tiles 12..23)")
    for t in range(12):
        e(f"ds_read_b128 {vr(ACCT(12+t),4)}, v{vSr[0]} offset:{t*1024}")
        if t < 4: e(f"ds_read_b128 {vr(ACCT(t),4)}, v{vSr[1]} offset:{(12+t)*1024}")
        else: e(f"ds_read_b128 {vr(ACCT(t),4)}, v{vSr[2]} offset:{(t-4)*1024}")
    e("s_waitcnt lgkmcnt(0)")
    for t in range(12):
        for i in (0,2): e(f"v_pk_add_f32 {vr(ACCT(12+t)+i,2)}, {vr(ACCT(12+t)+i,2)}, {vr(ACCT(t)+i,2)}")
    nop(2)
    c("PV phase II: groups w^1 (tiles 0..11, C=0), w (tiles 12..23)")
    phase(1, True)
    nop(4)
    for t in range(12):
        e(f"ds_write_b128 v{vSl[0]}, {vr(ACCT(t),4)} offset:{16384 + t*1024}")
    for _ in range(WE): w1()
    e("s_waitcnt lgkmcnt(0)")
    e("s_barrier")
    for t in range(12):
        e(f"ds_read_b128 {vr(ACCT(t),4)}, v{vSr[3]} offset:{16384 + t*1024}")
    e("s_waitcnt lgkmcnt(0)")
    for t in range(12):
        for i in (0,2): e(f"v_pk_add_f32 {vr(ACCT(12+t)+i,2)}, {vr(ACCT(12+t)+i,2)}, {vr(ACCT(t)+i,2)}")
VA = 192
def ACCT(tt): return S(1 + 2*(tt//6), tt%6)
def outproj_g():
    f1p = [f"s_lshr_b32 s{sT0}, s{sH}, 4", f"s_lshl_b32 s{sT1}, s{sB}, 1", f"s_add_u32 s{sT0}, s{sT0}, s{sT1}", f"s_lshl_b32 s{sT0}, s{sT0}, 2"]
    f1c = [f"s_lshl_b32 s{sT1}, s{sB2}, 1", f"s_add_u32 s{sT0}, s{sKH}, s{sT1}", f"s_lshl_b32 s{sT0}, s{sT0}, 2"]
    c("normalize, pack, store O frags")
    e(f"s_lshl_b32 s{sT0}, s{sB}, 5")
    e(f"s_add_u32 s{sT0}, s{sT0}, s{sH}")
    e(f"s_lshl_b32 s{sT0}, s{sT0}, 2")
    e(f"s_add_u32 s{sT0}, s{sT0}, s{sW}")
    e(f"s_mul_i32 s{sT0}, s{sT0}, 6144")
    for j in range(6):
        for j2 in range(2):
            b0 = ACCT(12+j2*6+j)
            for i in (0,2): e(f"v_pk_mul_f32 {vr(b0+i,2)}, {vr(b0+i,2)}, {vr(224+2*j,2)}")
        d = ACCT(j)
        for j2 in range(2):
            b0 = ACCT(12+j2*6+j)
            e(f"v_cvt_pk_bf16_f32 v{d+2*j2}, v{b0}, v{b0+1}")
            e(f"v_cvt_pk_bf16_f32 v{d+2*j2+1}, v{b0+2}, v{b0+3}")
        if j == 4: e(f"s_add_u32 s{sT0}, s{sT0}, 4096")
        ost = vm(f"buffer_store_dwordx4 {vr(d,4)}, v{vL16}, {srd(SWS)}, s{sT0} offen offset:{(j%4)*1024} sc1")
    WCAP[0] = 64
    for _ in range(WA): w1()
    wait_for(ost)
    e("s_barrier")
    stamp("O_stored")
    e(f"s_cmp_lg_u32 s{sW}, 0")
    e("s_cbranch_scc1 L_sig1")
    e(f"s_lshr_b32 s{sT0}, s{sH}, 4")
    e(f"s_lshl_b32 s{sT1}, s{sB}, 1")
    e(f"s_add_u32 s{sT0}, s{sT0}, s{sT1}")
    e(f"s_lshl_b32 s{sT0}, s{sT0}, 7")
    e(f"s_and_b32 s{sT1}, s{sH}, 15")
    e(f"s_lshl_b32 s{sT1}, s{sT1}, 2")
    e(f"s_add_u32 s{sT0}, s{sT0}, s{sT1}")
    e(f"s_add_u32 s{sT0}, s{sT0}, {FOFF}")
    flag_store()
    lab("L_sig1")
    WCAP[0] = 64
    while wn[0] < 64: w1()
    def FRG(ks, jj): return WR(ks*4 + jj)
    e(f"s_cmp_lg_u32 s{sW}, 0")
    e("s_cbranch_scc1 L_poll1_done")
    e(f"s_lshl_b32 s{sT0}, s{sB2}, 1")
    e(f"s_add_u32 s{sT0}, s{sT0}, s{sKH}")
    e(f"s_lshl_b32 s{sT0}, s{sT0}, 7")
    e(f"s_add_u32 s{sT0}, s{sT0}, {FOFF}")
    e("v_and_b32 v31, 15, v1")
    e("v_lshlrev_b32 v31, 2, v31")
    poll_loop("L_poll1")
    e("s_barrier")
    stamp("poll_done")
    e(f"s_lshl_b32 s{sOB}, s{sB2}, 5")
    e(f"s_lshl_b32 s{sT0}, s{sKH}, 4")
    e(f"s_add_u32 s{sOB}, s{sOB}, s{sT0}")
    e(f"s_lshl_b32 s{sT0}, s{sW}, 2")
    e(f"s_add_u32 s{sOB}, s{sOB}, s{sT0}")
    e(f"s_mul_i32 s{sOB}, s{sOB}, 24576")
    e(f"s_mul_i32 s{sT0}, s{sQH}, 3072")
    e(f"s_add_u32 s{sOB}, s{sOB}, s{sT0}")
    OA = 200; oseq = {}; RING = 14
    def oload(ks):
        e(f"s_add_u32 s{sT0}, s{sROT}, {ks}")
        e(f"s_and_b32 s{sT0}, s{sT0}, 15")
        e(f"s_mul_i32 s{sT0}, s{sT0}, 6144")
        e(f"s_add_u32 s{sT0}, s{sT0}, s{sOB}")
        for jq in range(3):
            oseq[ks] = vm(f"buffer_load_dwordx4 {vr(32 + ((ks%RING)*3+jq)*4,4)}, v{vL16}, {srd(SWS)}, s{sT0} offen offset:{jq*1024} sc1")
    for ks in range(OPRE): oload(ks)
    for ks in range(16):
        wait_for(oseq[ks])
        for jq in range(3):
            for jj in range(4):
                d = OA + (jj*3+jq)*4
                cin = "0" if ks == 0 else vr(d,4)
                e(f"v_mfma_f32_16x16x32_bf16 {vr(d,4)}, {ar(FRG(ks,jj),4)}, {vr(32+((ks%RING)*3+jq)*4,4)}, {cin}")
            if jq == 0 and ks + OPRE < 16: oload(ks+OPRE)
    nop(8)
    stamp("oproj_done")
    c("cross-wave reduce: wave w sums n16 tile jj=w (3 q tiles)")
    e(f"s_mul_i32 s{sT1}, s{sW}, 12288")
    e(f"v_add_u32 v30, s{sT1}, v{vL16}")
    e("s_barrier")
    for t in range(12):
        e(f"ds_write_b128 v30, {vr(OA+t*4,4)} offset:{t*1024}")
    e("s_waitcnt lgkmcnt(0)")
    e("s_barrier")
    e(f"s_mul_i32 s{sT1}, s{sW}, 3072")
    e(f"v_add_u32 v30, s{sT1}, v{vL16}")
    for ww in range(4):
        for jq in range(3):
            e(f"ds_read_b128 {vr(32+(ww*3+jq)*4,4)}, v30 offset:{ww*12288 + jq*1024}")
    e("s_waitcnt lgkmcnt(0)")
    for r in range(12):
        e(f"v_add_f32 v{32+r}, v{32+r}, v{44+r}")
        e(f"v_add_f32 v{56+r}, v{56+r}, v{68+r}")
        e(f"v_add_f32 v{32+r}, v{32+r}, v{56+r}")
    c("waves with (w>>1) != kh send their tile to the partner; others receive")
    e(f"s_lshr_b32 s{sT0}, s{sW}, 1")
    e(f"s_and_b32 s{sT2}, s{sW}, 1")
    e(f"s_lshl_b32 s{sT2}, s{sT2}, 12")
    e(f"s_cmp_eq_u32 s{sT0}, s{sKH}")
    e("s_cbranch_scc1 L_recv")
    e(f"s_lshl_b32 s{sT1}, s2, 13")
    e(f"s_add_u32 s{sT1}, s{sT1}, s{sT2}")
    e(f"s_add_u32 s{sT1}, s{sT1}, {POFF}")
    for g_ in range(4):
        for i in range(3): e(f"v_mov_b32 v{80+g_*4+i}, v{32+g_*3+i}")
        e(f"v_mov_b32 v{83+g_*4}, s{sTAG}")
        e(f"buffer_store_dwordx4 {vr(80+g_*4,4)}, v{vL16}, {srd(SWS)}, s{sT1} offen offset:{g_*1024} sc1")
    e("s_branch L_fin")
    lab("L_recv")
    e(f"s_xor_b32 s{sT3}, s2, 1")
    e(f"s_lshl_b32 s{sT3}, s{sT3}, 13")
    e(f"s_add_u32 s{sT3}, s{sT3}, s{sT2}")
    e(f"s_add_u32 s{sT3}, s{sT3}, {POFF}")
    c("out offset = ((b2*96 + 48qh + 16jq + q)*512 + 64ct + 16w + 4g')*2")
    e(f"s_mul_i32 s{sT0}, s{sB2}, 96")
    e(f"s_mul_i32 s{sT1}, s{sQH}, 48")
    e(f"s_add_u32 s{sT0}, s{sT0}, s{sT1}")
    e(f"s_lshl_b32 s{sT0}, s{sT0}, 10")
    e(f"s_lshl_b32 s{sT1}, s{sCT}, 7")
    e(f"s_add_u32 s{sT0}, s{sT0}, s{sT1}")
    e(f"s_lshl_b32 s{sT1}, s{sW}, 5")
    e(f"s_add_u32 s{sT0}, s{sT0}, s{sT1}")
    e("v_and_b32 v31, 15, v1")
    e("v_lshlrev_b32 v31, 10, v31")
    e("v_lshrrev_b32 v2, 4, v1")
    e("v_lshl_add_u32 v31, v2, 3, v31")
    e(f"s_mov_b32 s{sCNT}, 0")
    lab("L_poll2")
    for g_ in range(4):
        e(f"buffer_load_dwordx4 {vr(80+g_*4,4)}, v{vL16}, {srd(SWS)}, s{sT3} offen offset:{g_*1024} sc1")
    e("s_waitcnt vmcnt(0)")
    e("v_xor_b32 v2, v83, v87")
    e("v_xor_b32 v3, v91, v95")
    e(f"v_xor_b32 v4, s{sTAG}, v83")
    e("v_xor_b32 v5, v87, v91")
    e("v_or_b32 v2, v2, v3")
    e("v_or3_b32 v2, v2, v4, v5")
    e("v_cmp_ne_u32 vcc, 0, v2")
    e(f"s_add_u32 s{sCNT}, s{sCNT}, 1")
    e("s_nop 3")
    e("s_cbranch_vccz L_poll2_done")
    e("s_sleep 1")
    e(f"s_cmp_lt_u32 s{sCNT}, 200000")
    e("s_cbranch_scc1 L_poll2")
    lab("L_poll2_done")
    for r in range(12): e(f"v_add_f32 v{32+r}, v{32+r}, v{80+(r//3)*4+r%3}")
    for jq in range(3):
        e(f"v_cvt_pk_bf16_f32 v{64+jq*2}, v{32+jq*4}, v{33+jq*4}")
        e(f"v_cvt_pk_bf16_f32 v{65+jq*2}, v{34+jq*4}, v{35+jq*4}")
        e(f"buffer_store_dwordx2 {vr(64+jq*2,2)}, v31, {srd(SOUT)}, s{sT0} offen")
        e(f"s_add_u32 s{sT0}, s{sT0}, 16384")
    lab("L_fin")

prologue(); qproj(); attention(); outproj_g()
stamp("end"); stamp_dump()
lab("L_end"); e("s_endpgm")
hdr = open("cdna_kernels/%s.s.ref" % NAME).read().split("; @launch")[0]
out = hdr + "; @launch grid=(256,1,1) block=(256,1,1) lds=163840\n"
out += f""".amdgcn_target "amdgcn-amd-amdhsa--gfx950"
.text
.globl {NAME}_kernel
.p2align 8
.type {NAME}_kernel,@function
{NAME}_kernel:
""" + "\n".join(L) + f"""
.section .rodata,"a"
.p2align 6
.amdhsa_kernel {NAME}_kernel
  .amdhsa_next_free_vgpr 512
  .amdhsa_next_free_sgpr 102
  .amdhsa_accum_offset 256
  .amdhsa_group_segment_fixed_size 0
  .amdhsa_kernarg_size 64
  .amdhsa_user_sgpr_count 2
  .amdhsa_user_sgpr_kernarg_segment_ptr 1
  .amdhsa_system_sgpr_workgroup_id_x 1
.end_amdhsa_kernel
"""
dst = sys.argv[1] if len(sys.argv) > 1 else "cdna_kernels/%s.s" % NAME
open(dst, "w").write(out)
print("wrote", dst, len(L), "lines")
```

```python
import sys, os
L = []
def e(s): L.append("    " + s)
def lab(s): L.append(s + ":")
def c(s): L.append("    ; " + s)
def nop(n):
    while n > 0:
        k = min(n, 16); e(f"s_nop {k-1}"); n -= k
NAME = "standalone__gqa_block_cached__near_ridge"
STAMP = os.environ.get("STAMP")
VPRE = int(os.environ.get("VPRE", "4"))
NT = os.environ.get("NT", " nt")
K1 = int(os.environ.get("K1", "12"))
K2 = int(os.environ.get("K2", "12"))
K3 = int(os.environ.get("K3", "16"))
VS = int(os.environ.get("VS", "2"))
WP = int(os.environ.get("WP", "8"))
ROT = int(os.environ.get("ROT", "0"))
WE = int(os.environ.get("WE", "0"))
OPRE = int(os.environ.get("OPRE", "5"))
WA = int(os.environ.get("WA", "12"))
KB = int(os.environ.get("KB", "4"))
EARLY = int(os.environ.get("EARLY", "0"))
WS2 = int(os.environ.get("WS2", "0"))
KPRE = int(os.environ.get("KPRE", "4"))
XOFF = 0; STG = 98304; QOFF = 131072; EXTRA = 131072
MAXOFF = 155648; SUMOFF = 160*1024 - 2048
SX, SK, SV, SWQ, SWO, SOUT, SWS, SDBG = 8, 12, 16, 20, 24, 28, 32, 36
sW, sB, sH, sT0, sT1, sT2, sT3 = 40, 41, 42, 43, 44, 45, 46
sKV, sXB, sC, sB2, sQH, sCT, sOB, sWN, sCNT = 47, 48, 49, 50, 51, 52, 53, 54, 55
sVb, sVl, sWo = 56, 57, 58
sKH = 5
sROT = 4; sR1 = 7; sXc = 63; sWc = 64; sWk = 65
sXm, sXs, sWq = 59, 60, 61
POFF = 0x800000
FOFF = 0xA00000
WTOFF = 0xC00000
sTAG = 6
vTG = 122
def srd(r): return f"s[{r}:{r+3}]"
vKo = 2; vXo = [31]; vWq = 7; vL16 = 8; vStW = 9; vStR = 10
vXa = list(range(11,19)); vQw = 19; vVo = 20; vVr = [21,22,23,24]; vSl = [25,26]; vSr = [3,4,5,6]
vSt = 27; vStr = 28; vWo = 29
def S(a,j): return 32 + (a*6+j)*4
vM = 224; vLs = 230; vTmp = 236
def vr(b,n): return f"v[{b}:{b+n-1}]"
def ar(b,n): return f"a[{b}:{b+n-1}]"
stamps = []
def stamp(name):
    if STAMP is None: return
    if os.environ.get("FINE") and name in ("softmax_done","V3_ready","O_stored","poll_done","oproj_done"): return
    k = len(stamps); stamps.append(name)
    e(f"s_memrealtime s[{74+2*k}:{75+2*k}]")
    e("s_waitcnt lgkmcnt(0)")
def stamp_dump():
    if STAMP is None: return
    e(f"s_cmp_lg_u32 s{sW}, 0")
    e("s_cbranch_scc1 L_end")
    e("s_mov_b64 exec, 1")
    e(f"s_mov_b32 s{SWS+2}, 0x2000000")
    e(f"s_lshl_b32 s{sT1}, s2, 6")
    e(f"s_add_u32 s{sT1}, s{sT1}, 0x1800000")
    for k in range(len(stamps)):
        e(f"v_mov_b32 v30, s{74+2*k}")
        e(f"v_mov_b32 v31, {k*4}")
        e(f"buffer_store_dword v30, v31, {srd(SWS)}, s{sT1} offen")
        e("s_nop 1")
    L.append("; STAMPS " + ",".join(stamps))

class VM:
    n = 0
def vm(s):
    e(s); VM.n += 1; return VM.n
def wait_for(seq, extra=""):
    k = min(63, VM.n - seq)
    e(f"s_waitcnt vmcnt({k}){extra}")

def prologue():
    e("s_cmp_ge_u32 s2, 256")
    e("s_cbranch_scc1 L_end")
    stamp("start")
    e("s_load_dwordx16 s[56:71], s[0:1], 0")
    e("s_memrealtime s[6:7]")
    e("v_and_b32 v1, 63, v0")
    e("v_lshrrev_b32 v30, 6, v0")
    e("s_nop 0")
    e(f"v_readfirstlane_b32 s{sW}, v30")
    e(f"s_and_b32 s{sT0}, s2, 7")
    e(f"s_lshr_b32 s{sT1}, s2, 3")
    e(f"s_and_b32 s{sT2}, s{sT1}, 3")
    e(f"s_lshl_b32 s{sH}, s{sT0}, 2")
    e(f"s_add_u32 s{sH}, s{sH}, s{sT2}")
    e(f"s_lshr_b32 s{sB}, s{sT1}, 2")
    e(f"s_and_b32 s{sKH}, s{sT0}, 1")
    e(f"s_andn2_b32 s{sB2}, s{sT0}, 1")
    e(f"s_lshr_b32 s{sT3}, s{sT2}, 1")
    e(f"s_add_u32 s{sB2}, s{sB2}, s{sT3}")
    e(f"s_and_b32 s{sQH}, s{sT2}, 1")
    e(f"s_mov_b32 s{sCT}, s{sB}")
    e(f"s_lshl_b32 s{sROT}, s{sT2}, 1")
    e(f"s_add_u32 s{sROT}, s{sROT}, s{sCT}")
    e(f"s_lshl_b32 s{sROT}, s{sROT}, 1")
    e(f"s_and_b32 s{sROT}, s{sROT}, 15")
    e(f"s_lshl_b32 s{sKV}, s{sB}, 5")
    e(f"s_add_u32 s{sKV}, s{sKV}, s{sH}")
    e(f"s_lshl_b32 s{sKV}, s{sKV}, 17")
    e(f"s_lshl_b32 s{sT3}, s{sW}, 15")
    e(f"s_add_u32 s{sKV}, s{sKV}, s{sT3}")
    e(f"s_mul_i32 s{sXB}, s{sB}, 98304")
    e(f"s_add_u32 s{sWN}, s{sW}, 1")
    e(f"s_and_b32 s{sWN}, s{sWN}, 3")
    e(f"s_mov_b32 s{sC}, 0x3e0293ee")
    e("v_and_b32 v30, 15, v1")
    e("v_lshrrev_b32 v31, 4, v1")
    e(f"v_lshlrev_b32 v{vKo}, 8, v30")
    e(f"v_lshl_add_u32 v{vKo}, v31, 4, v{vKo}")
    e(f"v_lshlrev_b32 v{vL16}, 4, v1")
    e("s_waitcnt lgkmcnt(0)")
    e(f"s_or_b32 s{sTAG}, s{sTAG}, 1")
    e(f"s_add_u32 s{sR1}, s{sB}, s{sH}")
    sizes = [786432, 33554432, 33554432, 4194304, 4194304, 786432, 256, WTOFF + 0x400000]
    regs = [SX, SK, SV, SWQ, SWO, SOUT, SDBG, SWS]
    for i,(r,sz) in enumerate(zip(regs,sizes)):
        e(f"s_mov_b32 s{r}, s{56+2*i}")
        e(f"s_and_b32 s{r+1}, s{57+2*i}, 0xffff")
        e(f"s_mov_b32 s{r+2}, {sz}")
        e(f"s_mov_b32 s{r+3}, 0x00020000")

kseq = {}; kn = [0]; TAGSEQ = [0]; PST = [0]
def k1():
    if kn[0] >= 32: return
    a, s_ = kn[0]//4, kn[0]%4; kn[0] += 1
    if s_ == 0: e(f"s_add_u32 s{sCNT}, s{sKV}, {a*4096}")
    kseq[a] = vm(f"buffer_load_dwordx4 {ar((a*4+s_)*4,4)}, v{vKo}, {srd(SK)}, s{sCNT} offen offset:{s_*64}{NT}")
vseq = {}; vn = [0]
def v1():
    if vn[0] >= 32: return
    hf, i = vn[0]//16, vn[0]%16; vn[0] += 1
    if hf == 1 and i == 4:
        e(f"s_lshl_b32 s{sWk}, s{sCT}, 7")
        e(f"s_lshl_b32 s{sCNT}, s{sKH}, 6")
        e(f"s_add_u32 s{sWk}, s{sWk}, s{sCNT}")
        e(f"s_add_u32 s{sXc}, s{sWk}, {FOFF + 4096}")
        e("v_and_b32 v19, 15, v1")
        e("v_lshlrev_b32 v19, 2, v19")
        vm(f"buffer_load_dword v7, v19, {srd(SWS)}, s{sXc} offen sc1")
    if i == 0:
        e(f"s_lshr_b32 s{sVb}, s{sW}, 1")
        if hf == 0: e(f"s_xor_b32 s{sVb}, s{sVb}, 1")
        e(f"s_lshl_b32 s{sVb}, s{sVb}, 7")
        e(f"s_add_u32 s{sVb}, s{sVb}, s{sKV}")
    e(f"s_add_u32 m0, s{sVl}, {hf*16384 + i*1024}")
    e(f"s_add_u32 s{sCNT}, s{sVb}, {i*2048}")
    vseq[(hf,i//4)] = vm(f"buffer_load_dwordx4 v{vVo}, {srd(SV)}, s{sCNT} offen{NT} lds")
wn = [0]; WCAP = [56]; WSEQ = {}
def WR(i): return 224 + 4*i if i < 8 else 4*(i-8)
def w1():
    if wn[0] >= WCAP[0]: return
    i = wn[0]; wn[0] += 1
    if i % 4 == 0:
        e(f"s_add_u32 s{sWk}, s{sROT}, {i//4}")
        e(f"s_and_b32 s{sWk}, s{sWk}, 15")
        e(f"s_lshl_b32 s{sWk}, s{sWk}, 12")
        e(f"s_add_u32 s{sWk}, s{sWk}, s{sWo}")
    WSEQ[i] = vm(f"buffer_load_dwordx4 {ar(WR(i),4)}, v{vL16}, {srd(SWS)}, s{sWk} offen offset:{(i%4)*1024} sc1")

def addr_setup():
    e(f"s_lshl_b32 s{sT1}, s{sW}, 14")
    e(f"s_add_u32 s{sT1}, s{sT1}, {STG}")
    c("staging write: cg*16384 + (32w + i/16)*64 + (i%4)*16")
    e("v_bfe_u32 v30, v1, 2, 2")
    e(f"v_lshlrev_b32 v{vStW}, 14, v30")
    e("v_lshrrev_b32 v30, 4, v1")
    e(f"v_lshl_add_u32 v{vStW}, v30, 6, v{vStW}")
    e("v_and_b32 v30, 3, v1")
    e(f"v_lshl_add_u32 v{vStW}, v30, 4, v{vStW}")
    e(f"s_lshl_b32 s{sT2}, s{sW}, 11")
    e(f"s_add_u32 s{sT2}, s{sT2}, {STG}")
    e(f"v_add_u32 v{vStW}, s{sT2}, v{vStW}")
    e("v_lshrrev_b32 v30, 5, v1")
    e("v_lshlrev_b32 v30, 3, v30")
    e("v_bfe_u32 v31, v1, 2, 2")
    e("v_add_u32 v30, v30, v31")
    e(f"v_lshlrev_b32 v{vStR}, 6, v30")
    e("v_bfe_u32 v30, v1, 4, 1")
    e(f"v_lshl_add_u32 v{vStR}, v30, 5, v{vStR}")
    e("v_and_b32 v30, 1, v1")
    e(f"v_lshl_add_u32 v{vStR}, v30, 4, v{vStR}")
    e("v_bfe_u32 v30, v1, 1, 1")
    e(f"v_lshl_add_u32 v{vStR}, v30, 3, v{vStR}")
    e(f"v_add_u32 v{vStR}, s{sT1}, v{vStR}")
    e("v_and_b32 v30, 31, v1")
    e("v_lshlrev_b32 v30, 8, v30")
    e("v_lshrrev_b32 v31, 5, v1")
    for lo in range(8):
        e(f"v_add_u32 v{vXa[lo]}, {2*lo}, v31")
        e(f"v_xor_b32 v{vXa[lo]}, v{vXa[lo]}, v1")
        e(f"v_and_b32 v{vXa[lo]}, 15, v{vXa[lo]}")
        e(f"v_lshl_add_u32 v{vXa[lo]}, v{vXa[lo]}, 4, v30")
        e(f"v_add_u32 v{112+lo}, 0xc000, v{vXa[lo]}")
    e("v_bfe_u32 v30, v1, 4, 1")
    e(f"v_lshlrev_b32 v{vQw}, 12, v30")
    e("v_and_b32 v30, 15, v1")
    e(f"v_lshl_add_u32 v{vQw}, v30, 4, v{vQw}")
    e("v_lshrrev_b32 v30, 5, v1")
    e(f"v_lshl_add_u32 v{vQw}, v30, 8, v{vQw}")
    e(f"s_lshl_b32 s{sT1}, s{sW}, 10")
    e(f"s_add_u32 s{sT1}, s{sT1}, {QOFF}")
    e(f"v_add_u32 v{vQw}, s{sT1}, v{vQw}")
    c("V dma: (i/8)*256 + (((i%8)/2 ^ ((i/16)&3))*2 + (i&1))*16 ; wo: (i/8)*1024 + (i%8)*16")
    e("v_lshrrev_b32 v30, 4, v1")
    e("v_lshlrev_b32 v30, 1, v30")
    e("v_xor_b32 v30, v30, v1")
    e("v_and_b32 v30, 7, v30")
    e("v_lshrrev_b32 v120, 3, v1")
    e(f"v_lshlrev_b32 v{vVo}, 8, v120")
    e(f"v_lshl_add_u32 v{vVo}, v30, 4, v{vVo}")
    e("v_and_b32 v30, 7, v1")
    e(f"v_lshlrev_b32 v{vWo}, 10, v120")
    e(f"v_lshl_add_u32 v{vWo}, v30, 4, v{vWo}")
    c("tr read base0: w*32768 + (lane>>2)*128 + (((lane>>3)&3)*32) + (lane&3)*8 ; blk b -> ^ b*32")
    e("v_lshrrev_b32 v30, 2, v1")
    e(f"v_lshlrev_b32 v{vVr[0]}, 7, v30")
    e("v_bfe_u32 v30, v1, 3, 2")
    e(f"v_lshl_add_u32 v{vVr[0]}, v30, 5, v{vVr[0]}")
    e("v_and_b32 v30, 3, v1")
    e(f"v_lshl_add_u32 v{vVr[0]}, v30, 3, v{vVr[0]}")
    e(f"s_lshl_b32 s{sVl}, s{sW}, 15")
    e(f"v_add_u32 v{vVr[0]}, s{sVl}, v{vVr[0]}")
    c("vVr[0..1]: group w^1|w^3 parity (blk 2*((w&1)^1)+j2); vVr[2..3]: own parity")
    e(f"s_and_b32 s{sT1}, s{sW}, 1")
    e(f"s_lshl_b32 s{sT1}, s{sT1}, 6")
    e(f"v_xor_b32 v{vVr[2]}, s{sT1}, v{vVr[0]}")
    e(f"v_xor_b32 v{vVr[3]}, 32, v{vVr[2]}")
    e(f"v_xor_b32 v{vVr[0]}, 64, v{vVr[2]}")
    e(f"v_xor_b32 v{vVr[1]}, 64, v{vVr[3]}")
    c("partial slots: own V region + extra")
    e(f"v_add_u32 v{vSl[0]}, s{sVl}, v{vL16}")
    e(f"s_lshl_b32 s{sT1}, s{sW}, 13")
    e(f"s_add_u32 s{sT1}, s{sT1}, {EXTRA}")
    e(f"v_add_u32 v{vSl[1]}, s{sT1}, v{vL16}")
    e(f"v_xor_b32 v{vSr[0]}, 0x18000, v{vSl[0]}")
    e(f"v_xor_b32 v{vSr[1]}, 0x10000, v{vSl[0]}")
    e(f"v_xor_b32 v{vSr[2]}, 0x4000, v{vSl[1]}")
    e(f"v_xor_b32 v{vSr[3]}, 0x8000, v{vSl[0]}")
    c("woT base: WTOFF + (ct*128 + kh*64 + w*16)*4096")
    e(f"s_lshl_b32 s{sWo}, s{sCT}, 3")
    e(f"s_lshl_b32 s{sT1}, s{sKH}, 2")
    e(f"s_add_u32 s{sWo}, s{sWo}, s{sT1}")
    e(f"s_add_u32 s{sWo}, s{sWo}, s{sW}")
    e(f"s_lshl_b32 s{sWo}, s{sWo}, 16")
    e(f"s_add_u32 s{sWo}, s{sWo}, {WTOFF}")
    e("v_and_b32 v30, 15, v1")
    e(f"v_lshlrev_b32 v{vStr}, 4, v30")
    e(f"v_add_u32 v{vStr}, {MAXOFF}, v{vStr}")
    e(f"s_lshl_b32 s{sT1}, s{sW}, 2")
    e(f"v_add_u32 v{vSt}, s{sT1}, v{vStr}")

ACC = 32; XF = 128; WF = 164
def qproj():
    c("x voffset: (4w+i/16)*1024 + ((i%16)^(4w+i/16))*16")
    e(f"s_lshl_b32 s{sT1}, s{sW}, 2")
    e("v_lshrrev_b32 v30, 4, v1")
    e(f"v_add_u32 v30, s{sT1}, v30")
    e("v_xor_b32 v29, v30, v1")
    e("v_and_b32 v29, 15, v29")
    e(f"v_lshlrev_b32 v{vXo[0]}, 10, v30")
    e(f"v_lshl_add_u32 v{vXo[0]}, v29, 4, v{vXo[0]}")
    e(f"s_lshl_b32 s{sXm}, s{sW}, 10")
    e("v_lshrrev_b32 v30, 4, v1")
    e(f"v_lshlrev_b32 v{vWq}, 13, v30")
    e("v_and_b32 v30, 15, v1")
    e(f"v_lshl_add_u32 v{vWq}, v30, 4, v{vWq}")
    e(f"s_lshl_b32 s{sWq}, s{sH}, 8")
    e(f"s_lshl_b32 s{sT1}, s{sW}, 18")
    e(f"s_add_u32 s{sWq}, s{sWq}, s{sT1}")
    xs = {}; wqs = {}
    def xl(ch, m):
        if m == 0:
            e(f"s_add_u32 s{sXc}, s{sR1}, {ch}")
            e(f"s_and_b32 s{sXc}, s{sXc}, {3 if ROT else 0}" if ROT else f"s_mov_b32 s{sXc}, {ch}")
            e(f"s_lshl_b32 s{sWc}, s{sXc}, 20")
            e(f"s_add_u32 s{sWc}, s{sWc}, s{sWq}")
            e(f"s_lshl_b32 s{sXc}, s{sXc}, 8")
            e(f"s_add_u32 s{sXc}, s{sXc}, s{sXB}")
        e(f"s_add_u32 m0, s{sXm}, {XOFF + ch*24576 + m*4096}")
        e(f"s_add_u32 s{sXs}, s{sXc}, {m*16384}")
        xs[ch] = vm(f"buffer_load_dwordx4 v{vXo[0]}, {srd(SX)}, s{sXs} offen lds")
    def wl(ch, i):
        k = ch*8 + i
        e(f"s_add_u32 s{sXs}, s{sWc}, {i*4*8192}")
        wqs[ch] = vm(f"buffer_load_dwordx4 {ar(128+4*k,4)}, v{vWq}, {srd(SWQ)}, s{sXs} offen")
    seqs = [[(xl,ch,m) for m in range(6)] + [(wl,ch,i) for i in range(8)] for ch in range(4)]
    def issue(q, n):
        for _ in range(n):
            if q: it = q.pop(0); it[0](it[1], it[2])
    c("WG0 wave0 publishes the launch tag")
    e(f"s_or_b32 s{sT0}, s2, s{sW}")
    e(f"s_cmp_lg_u32 s{sT0}, 0")
    e("s_cbranch_scc1 L_notag")
    e(f"v_mov_b32 v{vTG}, s{sTAG}")
    e(f"v_mov_b32 v{vTG+1}, 0")
    e("s_mov_b64 exec, 1")
    e(f"buffer_store_dword v{vTG}, v{vTG+1}, {srd(SDBG)}, 0 offen sc1")
    e("s_mov_b64 exec, -1")
    lab("L_notag")
    issue(seqs[0], 99)
    e(f"v_mov_b32 v121, v{vXo[0]}")
    vXo[0] = 121
    addr_setup()
    issue(seqs[1], 99)
    done = [0]
    def piece():
        if done[0]: return
        done[0] = 1
        c("wo piece raw: rows (id>>3)*128 + 32w + 8i + lane/8, cols (id&7)*64")
        e(f"s_lshr_b32 s{sT0}, s2, 3")
        e(f"s_lshl_b32 s{sT0}, s{sT0}, 2")
        e(f"s_add_u32 s{sT0}, s{sT0}, s{sW}")
        e(f"s_lshl_b32 s{sT0}, s{sT0}, 15")
        e(f"s_and_b32 s{sT1}, s2, 7")
        e(f"s_lshl_b32 s{sT1}, s{sT1}, 7")
        e(f"s_add_u32 s{sT0}, s{sT0}, s{sT1}")
        for i in range(4):
            vm(f"buffer_load_dwordx4 {vr(vTmp+4*i,4)}, v{vWo}, {srd(SWO)}, s{sT0} offen")
            e(f"s_add_u32 s{sT0}, s{sT0}, 8192")
    if EARLY:
        issue(seqs[2], 99); issue(seqs[3], 99); piece()
        for _ in range(EARLY-1): k1()
    stamp("issued")
    def rd_frags(S_, buf):
        ch, s = S_//8, S_%8
        for u in range(2):
            e(f"ds_read_b64_tr_b16 {vr(WF+buf*4+u*2,2)}, v{vStR} offset:{(ch&1)*8192 + s*1024 + u*256}")
        for t3 in range(3):
            base = vXa[s] if ch < 2 else 112+s
            e(f"ds_read_b128 {vr(XF+buf*12+t3*4,4)}, v{base} offset:{(ch&1)*24576 + t3*8192}")
    def stage_w(ch, i):
        e(f"ds_write_b128 v{vStW}, {ar(128+(ch*8+i)*4,4)} offset:{(ch&1)*8192 + i*256}")
    wait_for(max(wqs[0], xs[0]))
    for i in range(8): stage_w(0, i)
    for ch in range(4):
        e("s_waitcnt lgkmcnt(0)")
        e("s_barrier")
        if ch == 0: stamp("x_ready")
        rd_frags(ch*8, 0); rd_frags(ch*8+1, 1)
        pend = 10
        q = [5, 5]
        for s in range(8):
            S_ = ch*8 + s; buf = s % 3
            if s < 6: rd_frags(S_+2, (s+2)%3); q.append(5)
            q.pop(0)
            e(f"s_waitcnt lgkmcnt({min(15, sum(q))})")
            for t3 in range(3):
                cin = "0" if S_ == 0 else vr(ACC+t3*16,16)
                e(f"v_mfma_f32_32x32x16_bf16 {vr(ACC+t3*16,16)}, {vr(WF+buf*4,4)}, {vr(XF+buf*12+t3*4,4)}, {cin}")
                if ch == 0: issue(seqs[2] if seqs[2] else seqs[3], 1)
                if (ch == 1 or (EARLY and ch == 0)) and t3 != 1 and kn[0] < K1: k1()
                if ch == 2 and t3 != 1 and kn[0] < K2: k1()
                if ch == 3 and t3 != 1 and kn[0] < K3: k1()
            if ch == 0 and s == 7:
                issue(seqs[2], 99); issue(seqs[3], 99)
                piece()
            if ch < 3 and s >= 4:
                if s == 4: wait_for(max(wqs[ch+1], xs[ch+1]))
                stage_w(ch+1, (s-4)*2); stage_w(ch+1, (s-4)*2+1)
                if q: q[-1] += 2
                else: q.append(2)
    e("s_barrier")
    stamp("qproj_done")
    nop(12)
    for t3 in range(3):
        for t in range(2):
            b0 = ACC + t3*16 + t*8
            for k in range(4):
                e(f"v_cvt_pk_bf16_f32 v{XF+(t3*2+t)*4+k}, v{b0+2*k}, v{b0+2*k+1}")
            e(f"ds_write_b128 v{vQw}, {vr(XF+(t3*2+t)*4,4)} offset:{t3*8192 + t*512}")
    for _ in range(KB):
        if kn[0] < 32: k1()
        else: v1()
    e("s_waitcnt lgkmcnt(0)")
    e("s_barrier")
    e(f"v_add_u32 v30, {QOFF}, v{vL16}")
    for j in range(6):
        for s in range(4):
            e(f"ds_read_b128 {ar(128+(j*4+s)*4,4)}, v30 offset:{(j*4+s)*1024}")

def xreduce(base, op):
    for sw in ("v_permlane32_swap_b32", "v_permlane16_swap_b32"):
        for j in range(6): e(f"v_mov_b32 v{vTmp+j}, v{base+j}")
        nop(2)
        for j in range(6): e(f"{sw} v{base+j}, v{vTmp+j}")
        nop(2)
        for j in range(6): e(f"{op} v{base+j}, v{base+j}, v{vTmp+j}")
def stat_read(off):
    for j in range(5):
        e(f"ds_read_b128 {vr(vTmp+j*4,4)}, v{vStr} offset:{off + j*256}")
    e(f"ds_read_b128 {vr(vXa[1],4)}, v{vStr} offset:{off + 5*256}")
    e("s_waitcnt lgkmcnt(0)")

def poll_loop(lbl):
    e(f"s_mov_b32 s{sCNT}, 0")
    lab(lbl)
    e(f"buffer_load_dword v30, v31, {srd(SWS)}, s{sT0} offen sc1")
    e("s_waitcnt vmcnt(0)")
    e(f"v_cmp_ne_u32 vcc, s{sTAG}, v30")
    e(f"s_add_u32 s{sCNT}, s{sCNT}, 1")
    e("s_nop 3")
    e(f"s_cbranch_vccz {lbl}_done")
    e("s_sleep 2")
    e(f"s_cmp_lt_u32 s{sCNT}, 200000")
    e(f"s_cbranch_scc1 {lbl}")
    lab(lbl + "_done")
def flag_store():
    e(f"v_mov_b32 v30, s{sTAG}")
    e("v_mov_b32 v31, 0")
    e("s_mov_b64 exec, 1")
    e(f"buffer_store_dword v30, v31, {srd(SWS)}, s{sT0} offen sc1")
    e("s_mov_b64 exec, -1")
def attention():
    for a in range(8):
        wait_for(kseq[a], " lgkmcnt(0)" if a == 0 else "")
        if a == 0:
            e("v_mov_b32 v19, 0")
            vm(f"buffer_load_dword v7, v19, {srd(SDBG)}, 0 offen sc1")
            c("wo piece: raw -> LDS (own V half-1 region)")
            e("v_lshrrev_b32 v30, 4, v1")
            e("v_lshlrev_b32 v30, 1, v30")
            e("v_xor_b32 v30, v30, v1")
            e(f"v_lshl_add_u32 v30, v30, 4, s{sVl}")
            for i in range(4): e(f"ds_write_b128 v30, {vr(vTmp+4*i,4)} offset:{16384 + i*1024}")
        if a == 1:
            e("s_waitcnt lgkmcnt(0)")
            for g4 in range(4):
                for u in range(2):
                    e(f"ds_read_b64_tr_b16 {vr(vTmp+g4*4+2*u,2)}, v{vVr[g4]} offset:{16384 + u*2048}")
        if a == 2:
            c("store frags: WTOFF + ((id&7)*128 + (id>>3)*4 + w)*4096 + jj*1024")
            e(f"s_and_b32 s{sT0}, s2, 7")
            e(f"s_lshl_b32 s{sT0}, s{sT0}, 7")
            e(f"s_lshr_b32 s{sT1}, s2, 3")
            e(f"s_lshl_b32 s{sT1}, s{sT1}, 2")
            e(f"s_add_u32 s{sT0}, s{sT0}, s{sT1}")
            e(f"s_add_u32 s{sT0}, s{sT0}, s{sW}")
            e(f"s_lshl_b32 s{sT0}, s{sT0}, 12")
            e(f"s_add_u32 s{sT0}, s{sT0}, {WTOFF}")
            e(f"s_and_b32 s{sT1}, s{sW}, 1")
            e(f"s_lshl_b32 s{sT1}, s{sT1}, 11")
            e(f"s_add_u32 s{sT2}, s{sT0}, s{sT1}")
            e(f"s_xor_b32 s{sT1}, s{sT1}, 2048")
            e(f"s_add_u32 s{sT0}, s{sT0}, s{sT1}")
            e("s_waitcnt lgkmcnt(0)")
            for g4 in range(4):
                PST[0] = vm(f"buffer_store_dwordx4 {vr(vTmp+g4*4,4)}, v{vL16}, {srd(SWS)}, s{sT0 if g4 < 2 else sT2} offen offset:{(g4&1)*1024} sc1")
        for s in range(4):
            for j in range(6):
                cin = "0" if s == 0 else vr(S(a,j),4)
                e(f"v_mfma_f32_16x16x32_bf16 {vr(S(a,j),4)}, {ar((a*4+s)*4,4)}, {ar(128+(j*4+s)*4,4)}, {cin}")
                if j == 2:
                    if kn[0] < 32: k1()
                    elif s < VS: v1()
                if a > 0 and s in (1,2):
                    p = S(a-1,j) + (s-1)*2
                    if a == 1 and s == 1: e(f"v_max_f32 v{vM+j}, v{p}, v{p+1}")
                    else: e(f"v_max3_f32 v{vM+j}, v{vM+j}, v{p}, v{p+1}")
    nop(8)
    stamp("S_done")
    for j in range(6):
        e(f"v_max3_f32 v{vM+j}, v{vM+j}, v{S(7,j)}, v{S(7,j)+1}")
        e(f"v_max3_f32 v{vM+j}, v{vM+j}, v{S(7,j)+2}, v{S(7,j)+3}")
    xreduce(vM, "v_max_f32")
    for j in range(6): e(f"ds_write_b32 v{vSt}, v{vM+j} offset:{j*256}")
    e("s_waitcnt lgkmcnt(0)")
    if kseq[7] < PST[0]: wait_for(PST[0])
    e("s_barrier")
    c("launch tag (fallback: poll until published)")
    e(f"v_readfirstlane_b32 s{sTAG}, v7")
    e(f"s_mov_b32 s{sCNT}, 0")
    lab("L_tagpoll")
    e(f"s_cmp_lg_u32 s{sTAG}, 0")
    e("s_cbranch_scc1 L_tagok")
    e(f"buffer_load_dword v7, v19, {srd(SDBG)}, 0 offen sc1")
    e("s_waitcnt vmcnt(0)")
    e(f"v_readfirstlane_b32 s{sTAG}, v7")
    e(f"s_add_u32 s{sCNT}, s{sCNT}, 1")
    e(f"s_cmp_lt_u32 s{sCNT}, 200000")
    e("s_cbranch_scc1 L_tagpoll")
    lab("L_tagok")
    e(f"s_cmp_lg_u32 s{sW}, 0")
    e("s_cbranch_scc1 L_sigw")
    e(f"s_and_b32 s{sT0}, s2, 7")
    e(f"s_lshl_b32 s{sT0}, s{sT0}, 7")
    e(f"s_lshr_b32 s{sT1}, s2, 3")
    e(f"s_lshl_b32 s{sT1}, s{sT1}, 2")
    e(f"s_add_u32 s{sT0}, s{sT0}, s{sT1}")
    e(f"s_add_u32 s{sT0}, s{sT0}, {FOFF + 4096}")
    flag_store()
    lab("L_sigw")
    stat_read(0)
    for j in range(6):
        b0 = vTmp + j*4 if j < 5 else vXa[1]
        e(f"v_max3_f32 v{b0}, v{b0}, v{b0+1}, v{b0+2}")
        e(f"v_max_f32 v{b0}, v{b0}, v{b0+3}")
        e(f"v_mul_f32 v{224+2*j}, s{sC}, v{b0}")
        e(f"v_mul_f32 v{225+2*j}, s{sC}, v{b0}")
    e(f"s_mov_b32 s66, s{sC}"); e(f"s_mov_b32 s67, s{sC}")
    e("v_mov_b32 v30, 0x3f803f80")
    for i in range(4): e(f"v_accvgpr_write_b32 a{96+i}, v30")
    pend = None
    def summ(p):
        j_, s_ = p
        cin = "0" if s_ == 0 else ar(112+4*j_,4)
        e(f"v_mfma_f32_16x16x32_bf16 {ar(112+4*j_,4)}, a[96:99], {vr(S(2*s_,j_),4)}, {cin}")
    for j in range(6):
        for s in range(4):
            regs8 = [S(2*s,j)+i for i in range(4)] + [S(2*s+1,j)+i for i in range(4)]
            for r in regs8[::2]: e(f"v_pk_fma_f32 {vr(r,2)}, {vr(r,2)}, s[66:67], {vr(224+2*j,2)} neg_lo:[0,0,1] neg_hi:[0,0,1]")
            if pend: summ(pend)
            v1()
            for r in regs8: e(f"v_exp_f32 v{r}, v{r}")
            e("s_nop 0")
            for k in range(4):
                e(f"v_cvt_pk_bf16_f32 v{S(2*s,j)+k}, v{regs8[2*k]}, v{regs8[2*k+1]}")
            pend = (j, s)
    nop(2)
    summ(pend)
    nop(8)
    for j in range(6): e(f"v_accvgpr_read_b32 v{vTmp+j}, a{112+4*j}")
    for j in range(6): e(f"ds_write_b32 v{vSt}, v{vTmp+j} offset:{SUMOFF - MAXOFF + j*256}")
    e("s_waitcnt lgkmcnt(0)")
    e("s_barrier")
    stat_read(SUMOFF - MAXOFF)
    for j in range(6):
        b0 = vTmp + j*4 if j < 5 else vXa[1]
        e(f"v_add_f32 v{b0}, v{b0}, v{b0+1}")
        e(f"v_add_f32 v{b0+2}, v{b0+2}, v{b0+3}")
        e(f"v_add_f32 v{b0}, v{b0}, v{b0+2}")
        e(f"v_rcp_f32 v{224+2*j}, v{b0}")
        e(f"v_rcp_f32 v{225+2*j}, v{b0}")
    stamp("softmax_done")
    def vfr(hf, s, buf):
        for g4 in range(4):
            for u in range(2):
                e(f"ds_read_b64_tr_b16 {ar(VA+buf*16+g4*4+2*u,2)}, v{vVr[g4]} offset:{hf*16384 + s*4096 + u*2048}")
    def phase(hf, cinit):
        wait_for(vseq[(hf,0)])
        vfr(hf, 0, 0)
        for s in range(4):
            if s < 3:
                wait_for(vseq[(hf,s+1)])
                if s == 2 and hf == 1: stamp("V3_ready")
                vfr(hf, s+1, (s+1)&1)
                if hf == 1:
                    if s == 0:
                        e(f"v_cmp_ne_u32 vcc, s{sTAG}, v7")
                        e("s_nop 4")
                        e("s_cbranch_vccz L_pollw_done")
                        e(f"s_mov_b32 s{sT0}, s{sXc}")
                        e("v_mov_b32 v31, v19")
                        poll_loop("L_pollw")
                    for _ in range(WP): w1()
                e("s_waitcnt lgkmcnt(8)")
            else: e("s_waitcnt lgkmcnt(0)")
            for g4 in range(4):
                for j in range(6):
                    d = ACCT(g4*6 + j)
                    cin = "0" if (s == 0 and not (cinit and g4 >= 2)) else vr(d,4)
                    e(f"v_mfma_f32_16x16x32_bf16 {vr(d,4)}, {ar(VA+(s&1)*16+g4*4,4)}, {vr(S(2*s,j),4)}, {cin}")
    while vn[0] < 32: v1()
    c("PV phase I: groups w^3 (tiles 0..11), w^2 (tiles 12..23)")
    phase(0, False)
    nop(4)
    for tt in range(24):
        if tt < 16: e(f"ds_write_b128 v{vSl[0]}, {vr(ACCT(tt),4)} offset:{tt*1024}")
        else: e(f"ds_write_b128 v{vSl[1]}, {vr(ACCT(tt),4)} offset:{(tt-16)*1024}")
    e("s_waitcnt lgkmcnt(0)")
    e("s_barrier")
    c("own group init = partial(w^3 tiles 0..11) + partial(w^2 tiles 12..23)")
    for t in range(12):
        e(f"ds_read_b128 {vr(ACCT(12+t),4)}, v{vSr[0]} offset:{t*1024}")
        if t < 4: e(f"ds_read_b128 {vr(ACCT(t),4)}, v{vSr[1]} offset:{(12+t)*1024}")
        else: e(f"ds_read_b128 {vr(ACCT(t),4)}, v{vSr[2]} offset:{(t-4)*1024}")
    e("s_waitcnt lgkmcnt(0)")
    for t in range(12):
        for i in (0,2): e(f"v_pk_add_f32 {vr(ACCT(12+t)+i,2)}, {vr(ACCT(12+t)+i,2)}, {vr(ACCT(t)+i,2)}")
    nop(2)
    c("PV phase II: groups w^1 (tiles 0..11, C=0), w (tiles 12..23)")
    for s in range(4):
        wait_for(vseq[(1,s)])
        if s == 3: stamp("V3_ready")
        vfr(1, s, s&1)
        if s == 1:
            e(f"v_cmp_ne_u32 vcc, s{sTAG}, v7")
            e("s_nop 4")
            e("s_cbranch_vccz L_pollw_done")
            e(f"s_mov_b32 s{sT0}, s{sXc}")
            e("v_mov_b32 v31, v19")
            poll_loop("L_pollw")
        e("s_waitcnt lgkmcnt(4)")
        for g4 in range(4):
            if g4 == 2: e("s_waitcnt lgkmcnt(0)" if s < 3 else "s_waitcnt lgkmcnt(0)")
            for j in range(6):
                d = ACCT(g4*6 + j)
                cin = "0" if (s == 0 and g4 < 2) else vr(d,4)
                e(f"v_mfma_f32_16x16x32_bf16 {vr(d,4)}, {ar(VA+(s&1)*16+g4*4,4)}, {vr(S(2*s,j),4)}, {cin}")
                if s == 3 and g4 >= 2:
                    t = (g4-2)*6 + j - 3
                    if t >= 0: e(f"ds_write_b128 v{vSl[0]}, {vr(ACCT(t),4)} offset:{16384 + t*1024}")
                elif s >= 1 and j in (1,4) and wn[0] < WP*s: w1()
    for t in range(9,12):
        e(f"ds_write_b128 v{vSl[0]}, {vr(ACCT(t),4)} offset:{16384 + t*1024}")
    for _ in range(WE): w1()
    e("s_waitcnt lgkmcnt(0)")
    e("s_barrier")
    for t in range(12):
        e(f"ds_read_b128 {vr(ACCT(t),4)}, v{vSr[3]} offset:{16384 + t*1024}")
    e("s_waitcnt lgkmcnt(0)")
    for t in range(12):
        for i in (0,2): e(f"v_pk_add_f32 {vr(ACCT(12+t)+i,2)}, {vr(ACCT(12+t)+i,2)}, {vr(ACCT(t)+i,2)}")
VA = 192
def ACCT(tt): return S(1 + 2*(tt//6), tt%6)
def outproj_g():
    f1p = [f"s_lshr_b32 s{sT0}, s{sH}, 4", f"s_lshl_b32 s{sT1}, s{sB}, 1", f"s_add_u32 s{sT0}, s{sT0}, s{sT1}", f"s_lshl_b32 s{sT0}, s{sT0}, 2"]
    f1c = [f"s_lshl_b32 s{sT1}, s{sB2}, 1", f"s_add_u32 s{sT0}, s{sKH}, s{sT1}", f"s_lshl_b32 s{sT0}, s{sT0}, 2"]
    c("normalize, pack, store O frags")
    e(f"s_lshl_b32 s{sT0}, s{sB}, 5")
    e(f"s_add_u32 s{sT0}, s{sT0}, s{sH}")
    e(f"s_lshl_b32 s{sT0}, s{sT0}, 2")
    e(f"s_add_u32 s{sT0}, s{sT0}, s{sW}")
    e(f"s_mul_i32 s{sT0}, s{sT0}, 6144")
    for j in range(6):
        for j2 in range(2):
            b0 = ACCT(12+j2*6+j)
            for i in (0,2): e(f"v_pk_mul_f32 {vr(b0+i,2)}, {vr(b0+i,2)}, {vr(224+2*j,2)}")
        d = ACCT(j)
        for j2 in range(2):
            b0 = ACCT(12+j2*6+j)
            e(f"v_cvt_pk_bf16_f32 v{d+2*j2}, v{b0}, v{b0+1}")
            e(f"v_cvt_pk_bf16_f32 v{d+2*j2+1}, v{b0+2}, v{b0+3}")
        if j == 4: e(f"s_add_u32 s{sT0}, s{sT0}, 4096")
        ost = vm(f"buffer_store_dwordx4 {vr(d,4)}, v{vL16}, {srd(SWS)}, s{sT0} offen offset:{(j%4)*1024} sc1")
    WCAP[0] = 64
    for _ in range(WA): w1()
    wait_for(ost)
    e("s_barrier")
    stamp("O_stored")
    e(f"s_cmp_lg_u32 s{sW}, 0")
    e("s_cbranch_scc1 L_sig1")
    e(f"s_lshr_b32 s{sT0}, s{sH}, 4")
    e(f"s_lshl_b32 s{sT1}, s{sB}, 1")
    e(f"s_add_u32 s{sT0}, s{sT0}, s{sT1}")
    e(f"s_lshl_b32 s{sT0}, s{sT0}, 7")
    e(f"s_and_b32 s{sT1}, s{sH}, 15")
    e(f"s_lshl_b32 s{sT1}, s{sT1}, 2")
    e(f"s_add_u32 s{sT0}, s{sT0}, s{sT1}")
    e(f"s_add_u32 s{sT0}, s{sT0}, {FOFF}")
    flag_store()
    lab("L_sig1")
    WCAP[0] = 64
    while wn[0] < 64: w1()
    def FRG(ks, jj): return WR(ks*4 + jj)
    e(f"s_cmp_lg_u32 s{sW}, 0")
    e("s_cbranch_scc1 L_poll1_done")
    e(f"s_lshl_b32 s{sT0}, s{sB2}, 1")
    e(f"s_add_u32 s{sT0}, s{sT0}, s{sKH}")
    e(f"s_lshl_b32 s{sT0}, s{sT0}, 7")
    e(f"s_add_u32 s{sT0}, s{sT0}, {FOFF}")
    e("v_and_b32 v31, 15, v1")
    e("v_lshlrev_b32 v31, 2, v31")
    poll_loop("L_poll1")
    e("s_barrier")
    stamp("poll_done")
    e(f"s_lshl_b32 s{sOB}, s{sB2}, 5")
    e(f"s_lshl_b32 s{sT0}, s{sKH}, 4")
    e(f"s_add_u32 s{sOB}, s{sOB}, s{sT0}")
    e(f"s_lshl_b32 s{sT0}, s{sW}, 2")
    e(f"s_add_u32 s{sOB}, s{sOB}, s{sT0}")
    e(f"s_mul_i32 s{sOB}, s{sOB}, 24576")
    e(f"s_mul_i32 s{sT0}, s{sQH}, 3072")
    e(f"s_add_u32 s{sOB}, s{sOB}, s{sT0}")
    OA = 200; oseq = {}; RING = 14
    def oload(ks):
        e(f"s_add_u32 s{sT0}, s{sROT}, {ks}")
        e(f"s_and_b32 s{sT0}, s{sT0}, 15")
        e(f"s_mul_i32 s{sT0}, s{sT0}, 6144")
        e(f"s_add_u32 s{sT0}, s{sT0}, s{sOB}")
        for jq in range(3):
            oseq[ks] = vm(f"buffer_load_dwordx4 {vr(32 + ((ks%RING)*3+jq)*4,4)}, v{vL16}, {srd(SWS)}, s{sT0} offen offset:{jq*1024} sc1")
    for ks in range(OPRE): oload(ks)
    for ks in range(16):
        wait_for(oseq[ks])
        for jq in range(3):
            for jj in range(4):
                d = OA + (jj*3+jq)*4
                cin = "0" if ks == 0 else vr(d,4)
                e(f"v_mfma_f32_16x16x32_bf16 {vr(d,4)}, {ar(FRG(ks,jj),4)}, {vr(32+((ks%RING)*3+jq)*4,4)}, {cin}")
            if jq == 0 and ks + OPRE < 16: oload(ks+OPRE)
    nop(8)
    stamp("oproj_done")
    c("cross-wave reduce: wave w sums n16 tile jj=w (3 q tiles)")
    e(f"s_mul_i32 s{sT1}, s{sW}, 12288")
    e(f"v_add_u32 v30, s{sT1}, v{vL16}")
    e("s_barrier")
    for t in range(12):
        e(f"ds_write_b128 v30, {vr(OA+t*4,4)} offset:{t*1024}")
    e("s_waitcnt lgkmcnt(0)")
    e("s_barrier")
    e(f"s_mul_i32 s{sT1}, s{sW}, 3072")
    e(f"v_add_u32 v30, s{sT1}, v{vL16}")
    for ww in range(4):
        for jq in range(3):
            e(f"ds_read_b128 {vr(32+(ww*3+jq)*4,4)}, v30 offset:{ww*12288 + jq*1024}")
    e("s_waitcnt lgkmcnt(0)")
    for r in range(12):
        e(f"v_add_f32 v{32+r}, v{32+r}, v{44+r}")
        e(f"v_add_f32 v{56+r}, v{56+r}, v{68+r}")
        e(f"v_add_f32 v{32+r}, v{32+r}, v{56+r}")
    c("waves with (w>>1) != kh send their tile to the partner; others receive")
    e(f"s_lshr_b32 s{sT0}, s{sW}, 1")
    e(f"s_and_b32 s{sT2}, s{sW}, 1")
    e(f"s_lshl_b32 s{sT2}, s{sT2}, 12")
    e(f"s_cmp_eq_u32 s{sT0}, s{sKH}")
    e("s_cbranch_scc1 L_recv")
    e(f"s_lshl_b32 s{sT1}, s2, 13")
    e(f"s_add_u32 s{sT1}, s{sT1}, s{sT2}")
    e(f"s_add_u32 s{sT1}, s{sT1}, {POFF}")
    for g_ in range(4):
        for i in range(3): e(f"v_mov_b32 v{80+g_*4+i}, v{32+g_*3+i}")
        e(f"v_mov_b32 v{83+g_*4}, s{sTAG}")
        e(f"buffer_store_dwordx4 {vr(80+g_*4,4)}, v{vL16}, {srd(SWS)}, s{sT1} offen offset:{g_*1024} sc1")
    e("s_branch L_fin")
    lab("L_recv")
    e(f"s_xor_b32 s{sT3}, s2, 1")
    e(f"s_lshl_b32 s{sT3}, s{sT3}, 13")
    e(f"s_add_u32 s{sT3}, s{sT3}, s{sT2}")
    e(f"s_add_u32 s{sT3}, s{sT3}, {POFF}")
    c("out offset = ((b2*96 + 48qh + 16jq + q)*512 + 64ct + 16w + 4g')*2")
    e(f"s_mul_i32 s{sT0}, s{sB2}, 96")
    e(f"s_mul_i32 s{sT1}, s{sQH}, 48")
    e(f"s_add_u32 s{sT0}, s{sT0}, s{sT1}")
    e(f"s_lshl_b32 s{sT0}, s{sT0}, 10")
    e(f"s_lshl_b32 s{sT1}, s{sCT}, 7")
    e(f"s_add_u32 s{sT0}, s{sT0}, s{sT1}")
    e(f"s_lshl_b32 s{sT1}, s{sW}, 5")
    e(f"s_add_u32 s{sT0}, s{sT0}, s{sT1}")
    e("v_and_b32 v31, 15, v1")
    e("v_lshlrev_b32 v31, 10, v31")
    e("v_lshrrev_b32 v2, 4, v1")
    e("v_lshl_add_u32 v31, v2, 3, v31")
    e(f"s_mov_b32 s{sCNT}, 0")
    lab("L_poll2")
    for g_ in range(4):
        e(f"buffer_load_dwordx4 {vr(80+g_*4,4)}, v{vL16}, {srd(SWS)}, s{sT3} offen offset:{g_*1024} sc1")
    e("s_waitcnt vmcnt(0)")
    e("v_xor_b32 v2, v83, v87")
    e("v_xor_b32 v3, v91, v95")
    e(f"v_xor_b32 v4, s{sTAG}, v83")
    e("v_xor_b32 v5, v87, v91")
    e("v_or_b32 v2, v2, v3")
    e("v_or3_b32 v2, v2, v4, v5")
    e("v_cmp_ne_u32 vcc, 0, v2")
    e(f"s_add_u32 s{sCNT}, s{sCNT}, 1")
    e("s_nop 3")
    e("s_cbranch_vccz L_poll2_done")
    e("s_sleep 1")
    e(f"s_cmp_lt_u32 s{sCNT}, 200000")
    e("s_cbranch_scc1 L_poll2")
    lab("L_poll2_done")
    for r in range(12): e(f"v_add_f32 v{32+r}, v{32+r}, v{80+(r//3)*4+r%3}")
    for jq in range(3):
        e(f"v_cvt_pk_bf16_f32 v{64+jq*2}, v{32+jq*4}, v{33+jq*4}")
        e(f"v_cvt_pk_bf16_f32 v{65+jq*2}, v{34+jq*4}, v{35+jq*4}")
        e(f"buffer_store_dwordx2 {vr(64+jq*2,2)}, v31, {srd(SOUT)}, s{sT0} offen")
        e(f"s_add_u32 s{sT0}, s{sT0}, 16384")
    lab("L_fin")

prologue(); qproj(); attention(); outproj_g()
stamp("end"); stamp_dump()
lab("L_end"); e("s_endpgm")
hdr = open("cdna_kernels/%s.s.ref" % NAME).read().split("; @launch")[0]
out = hdr + "; @launch grid=(256,1,1) block=(256,1,1) lds=163840\n"
out += f""".amdgcn_target "amdgcn-amd-amdhsa--gfx950"
.text
.globl {NAME}_kernel
.p2align 8
.type {NAME}_kernel,@function
{NAME}_kernel:
""" + "\n".join(L) + f"""
.section .rodata,"a"
.p2align 6
.amdhsa_kernel {NAME}_kernel
  .amdhsa_next_free_vgpr 512
  .amdhsa_next_free_sgpr 102
  .amdhsa_accum_offset 256
  .amdhsa_group_segment_fixed_size 0
  .amdhsa_kernarg_size 64
  .amdhsa_user_sgpr_count 2
  .amdhsa_user_sgpr_kernarg_segment_ptr 1
  .amdhsa_system_sgpr_workgroup_id_x 1
.end_amdhsa_kernel
"""
dst = sys.argv[1] if len(sys.argv) > 1 else "cdna_kernels/%s.s" % NAME
open(dst, "w").write(out)
print("wrote", dst, len(L), "lines")
```

```python
import sys, os
L = []
def e(s): L.append("    " + s)
def lab(s): L.append(s + ":")
def c(s): L.append("    ; " + s)
def nop(n):
    while n > 0:
        k = min(n, 16); e(f"s_nop {k-1}"); n -= k
NAME = "standalone__gqa_block_cached__near_ridge"
STAMP = os.environ.get("STAMP")
VPRE = int(os.environ.get("VPRE", "4"))
NT = os.environ.get("NT", " nt")
K1 = int(os.environ.get("K1", "12"))
K2 = int(os.environ.get("K2", "12"))
K3 = int(os.environ.get("K3", "16"))
VS = int(os.environ.get("VS", "2"))
WP = int(os.environ.get("WP", "8"))
ROT = int(os.environ.get("ROT", "0"))
WE = int(os.environ.get("WE", "0"))
OPRE = int(os.environ.get("OPRE", "5"))
WA = int(os.environ.get("WA", "12"))
KB = int(os.environ.get("KB", "4"))
EARLY = int(os.environ.get("EARLY", "0"))
VD = int(os.environ.get("VD", "2"))
WS2 = int(os.environ.get("WS2", "0"))
KPRE = int(os.environ.get("KPRE", "4"))
XOFF = 0; STG = 98304; QOFF = 131072; EXTRA = 131072
MAXOFF = 155648; SUMOFF = 160*1024 - 2048
SX, SK, SV, SWQ, SWO, SOUT, SWS, SDBG = 8, 12, 16, 20, 24, 28, 32, 36
sW, sB, sH, sT0, sT1, sT2, sT3 = 40, 41, 42, 43, 44, 45, 46
sKV, sXB, sC, sB2, sQH, sCT, sOB, sWN, sCNT = 47, 48, 49, 50, 51, 52, 53, 54, 55
sVb, sVl, sWo = 56, 57, 58
sKH = 5
sROT = 4; sR1 = 7; sXc = 63; sWc = 64; sWk = 65
sXm, sXs, sWq = 59, 60, 61
POFF = 0x800000
FOFF = 0xA00000
WTOFF = 0xC00000
sTAG = 6
vTG = 122
def srd(r): return f"s[{r}:{r+3}]"
vKo = 2; vXo = [31]; vWq = 7; vL16 = 8; vStW = 9; vStR = 10
vXa = list(range(11,19)); vQw = 19; vVo = 20; vVr = [21,22,23,24]; vSl = [25,26]; vSr = [3,4,5,6]
vSt = 27; vStr = 28; vWo = 29
def S(a,j): return 32 + (a*6+j)*4
vM = 224; vLs = 230; vTmp = 236
def vr(b,n): return f"v[{b}:{b+n-1}]"
def ar(b,n): return f"a[{b}:{b+n-1}]"
stamps = []
def stamp(name):
    if STAMP is None: return
    if os.environ.get("FINE2") and name in ("issued","x_ready","qproj_done","S_done"): return
    if name.startswith("f2") and not os.environ.get("FINE2"): return
    if os.environ.get("FINE") and name in ("softmax_done","V3_ready","O_stored","poll_done","oproj_done"): return
    k = len(stamps); stamps.append(name)
    e(f"s_memrealtime s[{74+2*k}:{75+2*k}]")
    e("s_waitcnt lgkmcnt(0)")
def stamp_dump():
    if STAMP is None: return
    e(f"s_cmp_lg_u32 s{sW}, 0")
    e("s_cbranch_scc1 L_end")
    e("s_mov_b64 exec, 1")
    e(f"s_mov_b32 s{SWS+2}, 0x2000000")
    e(f"s_lshl_b32 s{sT1}, s2, 6")
    e(f"s_add_u32 s{sT1}, s{sT1}, 0x1800000")
    for k in range(len(stamps)):
        e(f"v_mov_b32 v30, s{74+2*k}")
        e(f"v_mov_b32 v31, {k*4}")
        e(f"buffer_store_dword v30, v31, {srd(SWS)}, s{sT1} offen")
        e("s_nop 1")
    L.append("; STAMPS " + ",".join(stamps))

class VM:
    n = 0
def vm(s):
    e(s); VM.n += 1; return VM.n
def wait_for(seq, extra=""):
    k = min(63, VM.n - seq)
    e(f"s_waitcnt vmcnt({k}){extra}")

def prologue():
    e("s_cmp_ge_u32 s2, 256")
    e("s_cbranch_scc1 L_end")
    stamp("start")
    e("s_load_dwordx16 s[56:71], s[0:1], 0")
    e("s_memrealtime s[6:7]")
    e("v_and_b32 v1, 63, v0")
    e("v_lshrrev_b32 v30, 6, v0")
    e("s_nop 0")
    e(f"v_readfirstlane_b32 s{sW}, v30")
    e(f"s_and_b32 s{sT0}, s2, 7")
    e(f"s_lshr_b32 s{sT1}, s2, 3")
    e(f"s_and_b32 s{sT2}, s{sT1}, 3")
    e(f"s_lshl_b32 s{sH}, s{sT0}, 2")
    e(f"s_add_u32 s{sH}, s{sH}, s{sT2}")
    e(f"s_lshr_b32 s{sB}, s{sT1}, 2")
    e(f"s_and_b32 s{sKH}, s{sT0}, 1")
    e(f"s_andn2_b32 s{sB2}, s{sT0}, 1")
    e(f"s_lshr_b32 s{sT3}, s{sT2}, 1")
    e(f"s_add_u32 s{sB2}, s{sB2}, s{sT3}")
    e(f"s_and_b32 s{sQH}, s{sT2}, 1")
    e(f"s_mov_b32 s{sCT}, s{sB}")
    e(f"s_lshl_b32 s{sROT}, s{sT2}, 1")
    e(f"s_add_u32 s{sROT}, s{sROT}, s{sCT}")
    e(f"s_lshl_b32 s{sROT}, s{sROT}, 1")
    e(f"s_and_b32 s{sROT}, s{sROT}, 15")
    e(f"s_lshl_b32 s{sKV}, s{sB}, 5")
    e(f"s_add_u32 s{sKV}, s{sKV}, s{sH}")
    e(f"s_lshl_b32 s{sKV}, s{sKV}, 17")
    e(f"s_lshl_b32 s{sT3}, s{sW}, 15")
    e(f"s_add_u32 s{sKV}, s{sKV}, s{sT3}")
    e(f"s_mul_i32 s{sXB}, s{sB}, 98304")
    e(f"s_add_u32 s{sWN}, s{sW}, 1")
    e(f"s_and_b32 s{sWN}, s{sWN}, 3")
    e(f"s_mov_b32 s{sC}, 0x3e0293ee")
    e("v_and_b32 v30, 15, v1")
    e("v_lshrrev_b32 v31, 4, v1")
    e(f"v_lshlrev_b32 v{vKo}, 8, v30")
    e(f"v_lshl_add_u32 v{vKo}, v31, 4, v{vKo}")
    e(f"v_lshlrev_b32 v{vL16}, 4, v1")
    e("s_waitcnt lgkmcnt(0)")
    e(f"s_or_b32 s{sTAG}, s{sTAG}, 1")
    e(f"s_add_u32 s{sR1}, s{sB}, s{sH}")
    sizes = [786432, 33554432, 33554432, 4194304, 4194304, 786432, 256, WTOFF + 0x400000]
    regs = [SX, SK, SV, SWQ, SWO, SOUT, SDBG, SWS]
    for i,(r,sz) in enumerate(zip(regs,sizes)):
        e(f"s_mov_b32 s{r}, s{56+2*i}")
        e(f"s_and_b32 s{r+1}, s{57+2*i}, 0xffff")
        e(f"s_mov_b32 s{r+2}, {sz}")
        e(f"s_mov_b32 s{r+3}, 0x00020000")

kseq = {}; kn = [0]; TAGSEQ = [0]; PST = [0]
def k1():
    if kn[0] >= 32: return
    a, s_ = kn[0]//4, kn[0]%4; kn[0] += 1
    if s_ == 0: e(f"s_add_u32 s{sCNT}, s{sKV}, {a*4096}")
    kseq[a] = vm(f"buffer_load_dwordx4 {ar((a*4+s_)*4,4)}, v{vKo}, {srd(SK)}, s{sCNT} offen offset:{s_*64}{NT}")
vseq = {}; vn = [0]
def v1():
    if vn[0] >= 32: return
    hf, i = vn[0]//16, vn[0]%16; vn[0] += 1
    if hf == 1 and i == 4:
        e(f"s_lshl_b32 s{sWk}, s{sCT}, 7")
        e(f"s_lshl_b32 s{sCNT}, s{sKH}, 6")
        e(f"s_add_u32 s{sWk}, s{sWk}, s{sCNT}")
        e(f"s_add_u32 s{sXc}, s{sWk}, {FOFF + 4096}")
        e("v_and_b32 v19, 15, v1")
        e("v_lshlrev_b32 v19, 2, v19")
        vm(f"buffer_load_dword v7, v19, {srd(SWS)}, s{sXc} offen sc1")
    if i == 0:
        e(f"s_lshr_b32 s{sVb}, s{sW}, 1")
        if hf == 0: e(f"s_xor_b32 s{sVb}, s{sVb}, 1")
        e(f"s_lshl_b32 s{sVb}, s{sVb}, 7")
        e(f"s_add_u32 s{sVb}, s{sVb}, s{sKV}")
    e(f"s_add_u32 m0, s{sVl}, {hf*16384 + i*1024}")
    e(f"s_add_u32 s{sCNT}, s{sVb}, {i*2048}")
    vseq[(hf,i//4)] = vm(f"buffer_load_dwordx4 v{vVo}, {srd(SV)}, s{sCNT} offen{NT} lds")
wn = [0]; WCAP = [56]; WSEQ = {}
def WR(i): return 224 + 4*i if i < 8 else 4*(i-8)
def w1():
    if wn[0] >= WCAP[0]: return
    i = wn[0]; wn[0] += 1
    if i % 4 == 0:
        e(f"s_add_u32 s{sWk}, s{sROT}, {i//4}")
        e(f"s_and_b32 s{sWk}, s{sWk}, 15")
        e(f"s_lshl_b32 s{sWk}, s{sWk}, 12")
        e(f"s_add_u32 s{sWk}, s{sWk}, s{sWo}")
    WSEQ[i] = vm(f"buffer_load_dwordx4 {ar(WR(i),4)}, v{vL16}, {srd(SWS)}, s{sWk} offen offset:{(i%4)*1024} sc1")

def addr_setup():
    e(f"s_lshl_b32 s{sT1}, s{sW}, 14")
    e(f"s_add_u32 s{sT1}, s{sT1}, {STG}")
    c("staging write: cg*16384 + (32w + i/16)*64 + (i%4)*16")
    e("v_bfe_u32 v30, v1, 2, 2")
    e(f"v_lshlrev_b32 v{vStW}, 14, v30")
    e("v_lshrrev_b32 v30, 4, v1")
    e(f"v_lshl_add_u32 v{vStW}, v30, 6, v{vStW}")
    e("v_and_b32 v30, 3, v1")
    e(f"v_lshl_add_u32 v{vStW}, v30, 4, v{vStW}")
    e(f"s_lshl_b32 s{sT2}, s{sW}, 11")
    e(f"s_add_u32 s{sT2}, s{sT2}, {STG}")
    e(f"v_add_u32 v{vStW}, s{sT2}, v{vStW}")
    e("v_lshrrev_b32 v30, 5, v1")
    e("v_lshlrev_b32 v30, 3, v30")
    e("v_bfe_u32 v31, v1, 2, 2")
    e("v_add_u32 v30, v30, v31")
    e(f"v_lshlrev_b32 v{vStR}, 6, v30")
    e("v_bfe_u32 v30, v1, 4, 1")
    e(f"v_lshl_add_u32 v{vStR}, v30, 5, v{vStR}")
    e("v_and_b32 v30, 1, v1")
    e(f"v_lshl_add_u32 v{vStR}, v30, 4, v{vStR}")
    e("v_bfe_u32 v30, v1, 1, 1")
    e(f"v_lshl_add_u32 v{vStR}, v30, 3, v{vStR}")
    e(f"v_add_u32 v{vStR}, s{sT1}, v{vStR}")
    e("v_and_b32 v30, 31, v1")
    e("v_lshlrev_b32 v30, 8, v30")
    e("v_lshrrev_b32 v31, 5, v1")
    for lo in range(8):
        e(f"v_add_u32 v{vXa[lo]}, {2*lo}, v31")
        e(f"v_xor_b32 v{vXa[lo]}, v{vXa[lo]}, v1")
        e(f"v_and_b32 v{vXa[lo]}, 15, v{vXa[lo]}")
        e(f"v_lshl_add_u32 v{vXa[lo]}, v{vXa[lo]}, 4, v30")
        e(f"v_add_u32 v{112+lo}, 0xc000, v{vXa[lo]}")
    e("v_bfe_u32 v30, v1, 4, 1")
    e(f"v_lshlrev_b32 v{vQw}, 12, v30")
    e("v_and_b32 v30, 15, v1")
    e(f"v_lshl_add_u32 v{vQw}, v30, 4, v{vQw}")
    e("v_lshrrev_b32 v30, 5, v1")
    e(f"v_lshl_add_u32 v{vQw}, v30, 8, v{vQw}")
    e(f"s_lshl_b32 s{sT1}, s{sW}, 10")
    e(f"s_add_u32 s{sT1}, s{sT1}, {QOFF}")
    e(f"v_add_u32 v{vQw}, s{sT1}, v{vQw}")
    c("V dma: (i/8)*256 + (((i%8)/2 ^ ((i/16)&3))*2 + (i&1))*16 ; wo: (i/8)*1024 + (i%8)*16")
    e("v_lshrrev_b32 v30, 4, v1")
    e("v_lshlrev_b32 v30, 1, v30")
    e("v_xor_b32 v30, v30, v1")
    e("v_and_b32 v30, 7, v30")
    e("v_lshrrev_b32 v120, 3, v1")
    e(f"v_lshlrev_b32 v{vVo}, 8, v120")
    e(f"v_lshl_add_u32 v{vVo}, v30, 4, v{vVo}")
    e("v_and_b32 v30, 7, v1")
    e(f"v_lshlrev_b32 v{vWo}, 10, v120")
    e(f"v_lshl_add_u32 v{vWo}, v30, 4, v{vWo}")
    c("tr read base0: w*32768 + (lane>>2)*128 + (((lane>>3)&3)*32) + (lane&3)*8 ; blk b -> ^ b*32")
    e("v_lshrrev_b32 v30, 2, v1")
    e(f"v_lshlrev_b32 v{vVr[0]}, 7, v30")
    e("v_bfe_u32 v30, v1, 3, 2")
    e(f"v_lshl_add_u32 v{vVr[0]}, v30, 5, v{vVr[0]}")
    e("v_and_b32 v30, 3, v1")
    e(f"v_lshl_add_u32 v{vVr[0]}, v30, 3, v{vVr[0]}")
    e(f"s_lshl_b32 s{sVl}, s{sW}, 15")
    e(f"v_add_u32 v{vVr[0]}, s{sVl}, v{vVr[0]}")
    c("vVr[0..1]: group w^1|w^3 parity (blk 2*((w&1)^1)+j2); vVr[2..3]: own parity")
    e(f"s_and_b32 s{sT1}, s{sW}, 1")
    e(f"s_lshl_b32 s{sT1}, s{sT1}, 6")
    e(f"v_xor_b32 v{vVr[2]}, s{sT1}, v{vVr[0]}")
    e(f"v_xor_b32 v{vVr[3]}, 32, v{vVr[2]}")
    e(f"v_xor_b32 v{vVr[0]}, 64, v{vVr[2]}")
    e(f"v_xor_b32 v{vVr[1]}, 64, v{vVr[3]}")
    c("partial slots: own V region + extra")
    e(f"v_add_u32 v{vSl[0]}, s{sVl}, v{vL16}")
    e(f"s_lshl_b32 s{sT1}, s{sW}, 13")
    e(f"s_add_u32 s{sT1}, s{sT1}, {EXTRA}")
    e(f"v_add_u32 v{vSl[1]}, s{sT1}, v{vL16}")
    e(f"v_xor_b32 v{vSr[0]}, 0x18000, v{vSl[0]}")
    e(f"v_xor_b32 v{vSr[1]}, 0x10000, v{vSl[0]}")
    e(f"v_xor_b32 v{vSr[2]}, 0x4000, v{vSl[1]}")
    e(f"v_xor_b32 v{vSr[3]}, 0x8000, v{vSl[0]}")
    c("woT base: WTOFF + (ct*128 + kh*64 + w*16)*4096")
    e(f"s_lshl_b32 s{sWo}, s{sCT}, 3")
    e(f"s_lshl_b32 s{sT1}, s{sKH}, 2")
    e(f"s_add_u32 s{sWo}, s{sWo}, s{sT1}")
    e(f"s_add_u32 s{sWo}, s{sWo}, s{sW}")
    e(f"s_lshl_b32 s{sWo}, s{sWo}, 16")
    e(f"s_add_u32 s{sWo}, s{sWo}, {WTOFF}")
    e("v_and_b32 v30, 15, v1")
    e(f"v_lshlrev_b32 v{vStr}, 4, v30")
    e(f"v_add_u32 v{vStr}, {MAXOFF}, v{vStr}")
    e(f"s_lshl_b32 s{sT1}, s{sW}, 2")
    e(f"v_add_u32 v{vSt}, s{sT1}, v{vStr}")

ACC = 32; XF = 128; WF = 164
def qproj():
    c("x voffset: (4w+i/16)*1024 + ((i%16)^(4w+i/16))*16")
    e(f"s_lshl_b32 s{sT1}, s{sW}, 2")
    e("v_lshrrev_b32 v30, 4, v1")
    e(f"v_add_u32 v30, s{sT1}, v30")
    e("v_xor_b32 v29, v30, v1")
    e("v_and_b32 v29, 15, v29")
    e(f"v_lshlrev_b32 v{vXo[0]}, 10, v30")
    e(f"v_lshl_add_u32 v{vXo[0]}, v29, 4, v{vXo[0]}")
    e(f"s_lshl_b32 s{sXm}, s{sW}, 10")
    e("v_lshrrev_b32 v30, 4, v1")
    e(f"v_lshlrev_b32 v{vWq}, 13, v30")
    e("v_and_b32 v30, 15, v1")
    e(f"v_lshl_add_u32 v{vWq}, v30, 4, v{vWq}")
    e(f"s_lshl_b32 s{sWq}, s{sH}, 8")
    e(f"s_lshl_b32 s{sT1}, s{sW}, 18")
    e(f"s_add_u32 s{sWq}, s{sWq}, s{sT1}")
    xs = {}; wqs = {}
    def xl(ch, m):
        if m == 0:
            e(f"s_add_u32 s{sXc}, s{sR1}, {ch}")
            e(f"s_and_b32 s{sXc}, s{sXc}, {3 if ROT else 0}" if ROT else f"s_mov_b32 s{sXc}, {ch}")
            e(f"s_lshl_b32 s{sWc}, s{sXc}, 20")
            e(f"s_add_u32 s{sWc}, s{sWc}, s{sWq}")
            e(f"s_lshl_b32 s{sXc}, s{sXc}, 8")
            e(f"s_add_u32 s{sXc}, s{sXc}, s{sXB}")
        e(f"s_add_u32 m0, s{sXm}, {XOFF + ch*24576 + m*4096}")
        e(f"s_add_u32 s{sXs}, s{sXc}, {m*16384}")
        xs[ch] = vm(f"buffer_load_dwordx4 v{vXo[0]}, {srd(SX)}, s{sXs} offen lds")
    def wl(ch, i):
        k = ch*8 + i
        e(f"s_add_u32 s{sXs}, s{sWc}, {i*4*8192}")
        wqs[ch] = vm(f"buffer_load_dwordx4 {ar(128+4*k,4)}, v{vWq}, {srd(SWQ)}, s{sXs} offen")
    seqs = [[(xl,ch,m) for m in range(6)] + [(wl,ch,i) for i in range(8)] for ch in range(4)]
    def issue(q, n):
        for _ in range(n):
            if q: it = q.pop(0); it[0](it[1], it[2])
    c("WG0 wave0 publishes the launch tag")
    e(f"s_or_b32 s{sT0}, s2, s{sW}")
    e(f"s_cmp_lg_u32 s{sT0}, 0")
    e("s_cbranch_scc1 L_notag")
    e(f"v_mov_b32 v{vTG}, s{sTAG}")
    e(f"v_mov_b32 v{vTG+1}, 0")
    e("s_mov_b64 exec, 1")
    e(f"buffer_store_dword v{vTG}, v{vTG+1}, {srd(SDBG)}, 0 offen sc1")
    e("s_mov_b64 exec, -1")
    lab("L_notag")
    issue(seqs[0], 99)
    e(f"v_mov_b32 v121, v{vXo[0]}")
    vXo[0] = 121
    addr_setup()
    issue(seqs[1], 99)
    done = [0]
    def piece():
        if done[0]: return
        done[0] = 1
        c("wo piece raw: rows (id>>3)*128 + 32w + 8i + lane/8, cols (id&7)*64")
        e(f"s_lshr_b32 s{sT0}, s2, 3")
        e(f"s_lshl_b32 s{sT0}, s{sT0}, 2")
        e(f"s_add_u32 s{sT0}, s{sT0}, s{sW}")
        e(f"s_lshl_b32 s{sT0}, s{sT0}, 15")
        e(f"s_and_b32 s{sT1}, s2, 7")
        e(f"s_lshl_b32 s{sT1}, s{sT1}, 7")
        e(f"s_add_u32 s{sT0}, s{sT0}, s{sT1}")
        for i in range(4):
            vm(f"buffer_load_dwordx4 {vr(vTmp+4*i,4)}, v{vWo}, {srd(SWO)}, s{sT0} offen")
            e(f"s_add_u32 s{sT0}, s{sT0}, 8192")
    if EARLY:
        issue(seqs[2], 99); issue(seqs[3], 99); piece()
        for _ in range(EARLY-1): k1()
    stamp("issued")
    def rd_frags(S_, buf):
        ch, s = S_//8, S_%8
        for u in range(2):
            e(f"ds_read_b64_tr_b16 {vr(WF+buf*4+u*2,2)}, v{vStR} offset:{(ch&1)*8192 + s*1024 + u*256}")
        for t3 in range(3):
            base = vXa[s] if ch < 2 else 112+s
            e(f"ds_read_b128 {vr(XF+buf*12+t3*4,4)}, v{base} offset:{(ch&1)*24576 + t3*8192}")
    def stage_w(ch, i):
        e(f"ds_write_b128 v{vStW}, {ar(128+(ch*8+i)*4,4)} offset:{(ch&1)*8192 + i*256}")
    wait_for(max(wqs[0], xs[0]))
    for i in range(8): stage_w(0, i)
    for ch in range(4):
        e("s_waitcnt lgkmcnt(0)")
        e("s_barrier")
        if ch == 0: stamp("x_ready")
        rd_frags(ch*8, 0); rd_frags(ch*8+1, 1)
        pend = 10
        q = [5, 5]
        for s in range(8):
            S_ = ch*8 + s; buf = s % 3
            if s < 6: rd_frags(S_+2, (s+2)%3); q.append(5)
            q.pop(0)
            e(f"s_waitcnt lgkmcnt({min(15, sum(q))})")
            for t3 in range(3):
                cin = "0" if S_ == 0 else vr(ACC+t3*16,16)
                e(f"v_mfma_f32_32x32x16_bf16 {vr(ACC+t3*16,16)}, {vr(WF+buf*4,4)}, {vr(XF+buf*12+t3*4,4)}, {cin}")
                if ch == 0: issue(seqs[2] if seqs[2] else seqs[3], 1)
                if (ch == 1 or (EARLY and ch == 0)) and t3 != 1 and kn[0] < K1: k1()
                if ch == 2 and t3 != 1 and kn[0] < K2: k1()
                if ch == 3 and t3 != 1 and kn[0] < K3: k1()
            if ch == 0 and s == 7:
                issue(seqs[2], 99); issue(seqs[3], 99)
                piece()
            if ch < 3 and s >= 4:
                if s == 4: wait_for(max(wqs[ch+1], xs[ch+1]))
                stage_w(ch+1, (s-4)*2); stage_w(ch+1, (s-4)*2+1)
                if q: q[-1] += 2
                else: q.append(2)
    e("s_barrier")
    stamp("qproj_done")
    nop(12)
    for t3 in range(3):
        for t in range(2):
            b0 = ACC + t3*16 + t*8
            for k in range(4):
                e(f"v_cvt_pk_bf16_f32 v{XF+(t3*2+t)*4+k}, v{b0+2*k}, v{b0+2*k+1}")
            e(f"ds_write_b128 v{vQw}, {vr(XF+(t3*2+t)*4,4)} offset:{t3*8192 + t*512}")
    for _ in range(KB):
        if kn[0] < 32: k1()
        else: v1()
    e("s_waitcnt lgkmcnt(0)")
    e("s_barrier")
    e(f"v_add_u32 v30, {QOFF}, v{vL16}")
    for j in range(6):
        for s in range(4):
            e(f"ds_read_b128 {ar(128+(j*4+s)*4,4)}, v30 offset:{(j*4+s)*1024}")

def xreduce(base, op):
    for sw in ("v_permlane32_swap_b32", "v_permlane16_swap_b32"):
        for j in range(6): e(f"v_mov_b32 v{vTmp+j}, v{base+j}")
        nop(2)
        for j in range(6): e(f"{sw} v{base+j}, v{vTmp+j}")
        nop(2)
        for j in range(6): e(f"{op} v{base+j}, v{base+j}, v{vTmp+j}")
def stat_read(off):
    for j in range(5):
        e(f"ds_read_b128 {vr(vTmp+j*4,4)}, v{vStr} offset:{off + j*256}")
    e(f"ds_read_b128 {vr(vXa[1],4)}, v{vStr} offset:{off + 5*256}")
    e("s_waitcnt lgkmcnt(0)")

def poll_loop(lbl):
    e(f"s_mov_b32 s{sCNT}, 0")
    lab(lbl)
    e(f"buffer_load_dword v30, v31, {srd(SWS)}, s{sT0} offen sc1")
    e("s_waitcnt vmcnt(0)")
    e(f"v_cmp_ne_u32 vcc, s{sTAG}, v30")
    e(f"s_add_u32 s{sCNT}, s{sCNT}, 1")
    e("s_nop 3")
    e(f"s_cbranch_vccz {lbl}_done")
    e("s_sleep 2")
    e(f"s_cmp_lt_u32 s{sCNT}, 200000")
    e(f"s_cbranch_scc1 {lbl}")
    lab(lbl + "_done")
def flag_store():
    e(f"v_mov_b32 v30, s{sTAG}")
    e("v_mov_b32 v31, 0")
    e("s_mov_b64 exec, 1")
    e(f"buffer_store_dword v30, v31, {srd(SWS)}, s{sT0} offen sc1")
    e("s_mov_b64 exec, -1")
def attention():
    for a in range(8):
        wait_for(kseq[a], " lgkmcnt(0)" if a == 0 else "")
        if a == 0:
            e("v_mov_b32 v19, 0")
            vm(f"buffer_load_dword v7, v19, {srd(SDBG)}, 0 offen sc1")
            c("wo piece: raw -> LDS (own V half-1 region)")
            e("v_lshrrev_b32 v30, 4, v1")
            e("v_lshlrev_b32 v30, 1, v30")
            e("v_xor_b32 v30, v30, v1")
            e(f"v_lshl_add_u32 v30, v30, 4, s{sVl}")
            for i in range(4): e(f"ds_write_b128 v30, {vr(vTmp+4*i,4)} offset:{16384 + i*1024}")
        if a == 1:
            e("s_waitcnt lgkmcnt(0)")
            for g4 in range(4):
                for u in range(2):
                    e(f"ds_read_b64_tr_b16 {vr(vTmp+g4*4+2*u,2)}, v{vVr[g4]} offset:{16384 + u*2048}")
        if a == 2:
            c("store frags: WTOFF + ((id&7)*128 + (id>>3)*4 + w)*4096 + jj*1024")
            e(f"s_and_b32 s{sT0}, s2, 7")
            e(f"s_lshl_b32 s{sT0}, s{sT0}, 7")
            e(f"s_lshr_b32 s{sT1}, s2, 3")
            e(f"s_lshl_b32 s{sT1}, s{sT1}, 2")
            e(f"s_add_u32 s{sT0}, s{sT0}, s{sT1}")
            e(f"s_add_u32 s{sT0}, s{sT0}, s{sW}")
            e(f"s_lshl_b32 s{sT0}, s{sT0}, 12")
            e(f"s_add_u32 s{sT0}, s{sT0}, {WTOFF}")
            e(f"s_and_b32 s{sT1}, s{sW}, 1")
            e(f"s_lshl_b32 s{sT1}, s{sT1}, 11")
            e(f"s_add_u32 s{sT2}, s{sT0}, s{sT1}")
            e(f"s_xor_b32 s{sT1}, s{sT1}, 2048")
            e(f"s_add_u32 s{sT0}, s{sT0}, s{sT1}")
            e("s_waitcnt lgkmcnt(0)")
            for g4 in range(4):
                PST[0] = vm(f"buffer_store_dwordx4 {vr(vTmp+g4*4,4)}, v{vL16}, {srd(SWS)}, s{sT0 if g4 < 2 else sT2} offen offset:{(g4&1)*1024} sc1")
        for s in range(4):
            for j in range(6):
                cin = "0" if s == 0 else vr(S(a,j),4)
                e(f"v_mfma_f32_16x16x32_bf16 {vr(S(a,j),4)}, {ar((a*4+s)*4,4)}, {ar(128+(j*4+s)*4,4)}, {cin}")
                if j == 2:
                    if kn[0] < 32: k1()
                    elif s < VS: v1()
                if a > 0 and s in (1,2):
                    p = S(a-1,j) + (s-1)*2
                    if a == 1 and s == 1: e(f"v_max_f32 v{vM+j}, v{p}, v{p+1}")
                    else: e(f"v_max3_f32 v{vM+j}, v{vM+j}, v{p}, v{p+1}")
    nop(8)
    stamp("S_done")
    for j in range(6):
        e(f"v_max3_f32 v{vM+j}, v{vM+j}, v{S(7,j)}, v{S(7,j)+1}")
        e(f"v_max3_f32 v{vM+j}, v{vM+j}, v{S(7,j)+2}, v{S(7,j)+3}")
    xreduce(vM, "v_max_f32")
    for j in range(6): e(f"ds_write_b32 v{vSt}, v{vM+j} offset:{j*256}")
    e("s_waitcnt lgkmcnt(0)")
    if kseq[7] < PST[0]: wait_for(PST[0])
    e("s_barrier")
    c("launch tag (fallback: poll until published)")
    e(f"v_readfirstlane_b32 s{sTAG}, v7")
    e(f"s_mov_b32 s{sCNT}, 0")
    lab("L_tagpoll")
    e(f"s_cmp_lg_u32 s{sTAG}, 0")
    e("s_cbranch_scc1 L_tagok")
    e(f"buffer_load_dword v7, v19, {srd(SDBG)}, 0 offen sc1")
    e("s_waitcnt vmcnt(0)")
    e(f"v_readfirstlane_b32 s{sTAG}, v7")
    e(f"s_add_u32 s{sCNT}, s{sCNT}, 1")
    e(f"s_cmp_lt_u32 s{sCNT}, 200000")
    e("s_cbranch_scc1 L_tagpoll")
    lab("L_tagok")
    e(f"s_cmp_lg_u32 s{sW}, 0")
    e("s_cbranch_scc1 L_sigw")
    e(f"s_and_b32 s{sT0}, s2, 7")
    e(f"s_lshl_b32 s{sT0}, s{sT0}, 7")
    e(f"s_lshr_b32 s{sT1}, s2, 3")
    e(f"s_lshl_b32 s{sT1}, s{sT1}, 2")
    e(f"s_add_u32 s{sT0}, s{sT0}, s{sT1}")
    e(f"s_add_u32 s{sT0}, s{sT0}, {FOFF + 4096}")
    flag_store()
    lab("L_sigw")
    stat_read(0)
    for j in range(6):
        b0 = vTmp + j*4 if j < 5 else vXa[1]
        e(f"v_max3_f32 v{b0}, v{b0}, v{b0+1}, v{b0+2}")
        e(f"v_max_f32 v{b0}, v{b0}, v{b0+3}")
        e(f"v_mul_f32 v{224+2*j}, s{sC}, v{b0}")
        e(f"v_mul_f32 v{225+2*j}, s{sC}, v{b0}")
    e(f"s_mov_b32 s66, s{sC}"); e(f"s_mov_b32 s67, s{sC}")
    e("v_mov_b32 v30, 0x3f803f80")
    for i in range(4): e(f"v_accvgpr_write_b32 a{96+i}, v30")
    pend = None
    def summ(p):
        j_, s_ = p
        cin = "0" if s_ == 0 else ar(112+4*j_,4)
        e(f"v_mfma_f32_16x16x32_bf16 {ar(112+4*j_,4)}, a[96:99], {vr(S(2*s_,j_),4)}, {cin}")
    for j in range(6):
        for s in range(4):
            regs8 = [S(2*s,j)+i for i in range(4)] + [S(2*s+1,j)+i for i in range(4)]
            for r in regs8[::2]: e(f"v_pk_fma_f32 {vr(r,2)}, {vr(r,2)}, s[66:67], {vr(224+2*j,2)} neg_lo:[0,0,1] neg_hi:[0,0,1]")
            if pend: summ(pend)
            if vn[0] < 16 or (j*4+s) % VD == 0: v1()
            for r in regs8: e(f"v_exp_f32 v{r}, v{r}")
            e("s_nop 0")
            for k in range(4):
                e(f"v_cvt_pk_bf16_f32 v{S(2*s,j)+k}, v{regs8[2*k]}, v{regs8[2*k+1]}")
            pend = (j, s)
    nop(2)
    summ(pend)
    nop(8)
    for j in range(6): e(f"v_accvgpr_read_b32 v{vTmp+j}, a{112+4*j}")
    for j in range(6): e(f"ds_write_b32 v{vSt}, v{vTmp+j} offset:{SUMOFF - MAXOFF + j*256}")
    e("s_waitcnt lgkmcnt(0)")
    e("s_barrier")
    stat_read(SUMOFF - MAXOFF)
    for j in range(6):
        b0 = vTmp + j*4 if j < 5 else vXa[1]
        e(f"v_add_f32 v{b0}, v{b0}, v{b0+1}")
        e(f"v_add_f32 v{b0+2}, v{b0+2}, v{b0+3}")
        e(f"v_add_f32 v{b0}, v{b0}, v{b0+2}")
        e(f"v_rcp_f32 v{224+2*j}, v{b0}")
        e(f"v_rcp_f32 v{225+2*j}, v{b0}")
    stamp("softmax_done")
    def vfr(hf, s, buf):
        for g4 in range(4):
            for u in range(2):
                e(f"ds_read_b64_tr_b16 {ar(VA+buf*16+g4*4+2*u,2)}, v{vVr[g4]} offset:{hf*16384 + s*4096 + u*2048}")
    def phase(hf, cinit):
        wait_for(vseq[(hf,0)])
        vfr(hf, 0, 0)
        for s in range(4):
            if s < 3:
                wait_for(vseq[(hf,s+1)])
                if s == 2 and hf == 1: stamp("V3_ready")
                vfr(hf, s+1, (s+1)&1)
                if hf == 1:
                    if s == 0:
                        e(f"v_cmp_ne_u32 vcc, s{sTAG}, v7")
                        e("s_nop 4")
                        e("s_cbranch_vccz L_pollw_done")
                        e(f"s_mov_b32 s{sT0}, s{sXc}")
                        e("v_mov_b32 v31, v19")
                        poll_loop("L_pollw")
                    for _ in range(WP): w1()
                e("s_waitcnt lgkmcnt(8)")
            else: e("s_waitcnt lgkmcnt(0)")
            for g4 in range(4):
                for j in range(6):
                    d = ACCT(g4*6 + j)
                    cin = "0" if (s == 0 and not (cinit and g4 >= 2)) else vr(d,4)
                    e(f"v_mfma_f32_16x16x32_bf16 {vr(d,4)}, {ar(VA+(s&1)*16+g4*4,4)}, {vr(S(2*s,j),4)}, {cin}")
                    if j == 3: v1()
    while vn[0] < 16: v1()
    c("PV phase I: groups w^3 (tiles 0..11), w^2 (tiles 12..23)")
    phase(0, False)
    while vn[0] < 32: v1()
    stamp("f2_pv1")
    nop(4)
    for tt in range(24):
        if tt < 16: e(f"ds_write_b128 v{vSl[0]}, {vr(ACCT(tt),4)} offset:{tt*1024}")
        else: e(f"ds_write_b128 v{vSl[1]}, {vr(ACCT(tt),4)} offset:{(tt-16)*1024}")
    e("s_waitcnt lgkmcnt(0)")
    e("s_barrier")
    stamp("f2_bar1")
    c("own group init = partial(w^3 tiles 0..11) + partial(w^2 tiles 12..23)")
    for t in range(12):
        e(f"ds_read_b128 {vr(ACCT(12+t),4)}, v{vSr[0]} offset:{t*1024}")
        if t < 4: e(f"ds_read_b128 {vr(ACCT(t),4)}, v{vSr[1]} offset:{(12+t)*1024}")
        else: e(f"ds_read_b128 {vr(ACCT(t),4)}, v{vSr[2]} offset:{(t-4)*1024}")
    e("s_waitcnt lgkmcnt(0)")
    for t in range(12):
        for i in (0,2): e(f"v_pk_add_f32 {vr(ACCT(12+t)+i,2)}, {vr(ACCT(12+t)+i,2)}, {vr(ACCT(t)+i,2)}")
    nop(2)
    stamp("f2_init")
    c("PV phase II: groups w^1 (tiles 0..11, C=0), w (tiles 12..23)")
    for s in range(4):
        wait_for(vseq[(1,s)])
        if s == 3: stamp("V3_ready")
        vfr(1, s, s&1)
        if s == 1:
            e(f"v_cmp_ne_u32 vcc, s{sTAG}, v7")
            e("s_nop 4")
            e("s_cbranch_vccz L_pollw_done")
            e(f"s_mov_b32 s{sT0}, s{sXc}")
            e("v_mov_b32 v31, v19")
            poll_loop("L_pollw")
        e("s_waitcnt lgkmcnt(4)")
        for g4 in range(4):
            if g4 == 2: e("s_waitcnt lgkmcnt(0)" if s < 3 else "s_waitcnt lgkmcnt(0)")
            for j in range(6):
                d = ACCT(g4*6 + j)
                cin = "0" if (s == 0 and g4 < 2) else vr(d,4)
                e(f"v_mfma_f32_16x16x32_bf16 {vr(d,4)}, {ar(VA+(s&1)*16+g4*4,4)}, {vr(S(2*s,j),4)}, {cin}")
                if s == 3 and g4 >= 2:
                    t = (g4-2)*6 + j - 3
                    if t >= 0: e(f"ds_write_b128 v{vSl[0]}, {vr(ACCT(t),4)} offset:{16384 + t*1024}")
                elif s >= 1 and j in (1,4) and wn[0] < WP*s: w1()
    for t in range(9,12):
        e(f"ds_write_b128 v{vSl[0]}, {vr(ACCT(t),4)} offset:{16384 + t*1024}")
    for _ in range(WE): w1()
    e("s_waitcnt lgkmcnt(0)")
    e("s_barrier")
    for t in range(12):
        e(f"ds_read_b128 {vr(ACCT(t),4)}, v{vSr[3]} offset:{16384 + t*1024}")
    e("s_waitcnt lgkmcnt(0)")
    for t in range(12):
        for i in (0,2): e(f"v_pk_add_f32 {vr(ACCT(12+t)+i,2)}, {vr(ACCT(12+t)+i,2)}, {vr(ACCT(t)+i,2)}")
VA = 192
def ACCT(tt): return S(1 + 2*(tt//6), tt%6)
def outproj_g():
    f1p = [f"s_lshr_b32 s{sT0}, s{sH}, 4", f"s_lshl_b32 s{sT1}, s{sB}, 1", f"s_add_u32 s{sT0}, s{sT0}, s{sT1}", f"s_lshl_b32 s{sT0}, s{sT0}, 2"]
    f1c = [f"s_lshl_b32 s{sT1}, s{sB2}, 1", f"s_add_u32 s{sT0}, s{sKH}, s{sT1}", f"s_lshl_b32 s{sT0}, s{sT0}, 2"]
    stamp("f2_sum")
    c("normalize, pack, store O frags")
    e(f"s_lshl_b32 s{sT0}, s{sB}, 5")
    e(f"s_add_u32 s{sT0}, s{sT0}, s{sH}")
    e(f"s_lshl_b32 s{sT0}, s{sT0}, 2")
    e(f"s_add_u32 s{sT0}, s{sT0}, s{sW}")
    e(f"s_mul_i32 s{sT0}, s{sT0}, 6144")
    for j in range(6):
        for j2 in range(2):
            b0 = ACCT(12+j2*6+j)
            for i in (0,2): e(f"v_pk_mul_f32 {vr(b0+i,2)}, {vr(b0+i,2)}, {vr(224+2*j,2)}")
        d = ACCT(j)
        for j2 in range(2):
            b0 = ACCT(12+j2*6+j)
            e(f"v_cvt_pk_bf16_f32 v{d+2*j2}, v{b0}, v{b0+1}")
            e(f"v_cvt_pk_bf16_f32 v{d+2*j2+1}, v{b0+2}, v{b0+3}")
        if j == 4: e(f"s_add_u32 s{sT0}, s{sT0}, 4096")
        ost = vm(f"buffer_store_dwordx4 {vr(d,4)}, v{vL16}, {srd(SWS)}, s{sT0} offen offset:{(j%4)*1024} sc1")
    stamp("f2_stissued")
    WCAP[0] = 64
    for _ in range(WA): w1()
    wait_for(ost)
    e("s_barrier")
    stamp("O_stored")
    e(f"s_cmp_lg_u32 s{sW}, 0")
    e("s_cbranch_scc1 L_sig1")
    e(f"s_lshr_b32 s{sT0}, s{sH}, 4")
    e(f"s_lshl_b32 s{sT1}, s{sB}, 1")
    e(f"s_add_u32 s{sT0}, s{sT0}, s{sT1}")
    e(f"s_lshl_b32 s{sT0}, s{sT0}, 7")
    e(f"s_and_b32 s{sT1}, s{sH}, 15")
    e(f"s_lshl_b32 s{sT1}, s{sT1}, 2")
    e(f"s_add_u32 s{sT0}, s{sT0}, s{sT1}")
    e(f"s_add_u32 s{sT0}, s{sT0}, {FOFF}")
    flag_store()
    lab("L_sig1")
    WCAP[0] = 64
    while wn[0] < 64: w1()
    def FRG(ks, jj): return WR(ks*4 + jj)
    e(f"s_cmp_lg_u32 s{sW}, 0")
    e("s_cbranch_scc1 L_poll1_done")
    e(f"s_lshl_b32 s{sT0}, s{sB2}, 1")
    e(f"s_add_u32 s{sT0}, s{sT0}, s{sKH}")
    e(f"s_lshl_b32 s{sT0}, s{sT0}, 7")
    e(f"s_add_u32 s{sT0}, s{sT0}, {FOFF}")
    e("v_and_b32 v31, 15, v1")
    e("v_lshlrev_b32 v31, 2, v31")
    poll_loop("L_poll1")
    e("s_barrier")
    stamp("poll_done")
    e(f"s_lshl_b32 s{sOB}, s{sB2}, 5")
    e(f"s_lshl_b32 s{sT0}, s{sKH}, 4")
    e(f"s_add_u32 s{sOB}, s{sOB}, s{sT0}")
    e(f"s_lshl_b32 s{sT0}, s{sW}, 2")
    e(f"s_add_u32 s{sOB}, s{sOB}, s{sT0}")
    e(f"s_mul_i32 s{sOB}, s{sOB}, 24576")
    e(f"s_mul_i32 s{sT0}, s{sQH}, 3072")
    e(f"s_add_u32 s{sOB}, s{sOB}, s{sT0}")
    OA = 200; oseq = {}; RING = 14
    def oload(ks):
        e(f"s_add_u32 s{sT0}, s{sROT}, {ks}")
        e(f"s_and_b32 s{sT0}, s{sT0}, 15")
        e(f"s_mul_i32 s{sT0}, s{sT0}, 6144")
        e(f"s_add_u32 s{sT0}, s{sT0}, s{sOB}")
        for jq in range(3):
            oseq[ks] = vm(f"buffer_load_dwordx4 {vr(32 + ((ks%RING)*3+jq)*4,4)}, v{vL16}, {srd(SWS)}, s{sT0} offen offset:{jq*1024} sc1")
    for ks in range(OPRE): oload(ks)
    for ks in range(16):
        wait_for(oseq[ks])
        for jq in range(3):
            for jj in range(4):
                d = OA + (jj*3+jq)*4
                cin = "0" if ks == 0 else vr(d,4)
                e(f"v_mfma_f32_16x16x32_bf16 {vr(d,4)}, {ar(FRG(ks,jj),4)}, {vr(32+((ks%RING)*3+jq)*4,4)}, {cin}")
            if jq == 0 and ks + OPRE < 16: oload(ks+OPRE)
    nop(8)
    stamp("oproj_done")
    c("cross-wave reduce: wave w sums n16 tile jj=w (3 q tiles)")
    e(f"s_mul_i32 s{sT1}, s{sW}, 12288")
    e(f"v_add_u32 v30, s{sT1}, v{vL16}")
    e("s_barrier")
    for t in range(12):
        e(f"ds_write_b128 v30, {vr(OA+t*4,4)} offset:{t*1024}")
    e("s_waitcnt lgkmcnt(0)")
    e("s_barrier")
    e(f"s_mul_i32 s{sT1}, s{sW}, 3072")
    e(f"v_add_u32 v30, s{sT1}, v{vL16}")
    for ww in range(4):
        for jq in range(3):
            e(f"ds_read_b128 {vr(32+(ww*3+jq)*4,4)}, v30 offset:{ww*12288 + jq*1024}")
    e("s_waitcnt lgkmcnt(0)")
    for r in range(12):
        e(f"v_add_f32 v{32+r}, v{32+r}, v{44+r}")
        e(f"v_add_f32 v{56+r}, v{56+r}, v{68+r}")
        e(f"v_add_f32 v{32+r}, v{32+r}, v{56+r}")
    c("waves with (w>>1) != kh send their tile to the partner; others receive")
    e(f"s_lshr_b32 s{sT0}, s{sW}, 1")
    e(f"s_and_b32 s{sT2}, s{sW}, 1")
    e(f"s_lshl_b32 s{sT2}, s{sT2}, 12")
    e(f"s_cmp_eq_u32 s{sT0}, s{sKH}")
    e("s_cbranch_scc1 L_recv")
    e(f"s_lshl_b32 s{sT1}, s2, 13")
    e(f"s_add_u32 s{sT1}, s{sT1}, s{sT2}")
    e(f"s_add_u32 s{sT1}, s{sT1}, {POFF}")
    for g_ in range(4):
        for i in range(3): e(f"v_mov_b32 v{80+g_*4+i}, v{32+g_*3+i}")
        e(f"v_mov_b32 v{83+g_*4}, s{sTAG}")
        e(f"buffer_store_dwordx4 {vr(80+g_*4,4)}, v{vL16}, {srd(SWS)}, s{sT1} offen offset:{g_*1024} sc1")
    e("s_branch L_fin")
    lab("L_recv")
    e(f"s_xor_b32 s{sT3}, s2, 1")
    e(f"s_lshl_b32 s{sT3}, s{sT3}, 13")
    e(f"s_add_u32 s{sT3}, s{sT3}, s{sT2}")
    e(f"s_add_u32 s{sT3}, s{sT3}, {POFF}")
    c("out offset = ((b2*96 + 48qh + 16jq + q)*512 + 64ct + 16w + 4g')*2")
    e(f"s_mul_i32 s{sT0}, s{sB2}, 96")
    e(f"s_mul_i32 s{sT1}, s{sQH}, 48")
    e(f"s_add_u32 s{sT0}, s{sT0}, s{sT1}")
    e(f"s_lshl_b32 s{sT0}, s{sT0}, 10")
    e(f"s_lshl_b32 s{sT1}, s{sCT}, 7")
    e(f"s_add_u32 s{sT0}, s{sT0}, s{sT1}")
    e(f"s_lshl_b32 s{sT1}, s{sW}, 5")
    e(f"s_add_u32 s{sT0}, s{sT0}, s{sT1}")
    e("v_and_b32 v31, 15, v1")
    e("v_lshlrev_b32 v31, 10, v31")
    e("v_lshrrev_b32 v2, 4, v1")
    e("v_lshl_add_u32 v31, v2, 3, v31")
    e(f"s_mov_b32 s{sCNT}, 0")
    lab("L_poll2")
    for g_ in range(4):
        e(f"buffer_load_dwordx4 {vr(80+g_*4,4)}, v{vL16}, {srd(SWS)}, s{sT3} offen offset:{g_*1024} sc1")
    e("s_waitcnt vmcnt(0)")
    e("v_xor_b32 v2, v83, v87")
    e("v_xor_b32 v3, v91, v95")
    e(f"v_xor_b32 v4, s{sTAG}, v83")
    e("v_xor_b32 v5, v87, v91")
    e("v_or_b32 v2, v2, v3")
    e("v_or3_b32 v2, v2, v4, v5")
    e("v_cmp_ne_u32 vcc, 0, v2")
    e(f"s_add_u32 s{sCNT}, s{sCNT}, 1")
    e("s_nop 3")
    e("s_cbranch_vccz L_poll2_done")
    e("s_sleep 1")
    e(f"s_cmp_lt_u32 s{sCNT}, 200000")
    e("s_cbranch_scc1 L_poll2")
    lab("L_poll2_done")
    for r in range(12): e(f"v_add_f32 v{32+r}, v{32+r}, v{80+(r//3)*4+r%3}")
    for jq in range(3):
        e(f"v_cvt_pk_bf16_f32 v{64+jq*2}, v{32+jq*4}, v{33+jq*4}")
        e(f"v_cvt_pk_bf16_f32 v{65+jq*2}, v{34+jq*4}, v{35+jq*4}")
        e(f"buffer_store_dwordx2 {vr(64+jq*2,2)}, v31, {srd(SOUT)}, s{sT0} offen")
        e(f"s_add_u32 s{sT0}, s{sT0}, 16384")
    lab("L_fin")

prologue(); qproj(); attention(); outproj_g()
stamp("end"); stamp_dump()
lab("L_end"); e("s_endpgm")
hdr = open("cdna_kernels/%s.s.ref" % NAME).read().split("; @launch")[0]
out = hdr + "; @launch grid=(256,1,1) block=(256,1,1) lds=163840\n"
out += f""".amdgcn_target "amdgcn-amd-amdhsa--gfx950"
.text
.globl {NAME}_kernel
.p2align 8
.type {NAME}_kernel,@function
{NAME}_kernel:
""" + "\n".join(L) + f"""
.section .rodata,"a"
.p2align 6
.amdhsa_kernel {NAME}_kernel
  .amdhsa_next_free_vgpr 512
  .amdhsa_next_free_sgpr 102
  .amdhsa_accum_offset 256
  .amdhsa_group_segment_fixed_size 0
  .amdhsa_kernarg_size 64
  .amdhsa_user_sgpr_count 2
  .amdhsa_user_sgpr_kernarg_segment_ptr 1
  .amdhsa_system_sgpr_workgroup_id_x 1
.end_amdhsa_kernel
"""
dst = sys.argv[1] if len(sys.argv) > 1 else "cdna_kernels/%s.s" % NAME
open(dst, "w").write(out)
print("wrote", dst, len(L), "lines")
```

```python
import sys, os
L = []
def e(s): L.append("    " + s)
def lab(s): L.append(s + ":")
def c(s): L.append("    ; " + s)
def nop(n):
    while n > 0:
        k = min(n, 16); e(f"s_nop {k-1}"); n -= k
NAME = "standalone__gqa_block_cached__near_ridge"
STAMP = os.environ.get("STAMP")
VPRE = int(os.environ.get("VPRE", "4"))
NT = os.environ.get("NT", " nt")
K1 = int(os.environ.get("K1", "12"))
K2 = int(os.environ.get("K2", "12"))
K3 = int(os.environ.get("K3", "16"))
VS = int(os.environ.get("VS", "1"))
WP = int(os.environ.get("WP", "10"))
ROT = int(os.environ.get("ROT", "0"))
WE = int(os.environ.get("WE", "0"))
OPRE = int(os.environ.get("OPRE", "5"))
WA = int(os.environ.get("WA", "12"))
KB = int(os.environ.get("KB", "4"))
EARLY = int(os.environ.get("EARLY", "0"))
VD = int(os.environ.get("VD", "2"))
WS2 = int(os.environ.get("WS2", "0"))
KPRE = int(os.environ.get("KPRE", "4"))
XOFF = 0; STG = 98304; QOFF = 131072; EXTRA = 131072
MAXOFF = 155648; SUMOFF = 160*1024 - 2048
SX, SK, SV, SWQ, SWO, SOUT, SWS, SDBG = 8, 12, 16, 20, 24, 28, 32, 36
sW, sB, sH, sT0, sT1, sT2, sT3 = 40, 41, 42, 43, 44, 45, 46
sKV, sXB, sC, sB2, sQH, sCT, sOB, sWN, sCNT = 47, 48, 49, 50, 51, 52, 53, 54, 55
sVb, sVl, sWo = 56, 57, 58
sKH = 5
sROT = 4; sR1 = 7; sXc = 63; sWc = 64; sWk = 65
sXm, sXs, sWq = 59, 60, 61
POFF = 0x1000000
FOFF = 0xA00000
WTOFF = 0xC00000
sTAG = 6
vTG = 122
def srd(r): return f"s[{r}:{r+3}]"
vKo = 2; vXo = [31]; vWq = 7; vL16 = 8; vStW = 9; vStR = 10
vXa = list(range(11,19)); vQw = 19; vVo = 20; vVr = [21,22,23,24]; vSl = [25,26]; vSr = [3,4,5,6]
vSt = 27; vStr = 28; vWo = 29
def S(a,j): return 32 + (a*6+j)*4
vM = 224; vLs = 230; vTmp = 236
def vr(b,n): return f"v[{b}:{b+n-1}]"
def ar(b,n): return f"a[{b}:{b+n-1}]"
stamps = []
def stamp(name):
    if STAMP is None: return
    if os.environ.get("FINE2") and name in ("issued","x_ready","qproj_done","S_done"): return
    if name.startswith("f2") and not os.environ.get("FINE2"): return
    if os.environ.get("FINE") and name in ("softmax_done","V3_ready","O_stored","poll_done","oproj_done"): return
    k = len(stamps); stamps.append(name)
    e(f"s_memrealtime s[{74+2*k}:{75+2*k}]")
    e("s_waitcnt lgkmcnt(0)")
def stamp_dump():
    if STAMP is None: return
    e(f"s_cmp_lg_u32 s{sW}, 0")
    e("s_cbranch_scc1 L_end")
    e("s_mov_b64 exec, 1")
    e(f"s_mov_b32 s{SWS+2}, 0x2000000")
    e(f"s_lshl_b32 s{sT1}, s2, 6")
    e(f"s_add_u32 s{sT1}, s{sT1}, 0x1800000")
    for k in range(len(stamps)):
        e(f"v_mov_b32 v30, s{74+2*k}")
        e(f"v_mov_b32 v31, {k*4}")
        e(f"buffer_store_dword v30, v31, {srd(SWS)}, s{sT1} offen")
        e("s_nop 1")
    L.append("; STAMPS " + ",".join(stamps))

class VM:
    n = 0
def vm(s):
    e(s); VM.n += 1; return VM.n
def wait_for(seq, extra=""):
    k = min(63, VM.n - seq)
    e(f"s_waitcnt vmcnt({k}){extra}")

def prologue():
    e("s_cmp_ge_u32 s2, 256")
    e("s_cbranch_scc1 L_end")
    stamp("start")
    e("s_load_dwordx16 s[56:71], s[0:1], 0")
    e("s_memrealtime s[6:7]")
    e("v_and_b32 v1, 63, v0")
    e("v_lshrrev_b32 v30, 6, v0")
    e("s_nop 0")
    e(f"v_readfirstlane_b32 s{sW}, v30")
    e(f"s_and_b32 s{sT0}, s2, 7")
    e(f"s_lshr_b32 s{sT1}, s2, 3")
    e(f"s_and_b32 s{sT2}, s{sT1}, 3")
    e(f"s_lshl_b32 s{sH}, s{sT0}, 2")
    e(f"s_add_u32 s{sH}, s{sH}, s{sT2}")
    e(f"s_lshr_b32 s{sB}, s{sT1}, 2")
    e(f"s_and_b32 s{sKH}, s{sT0}, 3")
    e(f"s_andn2_b32 s{sB2}, s{sT0}, 3")
    e(f"s_add_u32 s{sB2}, s{sB2}, s{sT2}")
    e(f"s_mov_b32 s{sCT}, s{sB}")
    e(f"s_lshl_b32 s{sROT}, s{sT2}, 1")
    e(f"s_add_u32 s{sROT}, s{sROT}, s{sCT}")
    e(f"s_and_b32 s{sROT}, s{sROT}, 7")
    e(f"s_lshl_b32 s{sKV}, s{sB}, 5")
    e(f"s_add_u32 s{sKV}, s{sKV}, s{sH}")
    e(f"s_lshl_b32 s{sKV}, s{sKV}, 17")
    e(f"s_lshl_b32 s{sT3}, s{sW}, 15")
    e(f"s_add_u32 s{sKV}, s{sKV}, s{sT3}")
    e(f"s_mul_i32 s{sXB}, s{sB}, 98304")
    e(f"s_add_u32 s{sWN}, s{sW}, 1")
    e(f"s_and_b32 s{sWN}, s{sWN}, 3")
    e(f"s_mov_b32 s{sC}, 0x3e0293ee")
    e("v_and_b32 v30, 15, v1")
    e("v_lshrrev_b32 v31, 4, v1")
    e(f"v_lshlrev_b32 v{vKo}, 8, v30")
    e(f"v_lshl_add_u32 v{vKo}, v31, 4, v{vKo}")
    e(f"v_lshlrev_b32 v{vL16}, 4, v1")
    e("s_waitcnt lgkmcnt(0)")
    e(f"s_or_b32 s{sTAG}, s{sTAG}, 1")
    e(f"s_add_u32 s{sR1}, s{sB}, s{sH}")
    sizes = [786432, 33554432, 33554432, 4194304, 4194304, 786432, 256, POFF + 0x800000]
    regs = [SX, SK, SV, SWQ, SWO, SOUT, SDBG, SWS]
    for i,(r,sz) in enumerate(zip(regs,sizes)):
        e(f"s_mov_b32 s{r}, s{56+2*i}")
        e(f"s_and_b32 s{r+1}, s{57+2*i}, 0xffff")
        e(f"s_mov_b32 s{r+2}, {sz}")
        e(f"s_mov_b32 s{r+3}, 0x00020000")

kseq = {}; kn = [0]; TAGSEQ = [0]; PST = [0]
def k1():
    if kn[0] >= 32: return
    a, s_ = kn[0]//4, kn[0]%4; kn[0] += 1
    if s_ == 0: e(f"s_add_u32 s{sCNT}, s{sKV}, {a*4096}")
    kseq[a] = vm(f"buffer_load_dwordx4 {ar((a*4+s_)*4,4)}, v{vKo}, {srd(SK)}, s{sCNT} offen offset:{s_*64}{NT}")
vseq = {}; vn = [0]
def v1():
    if vn[0] >= 32: return
    hf, i = vn[0]//16, vn[0]%16; vn[0] += 1
    if hf == 1 and i == 4:
        e(f"s_lshl_b32 s{sWk}, s{sCT}, 7")
        e(f"s_lshl_b32 s{sCNT}, s{sKH}, 5")
        e(f"s_add_u32 s{sWk}, s{sWk}, s{sCNT}")
        e(f"s_add_u32 s{sXc}, s{sWk}, {FOFF + 4096}")
        e("v_and_b32 v19, 7, v1")
        e("v_lshlrev_b32 v19, 2, v19")
        vm(f"buffer_load_dword v7, v19, {srd(SWS)}, s{sXc} offen sc1")
    if i == 0:
        e(f"s_lshr_b32 s{sVb}, s{sW}, 1")
        if hf == 0: e(f"s_xor_b32 s{sVb}, s{sVb}, 1")
        e(f"s_lshl_b32 s{sVb}, s{sVb}, 7")
        e(f"s_add_u32 s{sVb}, s{sVb}, s{sKV}")
    e(f"s_add_u32 m0, s{sVl}, {hf*16384 + i*1024}")
    e(f"s_add_u32 s{sCNT}, s{sVb}, {i*2048}")
    vseq[(hf,i//4)] = vm(f"buffer_load_dwordx4 v{vVo}, {srd(SV)}, s{sCNT} offen{NT} lds")
wn = [0]; WCAP = [32]; WSEQ = {}
def WR(i): return 224 + 4*i if i < 8 else 4*(i-8)
def w1():
    if wn[0] >= WCAP[0]: return
    i = wn[0]; wn[0] += 1
    if i % 4 == 0:
        e(f"s_add_u32 s{sWk}, s{sROT}, {i//4}")
        e(f"s_and_b32 s{sWk}, s{sWk}, 7")
        e(f"s_lshl_b32 s{sWk}, s{sWk}, 12")
        e(f"s_add_u32 s{sWk}, s{sWk}, s{sWo}")
    WSEQ[i] = vm(f"buffer_load_dwordx4 {ar(WR(i),4)}, v{vL16}, {srd(SWS)}, s{sWk} offen offset:{(i%4)*1024} sc1")

def addr_setup():
    e(f"s_lshl_b32 s{sT1}, s{sW}, 14")
    e(f"s_add_u32 s{sT1}, s{sT1}, {STG}")
    c("staging write: cg*16384 + (32w + i/16)*64 + (i%4)*16")
    e("v_bfe_u32 v30, v1, 2, 2")
    e(f"v_lshlrev_b32 v{vStW}, 14, v30")
    e("v_lshrrev_b32 v30, 4, v1")
    e(f"v_lshl_add_u32 v{vStW}, v30, 6, v{vStW}")
    e("v_and_b32 v30, 3, v1")
    e(f"v_lshl_add_u32 v{vStW}, v30, 4, v{vStW}")
    e(f"s_lshl_b32 s{sT2}, s{sW}, 11")
    e(f"s_add_u32 s{sT2}, s{sT2}, {STG}")
    e(f"v_add_u32 v{vStW}, s{sT2}, v{vStW}")
    e("v_lshrrev_b32 v30, 5, v1")
    e("v_lshlrev_b32 v30, 3, v30")
    e("v_bfe_u32 v31, v1, 2, 2")
    e("v_add_u32 v30, v30, v31")
    e(f"v_lshlrev_b32 v{vStR}, 6, v30")
    e("v_bfe_u32 v30, v1, 4, 1")
    e(f"v_lshl_add_u32 v{vStR}, v30, 5, v{vStR}")
    e("v_and_b32 v30, 1, v1")
    e(f"v_lshl_add_u32 v{vStR}, v30, 4, v{vStR}")
    e("v_bfe_u32 v30, v1, 1, 1")
    e(f"v_lshl_add_u32 v{vStR}, v30, 3, v{vStR}")
    e(f"v_add_u32 v{vStR}, s{sT1}, v{vStR}")
    e("v_and_b32 v30, 31, v1")
    e("v_lshlrev_b32 v30, 8, v30")
    e("v_lshrrev_b32 v31, 5, v1")
    for lo in range(8):
        e(f"v_add_u32 v{vXa[lo]}, {2*lo}, v31")
        e(f"v_xor_b32 v{vXa[lo]}, v{vXa[lo]}, v1")
        e(f"v_and_b32 v{vXa[lo]}, 15, v{vXa[lo]}")
        e(f"v_lshl_add_u32 v{vXa[lo]}, v{vXa[lo]}, 4, v30")
        e(f"v_add_u32 v{112+lo}, 0xc000, v{vXa[lo]}")
    e("v_bfe_u32 v30, v1, 4, 1")
    e(f"v_lshlrev_b32 v{vQw}, 12, v30")
    e("v_and_b32 v30, 15, v1")
    e(f"v_lshl_add_u32 v{vQw}, v30, 4, v{vQw}")
    e("v_lshrrev_b32 v30, 5, v1")
    e(f"v_lshl_add_u32 v{vQw}, v30, 8, v{vQw}")
    e(f"s_lshl_b32 s{sT1}, s{sW}, 10")
    e(f"s_add_u32 s{sT1}, s{sT1}, {QOFF}")
    e(f"v_add_u32 v{vQw}, s{sT1}, v{vQw}")
    c("V dma: (i/8)*256 + (((i%8)/2 ^ ((i/16)&3))*2 + (i&1))*16 ; wo: (i/8)*1024 + (i%8)*16")
    e("v_lshrrev_b32 v30, 4, v1")
    e("v_lshlrev_b32 v30, 1, v30")
    e("v_xor_b32 v30, v30, v1")
    e("v_and_b32 v30, 7, v30")
    e("v_lshrrev_b32 v120, 3, v1")
    e(f"v_lshlrev_b32 v{vVo}, 8, v120")
    e(f"v_lshl_add_u32 v{vVo}, v30, 4, v{vVo}")
    e("v_and_b32 v30, 7, v1")
    e(f"v_lshlrev_b32 v{vWo}, 10, v120")
    e(f"v_lshl_add_u32 v{vWo}, v30, 4, v{vWo}")
    c("tr read base0: w*32768 + (lane>>2)*128 + (((lane>>3)&3)*32) + (lane&3)*8 ; blk b -> ^ b*32")
    e("v_lshrrev_b32 v30, 2, v1")
    e(f"v_lshlrev_b32 v{vVr[0]}, 7, v30")
    e("v_bfe_u32 v30, v1, 3, 2")
    e(f"v_lshl_add_u32 v{vVr[0]}, v30, 5, v{vVr[0]}")
    e("v_and_b32 v30, 3, v1")
    e(f"v_lshl_add_u32 v{vVr[0]}, v30, 3, v{vVr[0]}")
    e(f"s_lshl_b32 s{sVl}, s{sW}, 15")
    e(f"v_add_u32 v{vVr[0]}, s{sVl}, v{vVr[0]}")
    c("vVr[0..1]: group w^1|w^3 parity (blk 2*((w&1)^1)+j2); vVr[2..3]: own parity")
    e(f"s_and_b32 s{sT1}, s{sW}, 1")
    e(f"s_lshl_b32 s{sT1}, s{sT1}, 6")
    e(f"v_xor_b32 v{vVr[2]}, s{sT1}, v{vVr[0]}")
    e(f"v_xor_b32 v{vVr[3]}, 32, v{vVr[2]}")
    e(f"v_xor_b32 v{vVr[0]}, 64, v{vVr[2]}")
    e(f"v_xor_b32 v{vVr[1]}, 64, v{vVr[3]}")
    c("partial slots: own V region + extra")
    e(f"v_add_u32 v{vSl[0]}, s{sVl}, v{vL16}")
    e(f"s_lshl_b32 s{sT1}, s{sW}, 13")
    e(f"s_add_u32 s{sT1}, s{sT1}, {EXTRA}")
    e(f"v_add_u32 v{vSl[1]}, s{sT1}, v{vL16}")
    e(f"v_xor_b32 v{vSr[0]}, 0x18000, v{vSl[0]}")
    e(f"v_xor_b32 v{vSr[1]}, 0x10000, v{vSl[0]}")
    e(f"v_xor_b32 v{vSr[2]}, 0x4000, v{vSl[1]}")
    e(f"v_xor_b32 v{vSr[3]}, 0x8000, v{vSl[0]}")
    c("woT base: WTOFF + (ct*128 + kh*64 + w*16)*4096")
    e(f"s_lshl_b32 s{sWo}, s{sCT}, 4")
    e(f"s_lshl_b32 s{sT1}, s{sKH}, 2")
    e(f"s_add_u32 s{sWo}, s{sWo}, s{sT1}")
    e(f"s_add_u32 s{sWo}, s{sWo}, s{sW}")
    e(f"s_lshl_b32 s{sWo}, s{sWo}, 15")
    e(f"s_add_u32 s{sWo}, s{sWo}, {WTOFF}")
    e("v_and_b32 v30, 15, v1")
    e(f"v_lshlrev_b32 v{vStr}, 4, v30")
    e(f"v_add_u32 v{vStr}, {MAXOFF}, v{vStr}")
    e(f"s_lshl_b32 s{sT1}, s{sW}, 2")
    e(f"v_add_u32 v{vSt}, s{sT1}, v{vStr}")

ACC = 32; XF = 128; WF = 164
def qproj():
    c("x voffset: (4w+i/16)*1024 + ((i%16)^(4w+i/16))*16")
    e(f"s_lshl_b32 s{sT1}, s{sW}, 2")
    e("v_lshrrev_b32 v30, 4, v1")
    e(f"v_add_u32 v30, s{sT1}, v30")
    e("v_xor_b32 v29, v30, v1")
    e("v_and_b32 v29, 15, v29")
    e(f"v_lshlrev_b32 v{vXo[0]}, 10, v30")
    e(f"v_lshl_add_u32 v{vXo[0]}, v29, 4, v{vXo[0]}")
    e(f"s_lshl_b32 s{sXm}, s{sW}, 10")
    e("v_lshrrev_b32 v30, 4, v1")
    e(f"v_lshlrev_b32 v{vWq}, 13, v30")
    e("v_and_b32 v30, 15, v1")
    e(f"v_lshl_add_u32 v{vWq}, v30, 4, v{vWq}")
    e(f"s_lshl_b32 s{sWq}, s{sH}, 8")
    e(f"s_lshl_b32 s{sT1}, s{sW}, 18")
    e(f"s_add_u32 s{sWq}, s{sWq}, s{sT1}")
    xs = {}; wqs = {}
    def xl(ch, m):
        if m == 0:
            e(f"s_add_u32 s{sXc}, s{sR1}, {ch}")
            e(f"s_and_b32 s{sXc}, s{sXc}, {3 if ROT else 0}" if ROT else f"s_mov_b32 s{sXc}, {ch}")
            e(f"s_lshl_b32 s{sWc}, s{sXc}, 20")
            e(f"s_add_u32 s{sWc}, s{sWc}, s{sWq}")
            e(f"s_lshl_b32 s{sXc}, s{sXc}, 8")
            e(f"s_add_u32 s{sXc}, s{sXc}, s{sXB}")
        e(f"s_add_u32 m0, s{sXm}, {XOFF + ch*24576 + m*4096}")
        e(f"s_add_u32 s{sXs}, s{sXc}, {m*16384}")
        xs[ch] = vm(f"buffer_load_dwordx4 v{vXo[0]}, {srd(SX)}, s{sXs} offen lds")
    def wl(ch, i):
        k = ch*8 + i
        e(f"s_add_u32 s{sXs}, s{sWc}, {i*4*8192}")
        wqs[ch] = vm(f"buffer_load_dwordx4 {ar(128+4*k,4)}, v{vWq}, {srd(SWQ)}, s{sXs} offen")
    seqs = [[(xl,ch,m) for m in range(6)] + [(wl,ch,i) for i in range(8)] for ch in range(4)]
    def issue(q, n):
        for _ in range(n):
            if q: it = q.pop(0); it[0](it[1], it[2])
    c("WG0 wave0 publishes the launch tag")
    e(f"s_or_b32 s{sT0}, s2, s{sW}")
    e(f"s_cmp_lg_u32 s{sT0}, 0")
    e("s_cbranch_scc1 L_notag")
    e(f"v_mov_b32 v{vTG}, s{sTAG}")
    e(f"v_mov_b32 v{vTG+1}, 0")
    e("s_mov_b64 exec, 1")
    e(f"buffer_store_dword v{vTG}, v{vTG+1}, {srd(SDBG)}, 0 offen sc1")
    e("s_mov_b64 exec, -1")
    lab("L_notag")
    issue(seqs[0], 99)
    e(f"v_mov_b32 v121, v{vXo[0]}")
    vXo[0] = 121
    addr_setup()
    issue(seqs[1], 99)
    done = [0]
    def piece():
        if done[0]: return
        done[0] = 1
        c("wo piece raw: rows (id>>3)*128 + 32w + 8i + lane/8, cols (id&7)*64")
        e(f"s_lshr_b32 s{sT0}, s2, 3")
        e(f"s_lshl_b32 s{sT0}, s{sT0}, 2")
        e(f"s_add_u32 s{sT0}, s{sT0}, s{sW}")
        e(f"s_lshl_b32 s{sT0}, s{sT0}, 15")
        e(f"s_and_b32 s{sT1}, s2, 7")
        e(f"s_lshl_b32 s{sT1}, s{sT1}, 7")
        e(f"s_add_u32 s{sT0}, s{sT0}, s{sT1}")
        for i in range(4):
            vm(f"buffer_load_dwordx4 {vr(vTmp+4*i,4)}, v{vWo}, {srd(SWO)}, s{sT0} offen")
            e(f"s_add_u32 s{sT0}, s{sT0}, 8192")
    if EARLY:
        issue(seqs[2], 99); issue(seqs[3], 99); piece()
        for _ in range(EARLY-1): k1()
    stamp("issued")
    def rd_frags(S_, buf):
        ch, s = S_//8, S_%8
        for u in range(2):
            e(f"ds_read_b64_tr_b16 {vr(WF+buf*4+u*2,2)}, v{vStR} offset:{(ch&1)*8192 + s*1024 + u*256}")
        for t3 in range(3):
            base = vXa[s] if ch < 2 else 112+s
            e(f"ds_read_b128 {vr(XF+buf*12+t3*4,4)}, v{base} offset:{(ch&1)*24576 + t3*8192}")
    def stage_w(ch, i):
        e(f"ds_write_b128 v{vStW}, {ar(128+(ch*8+i)*4,4)} offset:{(ch&1)*8192 + i*256}")
    wait_for(max(wqs[0], xs[0]))
    for i in range(8): stage_w(0, i)
    for ch in range(4):
        e("s_waitcnt lgkmcnt(0)")
        e("s_barrier")
        if ch == 0: stamp("x_ready")
        rd_frags(ch*8, 0); rd_frags(ch*8+1, 1)
        pend = 10
        q = [5, 5]
        for s in range(8):
            S_ = ch*8 + s; buf = s % 3
            if s < 6: rd_frags(S_+2, (s+2)%3); q.append(5)
            q.pop(0)
            e(f"s_waitcnt lgkmcnt({min(15, sum(q))})")
            for t3 in range(3):
                cin = "0" if S_ == 0 else vr(ACC+t3*16,16)
                e(f"v_mfma_f32_32x32x16_bf16 {vr(ACC+t3*16,16)}, {vr(WF+buf*4,4)}, {vr(XF+buf*12+t3*4,4)}, {cin}")
                if ch == 0: issue(seqs[2] if seqs[2] else seqs[3], 1)
                if (ch == 1 or (EARLY and ch == 0)) and t3 != 1 and kn[0] < K1: k1()
                if ch == 2 and t3 != 1 and kn[0] < K2: k1()
                if ch == 3 and t3 != 1 and kn[0] < K3: k1()
            if ch == 0 and s == 7:
                issue(seqs[2], 99); issue(seqs[3], 99)
                piece()
            if ch < 3 and s >= 4:
                if s == 4: wait_for(max(wqs[ch+1], xs[ch+1]))
                stage_w(ch+1, (s-4)*2); stage_w(ch+1, (s-4)*2+1)
                if q: q[-1] += 2
                else: q.append(2)
    e("s_barrier")
    stamp("qproj_done")
    nop(12)
    for t3 in range(3):
        for t in range(2):
            b0 = ACC + t3*16 + t*8
            for k in range(4):
                e(f"v_cvt_pk_bf16_f32 v{XF+(t3*2+t)*4+k}, v{b0+2*k}, v{b0+2*k+1}")
            e(f"ds_write_b128 v{vQw}, {vr(XF+(t3*2+t)*4,4)} offset:{t3*8192 + t*512}")
    for _ in range(KB):
        if kn[0] < 32: k1()
        else: v1()
    e("s_waitcnt lgkmcnt(0)")
    e("s_barrier")
    e(f"v_add_u32 v30, {QOFF}, v{vL16}")
    for j in range(6):
        for s in range(4):
            e(f"ds_read_b128 {ar(128+(j*4+s)*4,4)}, v30 offset:{(j*4+s)*1024}")

def xreduce(base, op):
    for sw in ("v_permlane32_swap_b32", "v_permlane16_swap_b32"):
        for j in range(6): e(f"v_mov_b32 v{vTmp+j}, v{base+j}")
        nop(2)
        for j in range(6): e(f"{sw} v{base+j}, v{vTmp+j}")
        nop(2)
        for j in range(6): e(f"{op} v{base+j}, v{base+j}, v{vTmp+j}")
def stat_read(off):
    for j in range(5):
        e(f"ds_read_b128 {vr(vTmp+j*4,4)}, v{vStr} offset:{off + j*256}")
    e(f"ds_read_b128 {vr(vXa[1],4)}, v{vStr} offset:{off + 5*256}")
    e("s_waitcnt lgkmcnt(0)")

def poll_loop(lbl):
    e(f"s_mov_b32 s{sCNT}, 0")
    lab(lbl)
    e(f"buffer_load_dword v30, v31, {srd(SWS)}, s{sT0} offen sc1")
    e("s_waitcnt vmcnt(0)")
    e(f"v_cmp_ne_u32 vcc, s{sTAG}, v30")
    e(f"s_add_u32 s{sCNT}, s{sCNT}, 1")
    e("s_nop 3")
    e(f"s_cbranch_vccz {lbl}_done")
    e("s_sleep 2")
    e(f"s_cmp_lt_u32 s{sCNT}, 200000")
    e(f"s_cbranch_scc1 {lbl}")
    lab(lbl + "_done")
def flag_store():
    e(f"v_mov_b32 v30, s{sTAG}")
    e("v_mov_b32 v31, 0")
    e("s_mov_b64 exec, 1")
    e(f"buffer_store_dword v30, v31, {srd(SWS)}, s{sT0} offen sc1")
    e("s_mov_b64 exec, -1")
def attention():
    for a in range(8):
        wait_for(kseq[a], " lgkmcnt(0)" if a == 0 else "")
        if a == 0:
            e("v_mov_b32 v19, 0")
            vm(f"buffer_load_dword v7, v19, {srd(SDBG)}, 0 offen sc1")
            c("wo piece: raw -> LDS (own V half-1 region)")
            e("v_lshrrev_b32 v30, 4, v1")
            e("v_lshlrev_b32 v30, 1, v30")
            e("v_xor_b32 v30, v30, v1")
            e(f"v_lshl_add_u32 v30, v30, 4, s{sVl}")
            for i in range(4): e(f"ds_write_b128 v30, {vr(vTmp+4*i,4)} offset:{16384 + i*1024}")
        if a == 1:
            e("s_waitcnt lgkmcnt(0)")
            for g4 in range(4):
                for u in range(2):
                    e(f"ds_read_b64_tr_b16 {vr(vTmp+g4*4+2*u,2)}, v{vVr[g4]} offset:{16384 + u*2048}")
        if a == 2:
            c("store frags: WTOFF + ((id&7)*128 + (id>>3)*4 + w)*4096 + jj*1024")
            e(f"s_and_b32 s{sT0}, s2, 7")
            e(f"s_lshl_b32 s{sT0}, s{sT0}, 7")
            e(f"s_lshr_b32 s{sT1}, s2, 3")
            e(f"s_lshl_b32 s{sT1}, s{sT1}, 2")
            e(f"s_add_u32 s{sT0}, s{sT0}, s{sT1}")
            e(f"s_add_u32 s{sT0}, s{sT0}, s{sW}")
            e(f"s_lshl_b32 s{sT0}, s{sT0}, 12")
            e(f"s_add_u32 s{sT0}, s{sT0}, {WTOFF}")
            e(f"s_and_b32 s{sT1}, s{sW}, 1")
            e(f"s_lshl_b32 s{sT1}, s{sT1}, 11")
            e(f"s_add_u32 s{sT2}, s{sT0}, s{sT1}")
            e(f"s_xor_b32 s{sT1}, s{sT1}, 2048")
            e(f"s_add_u32 s{sT0}, s{sT0}, s{sT1}")
            e("s_waitcnt lgkmcnt(0)")
            for g4 in range(4):
                PST[0] = vm(f"buffer_store_dwordx4 {vr(vTmp+g4*4,4)}, v{vL16}, {srd(SWS)}, s{sT0 if g4 < 2 else sT2} offen offset:{(g4&1)*1024} sc1")
        for s in range(4):
            for j in range(6):
                cin = "0" if s == 0 else vr(S(a,j),4)
                e(f"v_mfma_f32_16x16x32_bf16 {vr(S(a,j),4)}, {ar((a*4+s)*4,4)}, {ar(128+(j*4+s)*4,4)}, {cin}")
                if j == 2:
                    if kn[0] < 32: k1()
                    elif s < VS: v1()
                if a > 0 and s in (1,2):
                    p = S(a-1,j) + (s-1)*2
                    if a == 1 and s == 1: e(f"v_max_f32 v{vM+j}, v{p}, v{p+1}")
                    else: e(f"v_max3_f32 v{vM+j}, v{vM+j}, v{p}, v{p+1}")
    nop(8)
    stamp("S_done")
    for j in range(6):
        e(f"v_max3_f32 v{vM+j}, v{vM+j}, v{S(7,j)}, v{S(7,j)+1}")
        e(f"v_max3_f32 v{vM+j}, v{vM+j}, v{S(7,j)+2}, v{S(7,j)+3}")
    xreduce(vM, "v_max_f32")
    for j in range(6): e(f"ds_write_b32 v{vSt}, v{vM+j} offset:{j*256}")
    e("s_waitcnt lgkmcnt(0)")
    if kseq[7] < PST[0]: wait_for(PST[0])
    e("s_barrier")
    c("launch tag (fallback: poll until published)")
    e(f"v_readfirstlane_b32 s{sTAG}, v7")
    e(f"s_mov_b32 s{sCNT}, 0")
    lab("L_tagpoll")
    e(f"s_cmp_lg_u32 s{sTAG}, 0")
    e("s_cbranch_scc1 L_tagok")
    e(f"buffer_load_dword v7, v19, {srd(SDBG)}, 0 offen sc1")
    e("s_waitcnt vmcnt(0)")
    e(f"v_readfirstlane_b32 s{sTAG}, v7")
    e(f"s_add_u32 s{sCNT}, s{sCNT}, 1")
    e(f"s_cmp_lt_u32 s{sCNT}, 200000")
    e("s_cbranch_scc1 L_tagpoll")
    lab("L_tagok")
    e(f"s_cmp_lg_u32 s{sW}, 0")
    e("s_cbranch_scc1 L_sigw")
    e(f"s_and_b32 s{sT0}, s2, 7")
    e(f"s_lshl_b32 s{sT0}, s{sT0}, 7")
    e(f"s_lshr_b32 s{sT1}, s2, 3")
    e(f"s_lshl_b32 s{sT1}, s{sT1}, 2")
    e(f"s_add_u32 s{sT0}, s{sT0}, s{sT1}")
    e(f"s_add_u32 s{sT0}, s{sT0}, {FOFF + 4096}")
    flag_store()
    lab("L_sigw")
    stat_read(0)
    for j in range(6):
        b0 = vTmp + j*4 if j < 5 else vXa[1]
        e(f"v_max3_f32 v{b0}, v{b0}, v{b0+1}, v{b0+2}")
        e(f"v_max_f32 v{b0}, v{b0}, v{b0+3}")
        e(f"v_mul_f32 v{224+2*j}, s{sC}, v{b0}")
        e(f"v_mul_f32 v{225+2*j}, s{sC}, v{b0}")
    e(f"s_mov_b32 s66, s{sC}"); e(f"s_mov_b32 s67, s{sC}")
    e("v_mov_b32 v30, 0x3f803f80")
    for i in range(4): e(f"v_accvgpr_write_b32 a{96+i}, v30")
    pend = None
    def summ(p):
        j_, s_ = p
        cin = "0" if s_ == 0 else ar(112+4*j_,4)
        e(f"v_mfma_f32_16x16x32_bf16 {ar(112+4*j_,4)}, a[96:99], {vr(S(2*s_,j_),4)}, {cin}")
    for j in range(6):
        for s in range(4):
            regs8 = [S(2*s,j)+i for i in range(4)] + [S(2*s+1,j)+i for i in range(4)]
            for r in regs8[::2]: e(f"v_pk_fma_f32 {vr(r,2)}, {vr(r,2)}, s[66:67], {vr(224+2*j,2)} neg_lo:[0,0,1] neg_hi:[0,0,1]")
            if pend: summ(pend)
            if vn[0] < 16 or (j*4+s) % VD == 0: v1()
            for r in regs8: e(f"v_exp_f32 v{r}, v{r}")
            e("s_nop 0")
            for k in range(4):
                e(f"v_cvt_pk_bf16_f32 v{S(2*s,j)+k}, v{regs8[2*k]}, v{regs8[2*k+1]}")
            pend = (j, s)
    nop(2)
    summ(pend)
    nop(8)
    for j in range(6): e(f"v_accvgpr_read_b32 v{vTmp+j}, a{112+4*j}")
    for j in range(6): e(f"ds_write_b32 v{vSt}, v{vTmp+j} offset:{SUMOFF - MAXOFF + j*256}")
    e("s_waitcnt lgkmcnt(0)")
    e("s_barrier")
    stat_read(SUMOFF - MAXOFF)
    for j in range(6):
        b0 = vTmp + j*4 if j < 5 else vXa[1]
        e(f"v_add_f32 v{b0}, v{b0}, v{b0+1}")
        e(f"v_add_f32 v{b0+2}, v{b0+2}, v{b0+3}")
        e(f"v_add_f32 v{b0}, v{b0}, v{b0+2}")
        e(f"v_rcp_f32 v{224+2*j}, v{b0}")
        e(f"v_rcp_f32 v{225+2*j}, v{b0}")
    stamp("softmax_done")
    def vfr(hf, s, buf):
        for g4 in range(4):
            for u in range(2):
                e(f"ds_read_b64_tr_b16 {ar(VA+buf*16+g4*4+2*u,2)}, v{vVr[g4]} offset:{hf*16384 + s*4096 + u*2048}")
    def phase(hf, cinit):
        wait_for(vseq[(hf,0)])
        vfr(hf, 0, 0)
        for s in range(4):
            if s < 3:
                wait_for(vseq[(hf,s+1)])
                if s == 2 and hf == 1: stamp("V3_ready")
                vfr(hf, s+1, (s+1)&1)
                if hf == 1:
                    if s == 0:
                        e(f"v_cmp_ne_u32 vcc, s{sTAG}, v7")
                        e("s_nop 4")
                        e("s_cbranch_vccz L_pollw_done")
                        e(f"s_mov_b32 s{sT0}, s{sXc}")
                        e("v_mov_b32 v31, v19")
                        poll_loop("L_pollw")
                    for _ in range(WP): w1()
                e("s_waitcnt lgkmcnt(8)")
            else: e("s_waitcnt lgkmcnt(0)")
            for g4 in range(4):
                for j in range(6):
                    d = ACCT(g4*6 + j)
                    cin = "0" if (s == 0 and not (cinit and g4 >= 2)) else vr(d,4)
                    e(f"v_mfma_f32_16x16x32_bf16 {vr(d,4)}, {ar(VA+(s&1)*16+g4*4,4)}, {vr(S(2*s,j),4)}, {cin}")
                    if j == 3: v1()
    while vn[0] < 16: v1()
    c("PV phase I: groups w^3 (tiles 0..11), w^2 (tiles 12..23)")
    phase(0, False)
    while vn[0] < 32: v1()
    stamp("f2_pv1")
    nop(4)
    for tt in range(24):
        if tt < 16: e(f"ds_write_b128 v{vSl[0]}, {vr(ACCT(tt),4)} offset:{tt*1024}")
        else: e(f"ds_write_b128 v{vSl[1]}, {vr(ACCT(tt),4)} offset:{(tt-16)*1024}")
    e("s_waitcnt lgkmcnt(0)")
    e("s_barrier")
    stamp("f2_bar1")
    c("own group init = partial(w^3 tiles 0..11) + partial(w^2 tiles 12..23)")
    for t in range(12):
        e(f"ds_read_b128 {vr(ACCT(12+t),4)}, v{vSr[0]} offset:{t*1024}")
        if t < 4: e(f"ds_read_b128 {vr(ACCT(t),4)}, v{vSr[1]} offset:{(12+t)*1024}")
        else: e(f"ds_read_b128 {vr(ACCT(t),4)}, v{vSr[2]} offset:{(t-4)*1024}")
    e("s_waitcnt lgkmcnt(0)")
    for t in range(12):
        for i in (0,2): e(f"v_pk_add_f32 {vr(ACCT(12+t)+i,2)}, {vr(ACCT(12+t)+i,2)}, {vr(ACCT(t)+i,2)}")
    nop(2)
    stamp("f2_init")
    c("PV phase II: groups w^1 (tiles 0..11, C=0), w (tiles 12..23)")
    for s in range(4):
        wait_for(vseq[(1,s)])
        if s == 3: stamp("V3_ready")
        vfr(1, s, s&1)
        if s == 1:
            e(f"v_cmp_ne_u32 vcc, s{sTAG}, v7")
            e("s_nop 4")
            e("s_cbranch_vccz L_pollw_done")
            e(f"s_mov_b32 s{sT0}, s{sXc}")
            e("v_mov_b32 v31, v19")
            poll_loop("L_pollw")
        e("s_waitcnt lgkmcnt(4)")
        for g4 in range(4):
            if g4 == 2: e("s_waitcnt lgkmcnt(0)" if s < 3 else "s_waitcnt lgkmcnt(0)")
            for j in range(6):
                d = ACCT(g4*6 + j)
                cin = "0" if (s == 0 and g4 < 2) else vr(d,4)
                e(f"v_mfma_f32_16x16x32_bf16 {vr(d,4)}, {ar(VA+(s&1)*16+g4*4,4)}, {vr(S(2*s,j),4)}, {cin}")
                if s == 3 and g4 >= 2:
                    t = (g4-2)*6 + j - 3
                    if t >= 0: e(f"ds_write_b128 v{vSl[0]}, {vr(ACCT(t),4)} offset:{16384 + t*1024}")
                elif s >= 1 and j in (1,4) and wn[0] < WP*s: w1()
    for t in range(9,12):
        e(f"ds_write_b128 v{vSl[0]}, {vr(ACCT(t),4)} offset:{16384 + t*1024}")
    for _ in range(WE): w1()
    e("s_waitcnt lgkmcnt(0)")
    e("s_barrier")
    for t in range(12):
        e(f"ds_read_b128 {vr(ACCT(t),4)}, v{vSr[3]} offset:{16384 + t*1024}")
    e("s_waitcnt lgkmcnt(0)")
    for t in range(12):
        for i in (0,2): e(f"v_pk_add_f32 {vr(ACCT(12+t)+i,2)}, {vr(ACCT(12+t)+i,2)}, {vr(ACCT(t)+i,2)}")
VA = 192
def ACCT(tt): return S(1 + 2*(tt//6), tt%6)
def outproj_g():
    f1p = [f"s_lshr_b32 s{sT0}, s{sH}, 4", f"s_lshl_b32 s{sT1}, s{sB}, 1", f"s_add_u32 s{sT0}, s{sT0}, s{sT1}", f"s_lshl_b32 s{sT0}, s{sT0}, 2"]
    f1c = [f"s_lshl_b32 s{sT1}, s{sB2}, 1", f"s_add_u32 s{sT0}, s{sKH}, s{sT1}", f"s_lshl_b32 s{sT0}, s{sT0}, 2"]
    stamp("f2_sum")
    c("normalize, pack, store O frags")
    e(f"s_lshl_b32 s{sT0}, s{sB}, 5")
    e(f"s_add_u32 s{sT0}, s{sT0}, s{sH}")
    e(f"s_lshl_b32 s{sT0}, s{sT0}, 2")
    e(f"s_add_u32 s{sT0}, s{sT0}, s{sW}")
    e(f"s_mul_i32 s{sT0}, s{sT0}, 6144")
    for j in range(6):
        for j2 in range(2):
            b0 = ACCT(12+j2*6+j)
            for i in (0,2): e(f"v_pk_mul_f32 {vr(b0+i,2)}, {vr(b0+i,2)}, {vr(224+2*j,2)}")
        d = ACCT(j)
        for j2 in range(2):
            b0 = ACCT(12+j2*6+j)
            e(f"v_cvt_pk_bf16_f32 v{d+2*j2}, v{b0}, v{b0+1}")
            e(f"v_cvt_pk_bf16_f32 v{d+2*j2+1}, v{b0+2}, v{b0+3}")
        if j == 4: e(f"s_add_u32 s{sT0}, s{sT0}, 4096")
        ost = vm(f"buffer_store_dwordx4 {vr(d,4)}, v{vL16}, {srd(SWS)}, s{sT0} offen offset:{(j%4)*1024} sc1")
    stamp("f2_stissued")
    for _ in range(WA): w1()
    wait_for(ost)
    e("s_barrier")
    stamp("O_stored")
    e(f"s_cmp_lg_u32 s{sW}, 0")
    e("s_cbranch_scc1 L_sig1")
    e(f"s_lshr_b32 s{sT0}, s{sH}, 4")
    e(f"s_lshl_b32 s{sT1}, s{sB}, 1")
    e(f"s_add_u32 s{sT0}, s{sT0}, s{sT1}")
    e(f"s_lshl_b32 s{sT0}, s{sT0}, 7")
    e(f"s_and_b32 s{sT1}, s{sH}, 15")
    e(f"s_lshl_b32 s{sT1}, s{sT1}, 2")
    e(f"s_add_u32 s{sT0}, s{sT0}, s{sT1}")
    e(f"s_add_u32 s{sT0}, s{sT0}, {FOFF}")
    flag_store()
    lab("L_sig1")
    while wn[0] < 32: w1()
    def FRG(ks, jj): return WR(ks*4 + jj)
    e(f"s_cmp_lg_u32 s{sW}, 0")
    e("s_cbranch_scc1 L_poll1_done")
    e(f"s_lshl_b32 s{sT0}, s{sB2}, 8")
    e(f"s_lshr_b32 s{sT1}, s{sKH}, 1")
    e(f"s_lshl_b32 s{sT1}, s{sT1}, 7")
    e(f"s_add_u32 s{sT0}, s{sT0}, s{sT1}")
    e(f"s_and_b32 s{sT1}, s{sKH}, 1")
    e(f"s_lshl_b32 s{sT1}, s{sT1}, 5")
    e(f"s_add_u32 s{sT0}, s{sT0}, s{sT1}")
    e(f"s_add_u32 s{sT0}, s{sT0}, {FOFF}")
    e("v_and_b32 v31, 7, v1")
    e("v_lshlrev_b32 v31, 2, v31")
    poll_loop("L_poll1")
    e("s_barrier")
    stamp("poll_done")
    e(f"s_lshl_b32 s{sOB}, s{sB2}, 5")
    e(f"s_lshl_b32 s{sT0}, s{sKH}, 3")
    e(f"s_add_u32 s{sOB}, s{sOB}, s{sT0}")
    e(f"s_lshl_b32 s{sT0}, s{sW}, 1")
    e(f"s_add_u32 s{sOB}, s{sOB}, s{sT0}")
    e(f"s_mul_i32 s{sOB}, s{sOB}, 24576")
    OA = 152; oseq = {}; RING = 5
    def oload(ks, half):
        if half == 0:
            e(f"s_add_u32 s{sT0}, s{sROT}, {ks}")
            e(f"s_and_b32 s{sT0}, s{sT0}, 7")
            e(f"s_mul_i32 s{sT0}, s{sT0}, 6144")
            e(f"s_add_u32 s{sT0}, s{sT0}, s{sOB}")
        else: e(f"s_add_u32 s{sT0}, s{sT0}, 3072")
        for jq in range(3):
            oseq[(ks,half)] = vm(f"buffer_load_dwordx4 {vr(32 + ((ks%RING)*6+half*3+jq)*4,4)}, v{vL16}, {srd(SWS)}, s{sT0} offen offset:{jq*1024} sc1")
    for ks in range(3): oload(ks,0); oload(ks,1)
    for ks in range(8):
        for half in range(2):
            wait_for(oseq[(ks,half)])
            for jq in range(3):
                for jj in range(4):
                    d = OA + (jj*6+half*3+jq)*4
                    cin = "0" if ks == 0 else vr(d,4)
                    e(f"v_mfma_f32_16x16x32_bf16 {vr(d,4)}, {ar(FRG(ks,jj),4)}, {vr(32+((ks%RING)*6+half*3+jq)*4,4)}, {cin}")
                if jq == 0 and ks + 3 < 8: oload(ks+3, half)
    nop(8)
    stamp("oproj_done")
    c("cross-wave reduce: wave w sums n16 tile jj=w (6 q tiles)")
    e(f"s_mul_i32 s{sT1}, s{sW}, 24576")
    e(f"v_add_u32 v30, s{sT1}, v{vL16}")
    for t in range(24):
        e(f"ds_write_b128 v30, {vr(OA+t*4,4)} offset:{t*1024}")
    e("s_waitcnt lgkmcnt(0)")
    e("s_barrier")
    e(f"s_mul_i32 s{sT1}, s{sW}, 6144")
    e(f"v_add_u32 v30, s{sT1}, v{vL16}")
    e("v_add_u32 v29, 0xc000, v30")
    for ww in range(4):
        for jq in range(6):
            e(f"ds_read_b128 {vr(32+(ww*6+jq)*4,4)}, v{30 if ww < 2 else 29} offset:{(ww&1)*24576 + jq*1024}")
    e("s_waitcnt lgkmcnt(0)")
    for r in range(0,24,2):
        e(f"v_pk_add_f32 {vr(32+r,2)}, {vr(32+r,2)}, {vr(56+r,2)}")
        e(f"v_pk_add_f32 {vr(80+r,2)}, {vr(80+r,2)}, {vr(104+r,2)}")
        e(f"v_pk_add_f32 {vr(32+r,2)}, {vr(32+r,2)}, {vr(80+r,2)}")
    c("wave w == kq receives; others send their tile (tagged 16B granules) for WG kq'=w")
    e(f"s_cmp_eq_u32 s{sW}, s{sKH}")
    e("s_cbranch_scc1 L_recv")
    e(f"s_lshl_b32 s{sT1}, s2, 2")
    e(f"s_add_u32 s{sT1}, s{sT1}, s{sW}")
    e(f"s_lshl_b32 s{sT1}, s{sT1}, 13")
    e(f"s_add_u32 s{sT1}, s{sT1}, {POFF}")
    for g_ in range(8):
        for i in range(3): e(f"v_mov_b32 v{128+g_*4+i}, v{32+g_*3+i}")
        e(f"v_mov_b32 v{131+g_*4}, s{sTAG}")
        if g_ == 4: e(f"s_add_u32 s{sT1}, s{sT1}, 4096")
        e(f"buffer_store_dwordx4 {vr(128+g_*4,4)}, v{vL16}, {srd(SWS)}, s{sT1} offen offset:{(g_%4)*1024} sc1")
    e("s_branch L_fin")
    lab("L_recv")
    for p in range(3):
        e(f"s_xor_b32 s{66+p}, s2, {p+1}")
        e(f"s_lshl_b32 s{66+p}, s{66+p}, 2")
        e(f"s_add_u32 s{66+p}, s{66+p}, s{sW}")
        e(f"s_lshl_b32 s{66+p}, s{66+p}, 13")
        e(f"s_add_u32 s{66+p}, s{66+p}, {POFF}")
        e(f"s_add_u32 s{69+p}, s{66+p}, 4096")
    c("out offset = ((b2*96 + 16jq + q)*512 + 64ct + 16w + 4g')*2")
    e(f"s_mul_i32 s{sT0}, s{sB2}, 96")
    e(f"s_lshl_b32 s{sT0}, s{sT0}, 10")
    e(f"s_lshl_b32 s{sT1}, s{sCT}, 7")
    e(f"s_add_u32 s{sT0}, s{sT0}, s{sT1}")
    e(f"s_lshl_b32 s{sT1}, s{sW}, 5")
    e(f"s_add_u32 s{sT0}, s{sT0}, s{sT1}")
    e("v_and_b32 v31, 15, v1")
    e("v_lshlrev_b32 v31, 10, v31")
    e("v_lshrrev_b32 v2, 4, v1")
    e("v_lshl_add_u32 v31, v2, 3, v31")
    e(f"s_mov_b32 s{sCNT}, 0")
    lab("L_poll2")
    for p in range(3):
        for g_ in range(8):
            e(f"buffer_load_dwordx4 {vr(128+(p*8+g_)*4,4)}, v{vL16}, {srd(SWS)}, s{66+p if g_ < 4 else 69+p} offen offset:{(g_%4)*1024} sc1")
    e("s_waitcnt vmcnt(0)")
    e(f"v_xor_b32 v2, s{sTAG}, v131")
    for k in range(1,24):
        e(f"v_xor_b32 v3, s{sTAG}, v{131+k*4}")
        e("v_or_b32 v2, v2, v3")
    e("v_cmp_ne_u32 vcc, 0, v2")
    e(f"s_add_u32 s{sCNT}, s{sCNT}, 1")
    e("s_nop 3")
    e("s_cbranch_vccz L_poll2_done")
    e("s_sleep 1")
    e(f"s_cmp_lt_u32 s{sCNT}, 200000")
    e("s_cbranch_scc1 L_poll2")
    lab("L_poll2_done")
    for r in range(24):
        for p in range(3): e(f"v_add_f32 v{32+r}, v{32+r}, v{128+(p*8+r//3)*4+r%3}")
    for jq in range(6):
        e(f"v_cvt_pk_bf16_f32 v{64+jq*2}, v{32+jq*4}, v{33+jq*4}")
        e(f"v_cvt_pk_bf16_f32 v{65+jq*2}, v{34+jq*4}, v{35+jq*4}")
        e(f"buffer_store_dwordx2 {vr(64+jq*2,2)}, v31, {srd(SOUT)}, s{sT0} offen")
        e(f"s_add_u32 s{sT0}, s{sT0}, 16384")
    lab("L_fin")

prologue(); qproj(); attention(); outproj_g()
stamp("end"); stamp_dump()
lab("L_end"); e("s_endpgm")
hdr = open("cdna_kernels/%s.s.ref" % NAME).read().split("; @launch")[0]
out = hdr + "; @launch grid=(256,1,1) block=(256,1,1) lds=163840\n"
out += f""".amdgcn_target "amdgcn-amd-amdhsa--gfx950"
.text
.globl {NAME}_kernel
.p2align 8
.type {NAME}_kernel,@function
{NAME}_kernel:
""" + "\n".join(L) + f"""
.section .rodata,"a"
.p2align 6
.amdhsa_kernel {NAME}_kernel
  .amdhsa_next_free_vgpr 512
  .amdhsa_next_free_sgpr 102
  .amdhsa_accum_offset 256
  .amdhsa_group_segment_fixed_size 0
  .amdhsa_kernarg_size 64
  .amdhsa_user_sgpr_count 2
  .amdhsa_user_sgpr_kernarg_segment_ptr 1
  .amdhsa_system_sgpr_workgroup_id_x 1
.end_amdhsa_kernel
"""
dst = sys.argv[1] if len(sys.argv) > 1 else "cdna_kernels/%s.s" % NAME
open(dst, "w").write(out)
print("wrote", dst, len(L), "lines")
```

```python
import sys, os
L = []
def e(s): L.append("    " + s)
def lab(s): L.append(s + ":")
def c(s): L.append("    ; " + s)
def nop(n):
    while n > 0:
        k = min(n, 16); e(f"s_nop {k-1}"); n -= k
NAME = "standalone__gqa_block_cached__near_ridge"
STAMP = os.environ.get("STAMP")
VPRE = int(os.environ.get("VPRE", "4"))
NT = os.environ.get("NT", " nt")
K1 = int(os.environ.get("K1", "12"))
K2 = int(os.environ.get("K2", "12"))
K3 = int(os.environ.get("K3", "16"))
VS = int(os.environ.get("VS", "1"))
WP = int(os.environ.get("WP", "10"))
ROT = int(os.environ.get("ROT", "0"))
WE = int(os.environ.get("WE", "0"))
OPRE = int(os.environ.get("OPRE", "5"))
WA = int(os.environ.get("WA", "12"))
KB = int(os.environ.get("KB", "4"))
EARLY = int(os.environ.get("EARLY", "0"))
VD = int(os.environ.get("VD", "2"))
WS2 = int(os.environ.get("WS2", "0"))
KPRE = int(os.environ.get("KPRE", "4"))
XOFF = 0; STG = 98304; QOFF = 131072; EXTRA = 131072
MAXOFF = 155648; SUMOFF = 160*1024 - 2048
SX, SK, SV, SWQ, SWO, SOUT, SWS, SDBG = 8, 12, 16, 20, 24, 28, 32, 36
sW, sB, sH, sT0, sT1, sT2, sT3 = 40, 41, 42, 43, 44, 45, 46
sKV, sXB, sC, sB2, sQH, sCT, sOB, sWN, sCNT = 47, 48, 49, 50, 51, 52, 53, 54, 55
sVb, sVl, sWo = 56, 57, 58
sKH = 5
sROT = 4; sR1 = 7; sXc = 63; sWc = 64; sWk = 65
sXm, sXs, sWq = 59, 60, 61
POFF = 0x800000
FOFF = 0xA00000
WTOFF = 0xC00000
sTAG = 6
vTG = 122
def srd(r): return f"s[{r}:{r+3}]"
vKo = 2; vXo = [31]; vWq = 7; vL16 = 8; vStW = 9; vStR = 10
vXa = list(range(11,19)); vQw = 19; vVo = 20; vVr = [21,22,23,24]; vSl = [25,26]; vSr = [3,4,5,6]
vSt = 27; vStr = 28; vWo = 29
def S(a,j): return 32 + (a*6+j)*4
vM = 224; vLs = 230; vTmp = 236
def vr(b,n): return f"v[{b}:{b+n-1}]"
def ar(b,n): return f"a[{b}:{b+n-1}]"
stamps = []
def stamp(name):
    if STAMP is None: return
    if os.environ.get("FINE2") and name in ("issued","x_ready","qproj_done","S_done"): return
    if name.startswith("f2") and not os.environ.get("FINE2"): return
    if os.environ.get("FINE") and name in ("softmax_done","V3_ready","O_stored","poll_done","oproj_done"): return
    k = len(stamps); stamps.append(name)
    e(f"s_memrealtime s[{74+2*k}:{75+2*k}]")
    e("s_waitcnt lgkmcnt(0)")
def stamp_dump():
    if STAMP is None: return
    e(f"s_cmp_lg_u32 s{sW}, 0")
    e("s_cbranch_scc1 L_end")
    e("s_mov_b64 exec, 1")
    e(f"s_mov_b32 s{SWS+2}, 0x2000000")
    e(f"s_lshl_b32 s{sT1}, s2, 6")
    e(f"s_add_u32 s{sT1}, s{sT1}, 0x1800000")
    for k in range(len(stamps)):
        e(f"v_mov_b32 v30, s{74+2*k}")
        e(f"v_mov_b32 v31, {k*4}")
        e(f"buffer_store_dword v30, v31, {srd(SWS)}, s{sT1} offen")
        e("s_nop 1")
    L.append("; STAMPS " + ",".join(stamps))

class VM:
    n = 0
def vm(s):
    e(s); VM.n += 1; return VM.n
def wait_for(seq, extra=""):
    k = min(63, VM.n - seq)
    e(f"s_waitcnt vmcnt({k}){extra}")

def prologue():
    e("s_cmp_ge_u32 s2, 256")
    e("s_cbranch_scc1 L_end")
    stamp("start")
    e("s_load_dwordx16 s[56:71], s[0:1], 0")
    e("s_memrealtime s[6:7]")
    e("v_and_b32 v1, 63, v0")
    e("v_lshrrev_b32 v30, 6, v0")
    e("s_nop 0")
    e(f"v_readfirstlane_b32 s{sW}, v30")
    e(f"s_and_b32 s{sT0}, s2, 7")
    e(f"s_lshr_b32 s{sT1}, s2, 3")
    e(f"s_and_b32 s{sT2}, s{sT1}, 3")
    e(f"s_lshl_b32 s{sH}, s{sT0}, 2")
    e(f"s_add_u32 s{sH}, s{sH}, s{sT2}")
    e(f"s_lshr_b32 s{sB}, s{sT1}, 2")
    e(f"s_and_b32 s{sKH}, s{sT0}, 1")
    e(f"s_andn2_b32 s{sB2}, s{sT0}, 1")
    e(f"s_lshr_b32 s{sT3}, s{sT2}, 1")
    e(f"s_add_u32 s{sB2}, s{sB2}, s{sT3}")
    e(f"s_and_b32 s{sQH}, s{sT2}, 1")
    e(f"s_mov_b32 s{sCT}, s{sB}")
    e(f"s_lshl_b32 s{sROT}, s{sT2}, 1")
    e(f"s_add_u32 s{sROT}, s{sROT}, s{sCT}")
    e(f"s_lshl_b32 s{sROT}, s{sROT}, 1")
    e(f"s_and_b32 s{sROT}, s{sROT}, 15")
    e(f"s_lshl_b32 s{sKV}, s{sB}, 5")
    e(f"s_add_u32 s{sKV}, s{sKV}, s{sH}")
    e(f"s_lshl_b32 s{sKV}, s{sKV}, 17")
    e(f"s_lshl_b32 s{sT3}, s{sW}, 15")
    e(f"s_add_u32 s{sKV}, s{sKV}, s{sT3}")
    e(f"s_mul_i32 s{sXB}, s{sB}, 98304")
    e(f"s_add_u32 s{sWN}, s{sW}, 1")
    e(f"s_and_b32 s{sWN}, s{sWN}, 3")
    e(f"s_mov_b32 s{sC}, 0x3e0293ee")
    e("v_and_b32 v30, 15, v1")
    e("v_lshrrev_b32 v31, 4, v1")
    e(f"v_lshlrev_b32 v{vKo}, 8, v30")
    e(f"v_lshl_add_u32 v{vKo}, v31, 4, v{vKo}")
    e(f"v_lshlrev_b32 v{vL16}, 4, v1")
    e("s_waitcnt lgkmcnt(0)")
    e(f"s_or_b32 s{sTAG}, s{sTAG}, 1")
    e(f"s_add_u32 s{sR1}, s{sB}, s{sH}")
    sizes = [786432, 33554432, 33554432, 4194304, 4194304, 786432, 256, WTOFF + 0x400000]
    regs = [SX, SK, SV, SWQ, SWO, SOUT, SDBG, SWS]
    for i,(r,sz) in enumerate(zip(regs,sizes)):
        e(f"s_mov_b32 s{r}, s{56+2*i}")
        e(f"s_and_b32 s{r+1}, s{57+2*i}, 0xffff")
        e(f"s_mov_b32 s{r+2}, {sz}")
        e(f"s_mov_b32 s{r+3}, 0x00020000")

kseq = {}; kn = [0]; TAGSEQ = [0]; PST = [0]
def k1():
    if kn[0] >= 32: return
    a, s_ = kn[0]//4, kn[0]%4; kn[0] += 1
    if s_ == 0: e(f"s_add_u32 s{sCNT}, s{sKV}, {a*4096}")
    kseq[a] = vm(f"buffer_load_dwordx4 {ar((a*4+s_)*4,4)}, v{vKo}, {srd(SK)}, s{sCNT} offen offset:{s_*64}{NT}")
vseq = {}; vn = [0]
def v1():
    if vn[0] >= 32: return
    hf, i = vn[0]//16, vn[0]%16; vn[0] += 1
    if hf == 1 and i == 4:
        e(f"s_lshl_b32 s{sWk}, s{sCT}, 7")
        e(f"s_lshl_b32 s{sCNT}, s{sKH}, 6")
        e(f"s_add_u32 s{sWk}, s{sWk}, s{sCNT}")
        e(f"s_add_u32 s{sXc}, s{sWk}, {FOFF + 4096}")
        e("v_and_b32 v19, 15, v1")
        e("v_lshlrev_b32 v19, 2, v19")
        vm(f"buffer_load_dword v7, v19, {srd(SWS)}, s{sXc} offen sc1")
    if i == 0:
        e(f"s_lshr_b32 s{sVb}, s{sW}, 1")
        if hf == 0: e(f"s_xor_b32 s{sVb}, s{sVb}, 1")
        e(f"s_lshl_b32 s{sVb}, s{sVb}, 7")
        e(f"s_add_u32 s{sVb}, s{sVb}, s{sKV}")
    e(f"s_add_u32 m0, s{sVl}, {hf*16384 + i*1024}")
    e(f"s_add_u32 s{sCNT}, s{sVb}, {i*2048}")
    vseq[(hf,i//4)] = vm(f"buffer_load_dwordx4 v{vVo}, {srd(SV)}, s{sCNT} offen{NT} lds")
wn = [0]; WCAP = [56]; WSEQ = {}
def WR(i): return 224 + 4*i if i < 8 else 4*(i-8)
def w1():
    if wn[0] >= WCAP[0]: return
    i = wn[0]; wn[0] += 1
    if i % 4 == 0:
        e(f"s_add_u32 s{sWk}, s{sROT}, {i//4}")
        e(f"s_and_b32 s{sWk}, s{sWk}, 15")
        e(f"s_lshl_b32 s{sWk}, s{sWk}, 12")
        e(f"s_add_u32 s{sWk}, s{sWk}, s{sWo}")
    WSEQ[i] = vm(f"buffer_load_dwordx4 {ar(WR(i),4)}, v{vL16}, {srd(SWS)}, s{sWk} offen offset:{(i%4)*1024} sc1")

def addr_setup():
    e(f"s_lshl_b32 s{sT1}, s{sW}, 14")
    e(f"s_add_u32 s{sT1}, s{sT1}, {STG}")
    c("staging write: cg*16384 + (32w + i/16)*64 + (i%4)*16")
    e("v_bfe_u32 v30, v1, 2, 2")
    e(f"v_lshlrev_b32 v{vStW}, 14, v30")
    e("v_lshrrev_b32 v30, 4, v1")
    e(f"v_lshl_add_u32 v{vStW}, v30, 6, v{vStW}")
    e("v_and_b32 v30, 3, v1")
    e(f"v_lshl_add_u32 v{vStW}, v30, 4, v{vStW}")
    e(f"s_lshl_b32 s{sT2}, s{sW}, 11")
    e(f"s_add_u32 s{sT2}, s{sT2}, {STG}")
    e(f"v_add_u32 v{vStW}, s{sT2}, v{vStW}")
    e("v_lshrrev_b32 v30, 5, v1")
    e("v_lshlrev_b32 v30, 3, v30")
    e("v_bfe_u32 v31, v1, 2, 2")
    e("v_add_u32 v30, v30, v31")
    e(f"v_lshlrev_b32 v{vStR}, 6, v30")
    e("v_bfe_u32 v30, v1, 4, 1")
    e(f"v_lshl_add_u32 v{vStR}, v30, 5, v{vStR}")
    e("v_and_b32 v30, 1, v1")
    e(f"v_lshl_add_u32 v{vStR}, v30, 4, v{vStR}")
    e("v_bfe_u32 v30, v1, 1, 1")
    e(f"v_lshl_add_u32 v{vStR}, v30, 3, v{vStR}")
    e(f"v_add_u32 v{vStR}, s{sT1}, v{vStR}")
    e("v_and_b32 v30, 31, v1")
    e("v_lshlrev_b32 v30, 8, v30")
    e("v_lshrrev_b32 v31, 5, v1")
    for lo in range(8):
        e(f"v_add_u32 v{vXa[lo]}, {2*lo}, v31")
        e(f"v_xor_b32 v{vXa[lo]}, v{vXa[lo]}, v1")
        e(f"v_and_b32 v{vXa[lo]}, 15, v{vXa[lo]}")
        e(f"v_lshl_add_u32 v{vXa[lo]}, v{vXa[lo]}, 4, v30")
        e(f"v_add_u32 v{112+lo}, 0xc000, v{vXa[lo]}")
    e("v_bfe_u32 v30, v1, 4, 1")
    e(f"v_lshlrev_b32 v{vQw}, 12, v30")
    e("v_and_b32 v30, 15, v1")
    e(f"v_lshl_add_u32 v{vQw}, v30, 4, v{vQw}")
    e("v_lshrrev_b32 v30, 5, v1")
    e(f"v_lshl_add_u32 v{vQw}, v30, 8, v{vQw}")
    e(f"s_lshl_b32 s{sT1}, s{sW}, 10")
    e(f"s_add_u32 s{sT1}, s{sT1}, {QOFF}")
    e(f"v_add_u32 v{vQw}, s{sT1}, v{vQw}")
    c("V dma: (i/8)*256 + (((i%8)/2 ^ ((i/16)&3))*2 + (i&1))*16 ; wo: (i/8)*1024 + (i%8)*16")
    e("v_lshrrev_b32 v30, 4, v1")
    e("v_lshlrev_b32 v30, 1, v30")
    e("v_xor_b32 v30, v30, v1")
    e("v_and_b32 v30, 7, v30")
    e("v_lshrrev_b32 v120, 3, v1")
    e(f"v_lshlrev_b32 v{vVo}, 8, v120")
    e(f"v_lshl_add_u32 v{vVo}, v30, 4, v{vVo}")
    e("v_and_b32 v30, 7, v1")
    e(f"v_lshlrev_b32 v{vWo}, 10, v120")
    e(f"v_lshl_add_u32 v{vWo}, v30, 4, v{vWo}")
    c("tr read base0: w*32768 + (lane>>2)*128 + (((lane>>3)&3)*32) + (lane&3)*8 ; blk b -> ^ b*32")
    e("v_lshrrev_b32 v30, 2, v1")
    e(f"v_lshlrev_b32 v{vVr[0]}, 7, v30")
    e("v_bfe_u32 v30, v1, 3, 2")
    e(f"v_lshl_add_u32 v{vVr[0]}, v30, 5, v{vVr[0]}")
    e("v_and_b32 v30, 3, v1")
    e(f"v_lshl_add_u32 v{vVr[0]}, v30, 3, v{vVr[0]}")
    e(f"s_lshl_b32 s{sVl}, s{sW}, 15")
    e(f"v_add_u32 v{vVr[0]}, s{sVl}, v{vVr[0]}")
    c("vVr[0..1]: group w^1|w^3 parity (blk 2*((w&1)^1)+j2); vVr[2..3]: own parity")
    e(f"s_and_b32 s{sT1}, s{sW}, 1")
    e(f"s_lshl_b32 s{sT1}, s{sT1}, 6")
    e(f"v_xor_b32 v{vVr[2]}, s{sT1}, v{vVr[0]}")
    e(f"v_xor_b32 v{vVr[3]}, 32, v{vVr[2]}")
    e(f"v_xor_b32 v{vVr[0]}, 64, v{vVr[2]}")
    e(f"v_xor_b32 v{vVr[1]}, 64, v{vVr[3]}")
    c("partial slots: own V region + extra")
    e(f"v_add_u32 v{vSl[0]}, s{sVl}, v{vL16}")
    e(f"s_lshl_b32 s{sT1}, s{sW}, 13")
    e(f"s_add_u32 s{sT1}, s{sT1}, {EXTRA}")
    e(f"v_add_u32 v{vSl[1]}, s{sT1}, v{vL16}")
    e(f"v_xor_b32 v{vSr[0]}, 0x18000, v{vSl[0]}")
    e(f"v_xor_b32 v{vSr[1]}, 0x10000, v{vSl[0]}")
    e(f"v_xor_b32 v{vSr[2]}, 0x4000, v{vSl[1]}")
    e(f"v_xor_b32 v{vSr[3]}, 0x8000, v{vSl[0]}")
    c("woT base: WTOFF + (ct*128 + kh*64 + w*16)*4096")
    e(f"s_lshl_b32 s{sWo}, s{sCT}, 3")
    e(f"s_lshl_b32 s{sT1}, s{sKH}, 2")
    e(f"s_add_u32 s{sWo}, s{sWo}, s{sT1}")
    e(f"s_add_u32 s{sWo}, s{sWo}, s{sW}")
    e(f"s_lshl_b32 s{sWo}, s{sWo}, 16")
    e(f"s_add_u32 s{sWo}, s{sWo}, {WTOFF}")
    e("v_and_b32 v30, 15, v1")
    e(f"v_lshlrev_b32 v{vStr}, 4, v30")
    e(f"v_add_u32 v{vStr}, {MAXOFF}, v{vStr}")
    e(f"s_lshl_b32 s{sT1}, s{sW}, 2")
    e(f"v_add_u32 v{vSt}, s{sT1}, v{vStr}")

ACC = 32; XF = 128; WF = 164
def qproj():
    c("x voffset: (4w+i/16)*1024 + ((i%16)^(4w+i/16))*16")
    e(f"s_lshl_b32 s{sT1}, s{sW}, 2")
    e("v_lshrrev_b32 v30, 4, v1")
    e(f"v_add_u32 v30, s{sT1}, v30")
    e("v_xor_b32 v29, v30, v1")
    e("v_and_b32 v29, 15, v29")
    e(f"v_lshlrev_b32 v{vXo[0]}, 10, v30")
    e(f"v_lshl_add_u32 v{vXo[0]}, v29, 4, v{vXo[0]}")
    e(f"s_lshl_b32 s{sXm}, s{sW}, 10")
    e("v_lshrrev_b32 v30, 4, v1")
    e(f"v_lshlrev_b32 v{vWq}, 13, v30")
    e("v_and_b32 v30, 15, v1")
    e(f"v_lshl_add_u32 v{vWq}, v30, 4, v{vWq}")
    e(f"s_lshl_b32 s{sWq}, s{sH}, 8")
    e(f"s_lshl_b32 s{sT1}, s{sW}, 18")
    e(f"s_add_u32 s{sWq}, s{sWq}, s{sT1}")
    xs = {}; wqs = {}
    def xl(ch, m):
        if m == 0:
            e(f"s_add_u32 s{sXc}, s{sR1}, {ch}")
            e(f"s_and_b32 s{sXc}, s{sXc}, {3 if ROT else 0}" if ROT else f"s_mov_b32 s{sXc}, {ch}")
            e(f"s_lshl_b32 s{sWc}, s{sXc}, 20")
            e(f"s_add_u32 s{sWc}, s{sWc}, s{sWq}")
            e(f"s_lshl_b32 s{sXc}, s{sXc}, 8")
            e(f"s_add_u32 s{sXc}, s{sXc}, s{sXB}")
        e(f"s_add_u32 m0, s{sXm}, {XOFF + ch*24576 + m*4096}")
        e(f"s_add_u32 s{sXs}, s{sXc}, {m*16384}")
        xs[ch] = vm(f"buffer_load_dwordx4 v{vXo[0]}, {srd(SX)}, s{sXs} offen lds")
    def wl(ch, i):
        k = ch*8 + i
        e(f"s_add_u32 s{sXs}, s{sWc}, {i*4*8192}")
        wqs[ch] = vm(f"buffer_load_dwordx4 {ar(128+4*k,4)}, v{vWq}, {srd(SWQ)}, s{sXs} offen")
    seqs = [[(xl,ch,m) for m in range(6)] + [(wl,ch,i) for i in range(8)] for ch in range(4)]
    def issue(q, n):
        for _ in range(n):
            if q: it = q.pop(0); it[0](it[1], it[2])
    c("WG0 wave0 publishes the launch tag")
    e(f"s_or_b32 s{sT0}, s2, s{sW}")
    e(f"s_cmp_lg_u32 s{sT0}, 0")
    e("s_cbranch_scc1 L_notag")
    e(f"v_mov_b32 v{vTG}, s{sTAG}")
    e(f"v_mov_b32 v{vTG+1}, 0")
    e("s_mov_b64 exec, 1")
    e(f"buffer_store_dword v{vTG}, v{vTG+1}, {srd(SDBG)}, 0 offen sc1")
    e("s_mov_b64 exec, -1")
    lab("L_notag")
    issue(seqs[0], 99)
    e(f"v_mov_b32 v121, v{vXo[0]}")
    vXo[0] = 121
    addr_setup()
    issue(seqs[1], 99)
    done = [0]
    def piece():
        if done[0]: return
        done[0] = 1
        c("wo piece raw: rows (id>>3)*128 + 32w + 8i + lane/8, cols (id&7)*64")
        e(f"s_lshr_b32 s{sT0}, s2, 3")
        e(f"s_lshl_b32 s{sT0}, s{sT0}, 2")
        e(f"s_add_u32 s{sT0}, s{sT0}, s{sW}")
        e(f"s_lshl_b32 s{sT0}, s{sT0}, 15")
        e(f"s_and_b32 s{sT1}, s2, 7")
        e(f"s_lshl_b32 s{sT1}, s{sT1}, 7")
        e(f"s_add_u32 s{sT0}, s{sT0}, s{sT1}")
        for i in range(4):
            vm(f"buffer_load_dwordx4 {vr(vTmp+4*i,4)}, v{vWo}, {srd(SWO)}, s{sT0} offen")
            e(f"s_add_u32 s{sT0}, s{sT0}, 8192")
    if EARLY:
        issue(seqs[2], 99); issue(seqs[3], 99); piece()
        for _ in range(EARLY-1): k1()
    stamp("issued")
    def rd_frags(S_, buf):
        ch, s = S_//8, S_%8
        for u in range(2):
            e(f"ds_read_b64_tr_b16 {vr(WF+buf*4+u*2,2)}, v{vStR} offset:{(ch&1)*8192 + s*1024 + u*256}")
        for t3 in range(3):
            base = vXa[s] if ch < 2 else 112+s
            e(f"ds_read_b128 {vr(XF+buf*12+t3*4,4)}, v{base} offset:{(ch&1)*24576 + t3*8192}")
    def stage_w(ch, i):
        e(f"ds_write_b128 v{vStW}, {ar(128+(ch*8+i)*4,4)} offset:{(ch&1)*8192 + i*256}")
    wait_for(max(wqs[0], xs[0]))
    for i in range(8): stage_w(0, i)
    for ch in range(4):
        e("s_waitcnt lgkmcnt(0)")
        e("s_barrier")
        if ch == 0: stamp("x_ready")
        rd_frags(ch*8, 0); rd_frags(ch*8+1, 1)
        pend = 10
        q = [5, 5]
        for s in range(8):
            S_ = ch*8 + s; buf = s % 3
            if s < 6: rd_frags(S_+2, (s+2)%3); q.append(5)
            q.pop(0)
            e(f"s_waitcnt lgkmcnt({min(15, sum(q))})")
            for t3 in range(3):
                cin = "0" if S_ == 0 else vr(ACC+t3*16,16)
                e(f"v_mfma_f32_32x32x16_bf16 {vr(ACC+t3*16,16)}, {vr(WF+buf*4,4)}, {vr(XF+buf*12+t3*4,4)}, {cin}")
                if ch == 0: issue(seqs[2] if seqs[2] else seqs[3], 1)
                if (ch == 1 or (EARLY and ch == 0)) and t3 != 1 and kn[0] < K1: k1()
                if ch == 2 and t3 != 1 and kn[0] < K2: k1()
                if ch == 3 and t3 != 1 and kn[0] < K3: k1()
            if ch == 0 and s == 7:
                issue(seqs[2], 99); issue(seqs[3], 99)
                piece()
            if ch < 3 and s >= 4:
                if s == 4: wait_for(max(wqs[ch+1], xs[ch+1]))
                stage_w(ch+1, (s-4)*2); stage_w(ch+1, (s-4)*2+1)
                if q: q[-1] += 2
                else: q.append(2)
    e("s_barrier")
    stamp("qproj_done")
    nop(12)
    for t3 in range(3):
        for t in range(2):
            b0 = ACC + t3*16 + t*8
            for k in range(4):
                e(f"v_cvt_pk_bf16_f32 v{XF+(t3*2+t)*4+k}, v{b0+2*k}, v{b0+2*k+1}")
            e(f"ds_write_b128 v{vQw}, {vr(XF+(t3*2+t)*4,4)} offset:{t3*8192 + t*512}")
    for _ in range(KB):
        if kn[0] < 32: k1()
        else: v1()
    e("s_waitcnt lgkmcnt(0)")
    e("s_barrier")
    e(f"v_add_u32 v30, {QOFF}, v{vL16}")
    for j in range(6):
        for s in range(4):
            e(f"ds_read_b128 {ar(128+(j*4+s)*4,4)}, v30 offset:{(j*4+s)*1024}")

def xreduce(base, op):
    for sw in ("v_permlane32_swap_b32", "v_permlane16_swap_b32"):
        for j in range(6): e(f"v_mov_b32 v{vTmp+j}, v{base+j}")
        nop(2)
        for j in range(6): e(f"{sw} v{base+j}, v{vTmp+j}")
        nop(2)
        for j in range(6): e(f"{op} v{base+j}, v{base+j}, v{vTmp+j}")
def stat_read(off):
    for j in range(5):
        e(f"ds_read_b128 {vr(vTmp+j*4,4)}, v{vStr} offset:{off + j*256}")
    e(f"ds_read_b128 {vr(vXa[1],4)}, v{vStr} offset:{off + 5*256}")
    e("s_waitcnt lgkmcnt(0)")

def poll_loop(lbl):
    e(f"s_mov_b32 s{sCNT}, 0")
    lab(lbl)
    e(f"buffer_load_dword v30, v31, {srd(SWS)}, s{sT0} offen sc1")
    e("s_waitcnt vmcnt(0)")
    e(f"v_cmp_ne_u32 vcc, s{sTAG}, v30")
    e(f"s_add_u32 s{sCNT}, s{sCNT}, 1")
    e("s_nop 3")
    e(f"s_cbranch_vccz {lbl}_done")
    e("s_sleep 2")
    e(f"s_cmp_lt_u32 s{sCNT}, 200000")
    e(f"s_cbranch_scc1 {lbl}")
    lab(lbl + "_done")
def flag_store():
    e(f"v_mov_b32 v30, s{sTAG}")
    e("v_mov_b32 v31, 0")
    e("s_mov_b64 exec, 1")
    e(f"buffer_store_dword v30, v31, {srd(SWS)}, s{sT0} offen sc1")
    e("s_mov_b64 exec, -1")
def attention():
    for a in range(8):
        wait_for(kseq[a], " lgkmcnt(0)" if a == 0 else "")
        if a == 0:
            e("v_mov_b32 v19, 0")
            vm(f"buffer_load_dword v7, v19, {srd(SDBG)}, 0 offen sc1")
            c("wo piece: raw -> LDS (own V half-1 region)")
            e("v_lshrrev_b32 v30, 4, v1")
            e("v_lshlrev_b32 v30, 1, v30")
            e("v_xor_b32 v30, v30, v1")
            e(f"v_lshl_add_u32 v30, v30, 4, s{sVl}")
            for i in range(4): e(f"ds_write_b128 v30, {vr(vTmp+4*i,4)} offset:{16384 + i*1024}")
        if a == 1:
            e("s_waitcnt lgkmcnt(0)")
            for g4 in range(4):
                for u in range(2):
                    e(f"ds_read_b64_tr_b16 {vr(vTmp+g4*4+2*u,2)}, v{vVr[g4]} offset:{16384 + u*2048}")
        if a == 2:
            c("store frags: WTOFF + ((id&7)*128 + (id>>3)*4 + w)*4096 + jj*1024")
            e(f"s_and_b32 s{sT0}, s2, 7")
            e(f"s_lshl_b32 s{sT0}, s{sT0}, 7")
            e(f"s_lshr_b32 s{sT1}, s2, 3")
            e(f"s_lshl_b32 s{sT1}, s{sT1}, 2")
            e(f"s_add_u32 s{sT0}, s{sT0}, s{sT1}")
            e(f"s_add_u32 s{sT0}, s{sT0}, s{sW}")
            e(f"s_lshl_b32 s{sT0}, s{sT0}, 12")
            e(f"s_add_u32 s{sT0}, s{sT0}, {WTOFF}")
            e(f"s_and_b32 s{sT1}, s{sW}, 1")
            e(f"s_lshl_b32 s{sT1}, s{sT1}, 11")
            e(f"s_add_u32 s{sT2}, s{sT0}, s{sT1}")
            e(f"s_xor_b32 s{sT1}, s{sT1}, 2048")
            e(f"s_add_u32 s{sT0}, s{sT0}, s{sT1}")
            e("s_waitcnt lgkmcnt(0)")
            for g4 in range(4):
                PST[0] = vm(f"buffer_store_dwordx4 {vr(vTmp+g4*4,4)}, v{vL16}, {srd(SWS)}, s{sT0 if g4 < 2 else sT2} offen offset:{(g4&1)*1024} sc1")
        for s in range(4):
            for j in range(6):
                cin = "0" if s == 0 else vr(S(a,j),4)
                e(f"v_mfma_f32_16x16x32_bf16 {vr(S(a,j),4)}, {ar((a*4+s)*4,4)}, {ar(128+(j*4+s)*4,4)}, {cin}")
                if j == 2:
                    if kn[0] < 32: k1()
                    elif s < VS: v1()
                if a > 0 and s in (1,2):
                    p = S(a-1,j) + (s-1)*2
                    if a == 1 and s == 1: e(f"v_max_f32 v{vM+j}, v{p}, v{p+1}")
                    else: e(f"v_max3_f32 v{vM+j}, v{vM+j}, v{p}, v{p+1}")
    nop(8)
    stamp("S_done")
    for j in range(6):
        e(f"v_max3_f32 v{vM+j}, v{vM+j}, v{S(7,j)}, v{S(7,j)+1}")
        e(f"v_max3_f32 v{vM+j}, v{vM+j}, v{S(7,j)+2}, v{S(7,j)+3}")
    xreduce(vM, "v_max_f32")
    for j in range(6): e(f"ds_write_b32 v{vSt}, v{vM+j} offset:{j*256}")
    e("s_waitcnt lgkmcnt(0)")
    if kseq[7] < PST[0]: wait_for(PST[0])
    e("s_barrier")
    c("launch tag (fallback: poll until published)")
    e(f"v_readfirstlane_b32 s{sTAG}, v7")
    e(f"s_mov_b32 s{sCNT}, 0")
    lab("L_tagpoll")
    e(f"s_cmp_lg_u32 s{sTAG}, 0")
    e("s_cbranch_scc1 L_tagok")
    e(f"buffer_load_dword v7, v19, {srd(SDBG)}, 0 offen sc1")
    e("s_waitcnt vmcnt(0)")
    e(f"v_readfirstlane_b32 s{sTAG}, v7")
    e(f"s_add_u32 s{sCNT}, s{sCNT}, 1")
    e(f"s_cmp_lt_u32 s{sCNT}, 200000")
    e("s_cbranch_scc1 L_tagpoll")
    lab("L_tagok")
    e(f"s_cmp_lg_u32 s{sW}, 0")
    e("s_cbranch_scc1 L_sigw")
    e(f"s_and_b32 s{sT0}, s2, 7")
    e(f"s_lshl_b32 s{sT0}, s{sT0}, 7")
    e(f"s_lshr_b32 s{sT1}, s2, 3")
    e(f"s_lshl_b32 s{sT1}, s{sT1}, 2")
    e(f"s_add_u32 s{sT0}, s{sT0}, s{sT1}")
    e(f"s_add_u32 s{sT0}, s{sT0}, {FOFF + 4096}")
    flag_store()
    lab("L_sigw")
    stat_read(0)
    for j in range(6):
        b0 = vTmp + j*4 if j < 5 else vXa[1]
        e(f"v_max3_f32 v{b0}, v{b0}, v{b0+1}, v{b0+2}")
        e(f"v_max_f32 v{b0}, v{b0}, v{b0+3}")
        e(f"v_mul_f32 v{224+2*j}, s{sC}, v{b0}")
        e(f"v_mul_f32 v{225+2*j}, s{sC}, v{b0}")
    e(f"s_mov_b32 s66, s{sC}"); e(f"s_mov_b32 s67, s{sC}")
    e("v_mov_b32 v30, 0x3f803f80")
    for i in range(4): e(f"v_accvgpr_write_b32 a{96+i}, v30")
    pend = None
    def summ(p):
        j_, s_ = p
        cin = "0" if s_ == 0 else ar(112+4*j_,4)
        e(f"v_mfma_f32_16x16x32_bf16 {ar(112+4*j_,4)}, a[96:99], {vr(S(2*s_,j_),4)}, {cin}")
    for j in range(6):
        for s in range(4):
            regs8 = [S(2*s,j)+i for i in range(4)] + [S(2*s+1,j)+i for i in range(4)]
            for r in regs8[::2]: e(f"v_pk_fma_f32 {vr(r,2)}, {vr(r,2)}, s[66:67], {vr(224+2*j,2)} neg_lo:[0,0,1] neg_hi:[0,0,1]")
            if pend: summ(pend)
            if vn[0] < 16 or (j*4+s) % VD == 0: v1()
            for r in regs8: e(f"v_exp_f32 v{r}, v{r}")
            e("s_nop 0")
            for k in range(4):
                e(f"v_cvt_pk_bf16_f32 v{S(2*s,j)+k}, v{regs8[2*k]}, v{regs8[2*k+1]}")
            pend = (j, s)
    nop(2)
    summ(pend)
    nop(8)
    for j in range(6): e(f"v_accvgpr_read_b32 v{vTmp+j}, a{112+4*j}")
    for j in range(6): e(f"ds_write_b32 v{vSt}, v{vTmp+j} offset:{SUMOFF - MAXOFF + j*256}")
    e("s_waitcnt lgkmcnt(0)")
    e("s_barrier")
    stat_read(SUMOFF - MAXOFF)
    for j in range(6):
        b0 = vTmp + j*4 if j < 5 else vXa[1]
        e(f"v_add_f32 v{b0}, v{b0}, v{b0+1}")
        e(f"v_add_f32 v{b0+2}, v{b0+2}, v{b0+3}")
        e(f"v_add_f32 v{b0}, v{b0}, v{b0+2}")
        e(f"v_rcp_f32 v{224+2*j}, v{b0}")
        e(f"v_rcp_f32 v{225+2*j}, v{b0}")
    stamp("softmax_done")
    def vfr(hf, s, buf):
        for g4 in range(4):
            for u in range(2):
                e(f"ds_read_b64_tr_b16 {ar(VA+buf*16+g4*4+2*u,2)}, v{vVr[g4]} offset:{hf*16384 + s*4096 + u*2048}")
    def phase(hf, cinit):
        wait_for(vseq[(hf,0)])
        vfr(hf, 0, 0)
        for s in range(4):
            if s < 3:
                wait_for(vseq[(hf,s+1)])
                if s == 2 and hf == 1: stamp("V3_ready")
                vfr(hf, s+1, (s+1)&1)
                if hf == 1:
                    if s == 0:
                        e(f"v_cmp_ne_u32 vcc, s{sTAG}, v7")
                        e("s_nop 4")
                        e("s_cbranch_vccz L_pollw_done")
                        e(f"s_mov_b32 s{sT0}, s{sXc}")
                        e("v_mov_b32 v31, v19")
                        poll_loop("L_pollw")
                    for _ in range(WP): w1()
                e("s_waitcnt lgkmcnt(8)")
            else: e("s_waitcnt lgkmcnt(0)")
            for g4 in range(4):
                for j in range(6):
                    d = ACCT(g4*6 + j)
                    cin = "0" if (s == 0 and not (cinit and g4 >= 2)) else vr(d,4)
                    e(f"v_mfma_f32_16x16x32_bf16 {vr(d,4)}, {ar(VA+(s&1)*16+g4*4,4)}, {vr(S(2*s,j),4)}, {cin}")
                    if j == 3: v1()
    while vn[0] < 16: v1()
    c("PV phase I: groups w^3 (tiles 0..11), w^2 (tiles 12..23)")
    phase(0, False)
    while vn[0] < 32: v1()
    stamp("f2_pv1")
    nop(4)
    for tt in range(24):
        if tt < 16: e(f"ds_write_b128 v{vSl[0]}, {vr(ACCT(tt),4)} offset:{tt*1024}")
        else: e(f"ds_write_b128 v{vSl[1]}, {vr(ACCT(tt),4)} offset:{(tt-16)*1024}")
    e("s_waitcnt lgkmcnt(0)")
    e("s_barrier")
    stamp("f2_bar1")
    c("own group init = partial(w^3 tiles 0..11) + partial(w^2 tiles 12..23)")
    for t in range(12):
        e(f"ds_read_b128 {vr(ACCT(12+t),4)}, v{vSr[0]} offset:{t*1024}")
        if t < 4: e(f"ds_read_b128 {vr(ACCT(t),4)}, v{vSr[1]} offset:{(12+t)*1024}")
        else: e(f"ds_read_b128 {vr(ACCT(t),4)}, v{vSr[2]} offset:{(t-4)*1024}")
    e("s_waitcnt lgkmcnt(0)")
    for t in range(12):
        for i in (0,2): e(f"v_pk_add_f32 {vr(ACCT(12+t)+i,2)}, {vr(ACCT(12+t)+i,2)}, {vr(ACCT(t)+i,2)}")
    nop(2)
    stamp("f2_init")
    c("PV phase II: groups w^1 (tiles 0..11, C=0), w (tiles 12..23)")
    for s in range(4):
        wait_for(vseq[(1,s)])
        if s == 3: stamp("V3_ready")
        vfr(1, s, s&1)
        if s == 1:
            e(f"v_cmp_ne_u32 vcc, s{sTAG}, v7")
            e("s_nop 4")
            e("s_cbranch_vccz L_pollw_done")
            e(f"s_mov_b32 s{sT0}, s{sXc}")
            e("v_mov_b32 v31, v19")
            poll_loop("L_pollw")
        e("s_waitcnt lgkmcnt(4)")
        for g4 in range(4):
            if g4 == 2: e("s_waitcnt lgkmcnt(0)" if s < 3 else "s_waitcnt lgkmcnt(0)")
            for j in range(6):
                d = ACCT(g4*6 + j)
                cin = "0" if (s == 0 and g4 < 2) else vr(d,4)
                e(f"v_mfma_f32_16x16x32_bf16 {vr(d,4)}, {ar(VA+(s&1)*16+g4*4,4)}, {vr(S(2*s,j),4)}, {cin}")
                if s == 3 and g4 >= 2:
                    t = (g4-2)*6 + j - 3
                    if t >= 0: e(f"ds_write_b128 v{vSl[0]}, {vr(ACCT(t),4)} offset:{16384 + t*1024}")
                elif s >= 1 and j in (1,4) and wn[0] < WP*s: w1()
    for t in range(9,12):
        e(f"ds_write_b128 v{vSl[0]}, {vr(ACCT(t),4)} offset:{16384 + t*1024}")
    for _ in range(WE): w1()
    e("s_waitcnt lgkmcnt(0)")
    e("s_barrier")
    for t in range(12):
        e(f"ds_read_b128 {vr(ACCT(t),4)}, v{vSr[3]} offset:{16384 + t*1024}")
    e("s_waitcnt lgkmcnt(0)")
    for t in range(12):
        for i in (0,2): e(f"v_pk_add_f32 {vr(ACCT(12+t)+i,2)}, {vr(ACCT(12+t)+i,2)}, {vr(ACCT(t)+i,2)}")
VA = 192
def ACCT(tt): return S(1 + 2*(tt//6), tt%6)
def outproj_g():
    f1p = [f"s_lshr_b32 s{sT0}, s{sH}, 4", f"s_lshl_b32 s{sT1}, s{sB}, 1", f"s_add_u32 s{sT0}, s{sT0}, s{sT1}", f"s_lshl_b32 s{sT0}, s{sT0}, 2"]
    f1c = [f"s_lshl_b32 s{sT1}, s{sB2}, 1", f"s_add_u32 s{sT0}, s{sKH}, s{sT1}", f"s_lshl_b32 s{sT0}, s{sT0}, 2"]
    stamp("f2_sum")
    c("normalize, pack, store O frags")
    e(f"s_lshl_b32 s{sT0}, s{sB}, 5")
    e(f"s_add_u32 s{sT0}, s{sT0}, s{sH}")
    e(f"s_lshl_b32 s{sT0}, s{sT0}, 2")
    e(f"s_add_u32 s{sT0}, s{sT0}, s{sW}")
    e(f"s_mul_i32 s{sT0}, s{sT0}, 6144")
    for j in range(6):
        for j2 in range(2):
            b0 = ACCT(12+j2*6+j)
            for i in (0,2): e(f"v_pk_mul_f32 {vr(b0+i,2)}, {vr(b0+i,2)}, {vr(224+2*j,2)}")
        d = ACCT(j)
        for j2 in range(2):
            b0 = ACCT(12+j2*6+j)
            e(f"v_cvt_pk_bf16_f32 v{d+2*j2}, v{b0}, v{b0+1}")
            e(f"v_cvt_pk_bf16_f32 v{d+2*j2+1}, v{b0+2}, v{b0+3}")
        if j == 4: e(f"s_add_u32 s{sT0}, s{sT0}, 4096")
        ost = vm(f"buffer_store_dwordx4 {vr(d,4)}, v{vL16}, {srd(SWS)}, s{sT0} offen offset:{(j%4)*1024} sc1")
    stamp("f2_stissued")
    WCAP[0] = 64
    for _ in range(WA): w1()
    wait_for(ost)
    e("s_barrier")
    stamp("O_stored")
    e(f"s_cmp_lg_u32 s{sW}, 0")
    e("s_cbranch_scc1 L_sig1")
    e(f"s_lshr_b32 s{sT0}, s{sH}, 4")
    e(f"s_lshl_b32 s{sT1}, s{sB}, 1")
    e(f"s_add_u32 s{sT0}, s{sT0}, s{sT1}")
    e(f"s_lshl_b32 s{sT0}, s{sT0}, 7")
    e(f"s_and_b32 s{sT1}, s{sH}, 15")
    e(f"s_lshl_b32 s{sT1}, s{sT1}, 2")
    e(f"s_add_u32 s{sT0}, s{sT0}, s{sT1}")
    e(f"s_add_u32 s{sT0}, s{sT0}, {FOFF}")
    flag_store()
    lab("L_sig1")
    WCAP[0] = 64
    while wn[0] < 64: w1()
    def FRG(ks, jj): return WR(ks*4 + jj)
    e(f"s_cmp_lg_u32 s{sW}, 0")
    e("s_cbranch_scc1 L_poll1_done")
    e(f"s_lshl_b32 s{sT0}, s{sB2}, 1")
    e(f"s_add_u32 s{sT0}, s{sT0}, s{sKH}")
    e(f"s_lshl_b32 s{sT0}, s{sT0}, 7")
    e(f"s_add_u32 s{sT0}, s{sT0}, {FOFF}")
    e("v_and_b32 v31, 15, v1")
    e("v_lshlrev_b32 v31, 2, v31")
    poll_loop("L_poll1")
    e("s_barrier")
    stamp("poll_done")
    e(f"s_lshl_b32 s{sOB}, s{sB2}, 5")
    e(f"s_lshl_b32 s{sT0}, s{sKH}, 4")
    e(f"s_add_u32 s{sOB}, s{sOB}, s{sT0}")
    e(f"s_lshl_b32 s{sT0}, s{sW}, 2")
    e(f"s_add_u32 s{sOB}, s{sOB}, s{sT0}")
    e(f"s_mul_i32 s{sOB}, s{sOB}, 24576")
    e(f"s_mul_i32 s{sT0}, s{sQH}, 3072")
    e(f"s_add_u32 s{sOB}, s{sOB}, s{sT0}")
    OA = 200; oseq = {}; RING = 14
    def oload(ks):
        e(f"s_add_u32 s{sT0}, s{sROT}, {ks}")
        e(f"s_and_b32 s{sT0}, s{sT0}, 15")
        e(f"s_mul_i32 s{sT0}, s{sT0}, 6144")
        e(f"s_add_u32 s{sT0}, s{sT0}, s{sOB}")
        for jq in range(3):
            oseq[ks] = vm(f"buffer_load_dwordx4 {vr(32 + ((ks%RING)*3+jq)*4,4)}, v{vL16}, {srd(SWS)}, s{sT0} offen offset:{jq*1024} sc1")
    for ks in range(OPRE): oload(ks)
    for ks in range(16):
        wait_for(oseq[ks])
        for jq in range(3):
            for jj in range(4):
                d = OA + (jj*3+jq)*4
                cin = "0" if ks == 0 else vr(d,4)
                e(f"v_mfma_f32_16x16x32_bf16 {vr(d,4)}, {ar(FRG(ks,jj),4)}, {vr(32+((ks%RING)*3+jq)*4,4)}, {cin}")
            if jq == 0 and ks + OPRE < 16: oload(ks+OPRE)
    nop(8)
    stamp("oproj_done")
    c("cross-wave reduce: wave w sums n16 tile jj=w (3 q tiles)")
    e(f"s_mul_i32 s{sT1}, s{sW}, 12288")
    e(f"v_add_u32 v30, s{sT1}, v{vL16}")
    e("s_barrier")
    for t in range(12):
        e(f"ds_write_b128 v30, {vr(OA+t*4,4)} offset:{t*1024}")
    e("s_waitcnt lgkmcnt(0)")
    e("s_barrier")
    e(f"s_mul_i32 s{sT1}, s{sW}, 3072")
    e(f"v_add_u32 v30, s{sT1}, v{vL16}")
    for ww in range(4):
        for jq in range(3):
            e(f"ds_read_b128 {vr(32+(ww*3+jq)*4,4)}, v30 offset:{ww*12288 + jq*1024}")
    e("s_waitcnt lgkmcnt(0)")
    for r in range(12):
        e(f"v_add_f32 v{32+r}, v{32+r}, v{44+r}")
        e(f"v_add_f32 v{56+r}, v{56+r}, v{68+r}")
        e(f"v_add_f32 v{32+r}, v{32+r}, v{56+r}")
    c("waves with (w>>1) != kh send their tile to the partner; others receive")
    e(f"s_lshr_b32 s{sT0}, s{sW}, 1")
    e(f"s_and_b32 s{sT2}, s{sW}, 1")
    e(f"s_lshl_b32 s{sT2}, s{sT2}, 12")
    e(f"s_cmp_eq_u32 s{sT0}, s{sKH}")
    e("s_cbranch_scc1 L_recv")
    e(f"s_lshl_b32 s{sT1}, s2, 13")
    e(f"s_add_u32 s{sT1}, s{sT1}, s{sT2}")
    e(f"s_add_u32 s{sT1}, s{sT1}, {POFF}")
    for g_ in range(4):
        for i in range(3): e(f"v_mov_b32 v{80+g_*4+i}, v{32+g_*3+i}")
        e(f"v_mov_b32 v{83+g_*4}, s{sTAG}")
        e(f"buffer_store_dwordx4 {vr(80+g_*4,4)}, v{vL16}, {srd(SWS)}, s{sT1} offen offset:{g_*1024} sc1")
    e("s_branch L_fin")
    lab("L_recv")
    e(f"s_xor_b32 s{sT3}, s2, 1")
    e(f"s_lshl_b32 s{sT3}, s{sT3}, 13")
    e(f"s_add_u32 s{sT3}, s{sT3}, s{sT2}")
    e(f"s_add_u32 s{sT3}, s{sT3}, {POFF}")
    c("out offset = ((b2*96 + 48qh + 16jq + q)*512 + 64ct + 16w + 4g')*2")
    e(f"s_mul_i32 s{sT0}, s{sB2}, 96")
    e(f"s_mul_i32 s{sT1}, s{sQH}, 48")
    e(f"s_add_u32 s{sT0}, s{sT0}, s{sT1}")
    e(f"s_lshl_b32 s{sT0}, s{sT0}, 10")
    e(f"s_lshl_b32 s{sT1}, s{sCT}, 7")
    e(f"s_add_u32 s{sT0}, s{sT0}, s{sT1}")
    e(f"s_lshl_b32 s{sT1}, s{sW}, 5")
    e(f"s_add_u32 s{sT0}, s{sT0}, s{sT1}")
    e("v_and_b32 v31, 15, v1")
    e("v_lshlrev_b32 v31, 10, v31")
    e("v_lshrrev_b32 v2, 4, v1")
    e("v_lshl_add_u32 v31, v2, 3, v31")
    e(f"s_mov_b32 s{sCNT}, 0")
    lab("L_poll2")
    for g_ in range(4):
        e(f"buffer_load_dwordx4 {vr(80+g_*4,4)}, v{vL16}, {srd(SWS)}, s{sT3} offen offset:{g_*1024} sc1")
    e("s_waitcnt vmcnt(0)")
    e("v_xor_b32 v2, v83, v87")
    e("v_xor_b32 v3, v91, v95")
    e(f"v_xor_b32 v4, s{sTAG}, v83")
    e("v_xor_b32 v5, v87, v91")
    e("v_or_b32 v2, v2, v3")
    e("v_or3_b32 v2, v2, v4, v5")
    e("v_cmp_ne_u32 vcc, 0, v2")
    e(f"s_add_u32 s{sCNT}, s{sCNT}, 1")
    e("s_nop 3")
    e("s_cbranch_vccz L_poll2_done")
    e("s_sleep 1")
    e(f"s_cmp_lt_u32 s{sCNT}, 200000")
    e("s_cbranch_scc1 L_poll2")
    lab("L_poll2_done")
    for r in range(12): e(f"v_add_f32 v{32+r}, v{32+r}, v{80+(r//3)*4+r%3}")
    for jq in range(3):
        e(f"v_cvt_pk_bf16_f32 v{64+jq*2}, v{32+jq*4}, v{33+jq*4}")
        e(f"v_cvt_pk_bf16_f32 v{65+jq*2}, v{34+jq*4}, v{35+jq*4}")
        e(f"buffer_store_dwordx2 {vr(64+jq*2,2)}, v31, {srd(SOUT)}, s{sT0} offen")
        e(f"s_add_u32 s{sT0}, s{sT0}, 16384")
    lab("L_fin")

prologue(); qproj(); attention(); outproj_g()
stamp("end"); stamp_dump()
lab("L_end"); e("s_endpgm")
hdr = open("cdna_kernels/%s.s.ref" % NAME).read().split("; @launch")[0]
out = hdr + "; @launch grid=(256,1,1) block=(256,1,1) lds=163840\n"
out += f""".amdgcn_target "amdgcn-amd-amdhsa--gfx950"
.text
.globl {NAME}_kernel
.p2align 8
.type {NAME}_kernel,@function
{NAME}_kernel:
""" + "\n".join(L) + f"""
.section .rodata,"a"
.p2align 6
.amdhsa_kernel {NAME}_kernel
  .amdhsa_next_free_vgpr 512
  .amdhsa_next_free_sgpr 102
  .amdhsa_accum_offset 256
  .amdhsa_group_segment_fixed_size 0
  .amdhsa_kernarg_size 64
  .amdhsa_user_sgpr_count 2
  .amdhsa_user_sgpr_kernarg_segment_ptr 1
  .amdhsa_system_sgpr_workgroup_id_x 1
.end_amdhsa_kernel
"""
dst = sys.argv[1] if len(sys.argv) > 1 else "cdna_kernels/%s.s" % NAME
open(dst, "w").write(out)
print("wrote", dst, len(L), "lines")
```

```python
import sys, os
L = []
def e(s): L.append("    " + s)
def lab(s): L.append(s + ":")
def c(s): L.append("    ; " + s)
def nop(n):
    while n > 0:
        k = min(n, 16); e(f"s_nop {k-1}"); n -= k
NAME = "standalone__gqa_block_cached__near_ridge"
STAMP = os.environ.get("STAMP")
VPRE = int(os.environ.get("VPRE", "4"))
NT = os.environ.get("NT", " nt")
K1 = int(os.environ.get("K1", "12"))
K2 = int(os.environ.get("K2", "12"))
K3 = int(os.environ.get("K3", "16"))
VS = int(os.environ.get("VS", "1"))
WP = int(os.environ.get("WP", "10"))
ROT = int(os.environ.get("ROT", "0"))
WE = int(os.environ.get("WE", "0"))
OPRE = int(os.environ.get("OPRE", "5"))
WA = int(os.environ.get("WA", "12"))
KB = int(os.environ.get("KB", "4"))
EARLY = int(os.environ.get("EARLY", "0"))
VD = int(os.environ.get("VD", "2"))
NTK = os.environ.get("NTK", " nt")
WS2 = int(os.environ.get("WS2", "0"))
KPRE = int(os.environ.get("KPRE", "4"))
XOFF = 0; STG = 98304; QOFF = 131072; EXTRA = 131072
MAXOFF = 155648; SUMOFF = 160*1024 - 2048
SX, SK, SV, SWQ, SWO, SOUT, SWS, SDBG = 8, 12, 16, 20, 24, 28, 32, 36
sW, sB, sH, sT0, sT1, sT2, sT3 = 40, 41, 42, 43, 44, 45, 46
sKV, sXB, sC, sB2, sQH, sCT, sOB, sWN, sCNT = 47, 48, 49, 50, 51, 52, 53, 54, 55
sVb, sVl, sWo = 56, 57, 58
sKH = 5
sROT = 4; sR1 = 7; sXc = 63; sWc = 64; sWk = 65
sXm, sXs, sWq = 59, 60, 61
POFF = 0x800000
FOFF = 0xA00000
WTOFF = 0xC00000
sTAG = 6
vTG = 122
def srd(r): return f"s[{r}:{r+3}]"
vKo = 2; vXo = [31]; vWq = 7; vL16 = 8; vStW = 9; vStR = 10
vXa = list(range(11,19)); vQw = 19; vVo = 20; vVr = [21,22,23,24]; vSl = [25,26]; vSr = [3,4,5,6]
vSt = 27; vStr = 28; vWo = 29
def S(a,j): return 32 + (a*6+j)*4
vM = 224; vLs = 230; vTmp = 236
def vr(b,n): return f"v[{b}:{b+n-1}]"
def ar(b,n): return f"a[{b}:{b+n-1}]"
stamps = []
def stamp(name):
    if STAMP is None: return
    if os.environ.get("FINE2") and name in ("issued","x_ready","qproj_done","S_done"): return
    if name.startswith("f2") and not os.environ.get("FINE2"): return
    if os.environ.get("FINE") and name in ("softmax_done","V3_ready","O_stored","poll_done","oproj_done"): return
    k = len(stamps); stamps.append(name)
    e(f"s_memrealtime s[{74+2*k}:{75+2*k}]")
    e("s_waitcnt lgkmcnt(0)")
def stamp_dump():
    if STAMP is None: return
    e(f"s_cmp_lg_u32 s{sW}, 0")
    e("s_cbranch_scc1 L_end")
    e("s_mov_b64 exec, 1")
    e(f"s_mov_b32 s{SWS+2}, 0x2000000")
    e(f"s_lshl_b32 s{sT1}, s2, 6")
    e(f"s_add_u32 s{sT1}, s{sT1}, 0x1800000")
    for k in range(len(stamps)):
        e(f"v_mov_b32 v30, s{74+2*k}")
        e(f"v_mov_b32 v31, {k*4}")
        e(f"buffer_store_dword v30, v31, {srd(SWS)}, s{sT1} offen")
        e("s_nop 1")
    L.append("; STAMPS " + ",".join(stamps))

class VM:
    n = 0
def vm(s):
    e(s); VM.n += 1; return VM.n
def wait_for(seq, extra=""):
    k = min(63, VM.n - seq)
    e(f"s_waitcnt vmcnt({k}){extra}")

def prologue():
    e("s_cmp_ge_u32 s2, 256")
    e("s_cbranch_scc1 L_end")
    stamp("start")
    e("s_load_dwordx16 s[56:71], s[0:1], 0")
    e("s_memrealtime s[6:7]")
    e("v_and_b32 v1, 63, v0")
    e("v_lshrrev_b32 v30, 6, v0")
    e("s_nop 0")
    e(f"v_readfirstlane_b32 s{sW}, v30")
    e(f"s_and_b32 s{sT0}, s2, 7")
    e(f"s_lshr_b32 s{sT1}, s2, 3")
    e(f"s_and_b32 s{sT2}, s{sT1}, 3")
    e(f"s_lshl_b32 s{sH}, s{sT0}, 2")
    e(f"s_add_u32 s{sH}, s{sH}, s{sT2}")
    e(f"s_lshr_b32 s{sB}, s{sT1}, 2")
    e(f"s_and_b32 s{sKH}, s{sT0}, 1")
    e(f"s_andn2_b32 s{sB2}, s{sT0}, 1")
    e(f"s_lshr_b32 s{sT3}, s{sT2}, 1")
    e(f"s_add_u32 s{sB2}, s{sB2}, s{sT3}")
    e(f"s_and_b32 s{sQH}, s{sT2}, 1")
    e(f"s_mov_b32 s{sCT}, s{sB}")
    e(f"s_lshl_b32 s{sROT}, s{sT2}, 1")
    e(f"s_add_u32 s{sROT}, s{sROT}, s{sCT}")
    e(f"s_lshl_b32 s{sROT}, s{sROT}, 1")
    e(f"s_and_b32 s{sROT}, s{sROT}, 15")
    e(f"s_lshl_b32 s{sKV}, s{sB}, 5")
    e(f"s_add_u32 s{sKV}, s{sKV}, s{sH}")
    e(f"s_lshl_b32 s{sKV}, s{sKV}, 17")
    e(f"s_lshl_b32 s{sT3}, s{sW}, 15")
    e(f"s_add_u32 s{sKV}, s{sKV}, s{sT3}")
    e(f"s_mul_i32 s{sXB}, s{sB}, 98304")
    e(f"s_add_u32 s{sWN}, s{sW}, 1")
    e(f"s_and_b32 s{sWN}, s{sWN}, 3")
    e(f"s_mov_b32 s{sC}, 0x3e0293ee")
    e("v_and_b32 v30, 15, v1")
    e("v_lshrrev_b32 v31, 4, v1")
    e(f"v_lshlrev_b32 v{vKo}, 8, v30")
    e(f"v_lshl_add_u32 v{vKo}, v31, 4, v{vKo}")
    e(f"v_lshlrev_b32 v{vL16}, 4, v1")
    e("s_waitcnt lgkmcnt(0)")
    e(f"s_or_b32 s{sTAG}, s{sTAG}, 1")
    e(f"s_add_u32 s{sR1}, s{sB}, s{sH}")
    sizes = [786432, 33554432, 33554432, 4194304, 4194304, 786432, 256, WTOFF + 0x400000]
    regs = [SX, SK, SV, SWQ, SWO, SOUT, SDBG, SWS]
    for i,(r,sz) in enumerate(zip(regs,sizes)):
        e(f"s_mov_b32 s{r}, s{56+2*i}")
        e(f"s_and_b32 s{r+1}, s{57+2*i}, 0xffff")
        e(f"s_mov_b32 s{r+2}, {sz}")
        e(f"s_mov_b32 s{r+3}, 0x00020000")

kseq = {}; kn = [0]; TAGSEQ = [0]; PST = [0]
def k1():
    if kn[0] >= 32: return
    a, s_ = kn[0]//4, kn[0]%4; kn[0] += 1
    if s_ == 0: e(f"s_add_u32 s{sCNT}, s{sKV}, {a*4096}")
    kseq[a] = vm(f"buffer_load_dwordx4 {ar((a*4+s_)*4,4)}, v{vKo}, {srd(SK)}, s{sCNT} offen offset:{s_*64}{NTK}")
vseq = {}; vn = [0]
def v1():
    if vn[0] >= 32: return
    hf, i = vn[0]//16, vn[0]%16; vn[0] += 1
    if hf == 1 and i == 4:
        e(f"s_lshl_b32 s{sWk}, s{sCT}, 7")
        e(f"s_lshl_b32 s{sCNT}, s{sKH}, 6")
        e(f"s_add_u32 s{sWk}, s{sWk}, s{sCNT}")
        e(f"s_add_u32 s{sXc}, s{sWk}, {FOFF + 4096}")
        e("v_and_b32 v19, 15, v1")
        e("v_lshlrev_b32 v19, 2, v19")
        vm(f"buffer_load_dword v7, v19, {srd(SWS)}, s{sXc} offen sc1")
    if i == 0:
        e(f"s_lshr_b32 s{sVb}, s{sW}, 1")
        if hf == 0: e(f"s_xor_b32 s{sVb}, s{sVb}, 1")
        e(f"s_lshl_b32 s{sVb}, s{sVb}, 7")
        e(f"s_add_u32 s{sVb}, s{sVb}, s{sKV}")
    e(f"s_add_u32 m0, s{sVl}, {hf*16384 + i*1024}")
    e(f"s_add_u32 s{sCNT}, s{sVb}, {i*2048}")
    vseq[(hf,i//4)] = vm(f"buffer_load_dwordx4 v{vVo}, {srd(SV)}, s{sCNT} offen{NT} lds")
wn = [0]; WCAP = [56]; WSEQ = {}
def WR(i): return 224 + 4*i if i < 8 else 4*(i-8)
def w1():
    if wn[0] >= WCAP[0]: return
    i = wn[0]; wn[0] += 1
    if i % 4 == 0:
        e(f"s_add_u32 s{sWk}, s{sROT}, {i//4}")
        e(f"s_and_b32 s{sWk}, s{sWk}, 15")
        e(f"s_lshl_b32 s{sWk}, s{sWk}, 12")
        e(f"s_add_u32 s{sWk}, s{sWk}, s{sWo}")
    WSEQ[i] = vm(f"buffer_load_dwordx4 {ar(WR(i),4)}, v{vL16}, {srd(SWS)}, s{sWk} offen offset:{(i%4)*1024} sc1")

def addr_setup():
    e(f"s_lshl_b32 s{sT1}, s{sW}, 14")
    e(f"s_add_u32 s{sT1}, s{sT1}, {STG}")
    c("staging write: cg*16384 + (32w + i/16)*64 + (i%4)*16")
    e("v_bfe_u32 v30, v1, 2, 2")
    e(f"v_lshlrev_b32 v{vStW}, 14, v30")
    e("v_lshrrev_b32 v30, 4, v1")
    e(f"v_lshl_add_u32 v{vStW}, v30, 6, v{vStW}")
    e("v_and_b32 v30, 3, v1")
    e(f"v_lshl_add_u32 v{vStW}, v30, 4, v{vStW}")
    e(f"s_lshl_b32 s{sT2}, s{sW}, 11")
    e(f"s_add_u32 s{sT2}, s{sT2}, {STG}")
    e(f"v_add_u32 v{vStW}, s{sT2}, v{vStW}")
    e("v_lshrrev_b32 v30, 5, v1")
    e("v_lshlrev_b32 v30, 3, v30")
    e("v_bfe_u32 v31, v1, 2, 2")
    e("v_add_u32 v30, v30, v31")
    e(f"v_lshlrev_b32 v{vStR}, 6, v30")
    e("v_bfe_u32 v30, v1, 4, 1")
    e(f"v_lshl_add_u32 v{vStR}, v30, 5, v{vStR}")
    e("v_and_b32 v30, 1, v1")
    e(f"v_lshl_add_u32 v{vStR}, v30, 4, v{vStR}")
    e("v_bfe_u32 v30, v1, 1, 1")
    e(f"v_lshl_add_u32 v{vStR}, v30, 3, v{vStR}")
    e(f"v_add_u32 v{vStR}, s{sT1}, v{vStR}")
    e("v_and_b32 v30, 31, v1")
    e("v_lshlrev_b32 v30, 8, v30")
    e("v_lshrrev_b32 v31, 5, v1")
    for lo in range(8):
        e(f"v_add_u32 v{vXa[lo]}, {2*lo}, v31")
        e(f"v_xor_b32 v{vXa[lo]}, v{vXa[lo]}, v1")
        e(f"v_and_b32 v{vXa[lo]}, 15, v{vXa[lo]}")
        e(f"v_lshl_add_u32 v{vXa[lo]}, v{vXa[lo]}, 4, v30")
        e(f"v_add_u32 v{112+lo}, 0xc000, v{vXa[lo]}")
    e("v_bfe_u32 v30, v1, 4, 1")
    e(f"v_lshlrev_b32 v{vQw}, 12, v30")
    e("v_and_b32 v30, 15, v1")
    e(f"v_lshl_add_u32 v{vQw}, v30, 4, v{vQw}")
    e("v_lshrrev_b32 v30, 5, v1")
    e(f"v_lshl_add_u32 v{vQw}, v30, 8, v{vQw}")
    e(f"s_lshl_b32 s{sT1}, s{sW}, 10")
    e(f"s_add_u32 s{sT1}, s{sT1}, {QOFF}")
    e(f"v_add_u32 v{vQw}, s{sT1}, v{vQw}")
    c("V dma: (i/8)*256 + (((i%8)/2 ^ ((i/16)&3))*2 + (i&1))*16 ; wo: (i/8)*1024 + (i%8)*16")
    e("v_lshrrev_b32 v30, 4, v1")
    e("v_lshlrev_b32 v30, 1, v30")
    e("v_xor_b32 v30, v30, v1")
    e("v_and_b32 v30, 7, v30")
    e("v_lshrrev_b32 v120, 3, v1")
    e(f"v_lshlrev_b32 v{vVo}, 8, v120")
    e(f"v_lshl_add_u32 v{vVo}, v30, 4, v{vVo}")
    e("v_and_b32 v30, 7, v1")
    e(f"v_lshlrev_b32 v{vWo}, 10, v120")
    e(f"v_lshl_add_u32 v{vWo}, v30, 4, v{vWo}")
    c("tr read base0: w*32768 + (lane>>2)*128 + (((lane>>3)&3)*32) + (lane&3)*8 ; blk b -> ^ b*32")
    e("v_lshrrev_b32 v30, 2, v1")
    e(f"v_lshlrev_b32 v{vVr[0]}, 7, v30")
    e("v_bfe_u32 v30, v1, 3, 2")
    e(f"v_lshl_add_u32 v{vVr[0]}, v30, 5, v{vVr[0]}")
    e("v_and_b32 v30, 3, v1")
    e(f"v_lshl_add_u32 v{vVr[0]}, v30, 3, v{vVr[0]}")
    e(f"s_lshl_b32 s{sVl}, s{sW}, 15")
    e(f"v_add_u32 v{vVr[0]}, s{sVl}, v{vVr[0]}")
    c("vVr[0..1]: group w^1|w^3 parity (blk 2*((w&1)^1)+j2); vVr[2..3]: own parity")
    e(f"s_and_b32 s{sT1}, s{sW}, 1")
    e(f"s_lshl_b32 s{sT1}, s{sT1}, 6")
    e(f"v_xor_b32 v{vVr[2]}, s{sT1}, v{vVr[0]}")
    e(f"v_xor_b32 v{vVr[3]}, 32, v{vVr[2]}")
    e(f"v_xor_b32 v{vVr[0]}, 64, v{vVr[2]}")
    e(f"v_xor_b32 v{vVr[1]}, 64, v{vVr[3]}")
    c("partial slots: own V region + extra")
    e(f"v_add_u32 v{vSl[0]}, s{sVl}, v{vL16}")
    e(f"s_lshl_b32 s{sT1}, s{sW}, 13")
    e(f"s_add_u32 s{sT1}, s{sT1}, {EXTRA}")
    e(f"v_add_u32 v{vSl[1]}, s{sT1}, v{vL16}")
    e(f"v_xor_b32 v{vSr[0]}, 0x18000, v{vSl[0]}")
    e(f"v_xor_b32 v{vSr[1]}, 0x10000, v{vSl[0]}")
    e(f"v_xor_b32 v{vSr[2]}, 0x4000, v{vSl[1]}")
    e(f"v_xor_b32 v{vSr[3]}, 0x8000, v{vSl[0]}")
    c("woT base: WTOFF + (ct*128 + kh*64 + w*16)*4096")
    e(f"s_lshl_b32 s{sWo}, s{sCT}, 3")
    e(f"s_lshl_b32 s{sT1}, s{sKH}, 2")
    e(f"s_add_u32 s{sWo}, s{sWo}, s{sT1}")
    e(f"s_add_u32 s{sWo}, s{sWo}, s{sW}")
    e(f"s_lshl_b32 s{sWo}, s{sWo}, 16")
    e(f"s_add_u32 s{sWo}, s{sWo}, {WTOFF}")
    e("v_and_b32 v30, 15, v1")
    e(f"v_lshlrev_b32 v{vStr}, 4, v30")
    e(f"v_add_u32 v{vStr}, {MAXOFF}, v{vStr}")
    e(f"s_lshl_b32 s{sT1}, s{sW}, 2")
    e(f"v_add_u32 v{vSt}, s{sT1}, v{vStr}")

ACC = 32; XF = 128; WF = 164
def qproj():
    c("x voffset: (4w+i/16)*1024 + ((i%16)^(4w+i/16))*16")
    e(f"s_lshl_b32 s{sT1}, s{sW}, 2")
    e("v_lshrrev_b32 v30, 4, v1")
    e(f"v_add_u32 v30, s{sT1}, v30")
    e("v_xor_b32 v29, v30, v1")
    e("v_and_b32 v29, 15, v29")
    e(f"v_lshlrev_b32 v{vXo[0]}, 10, v30")
    e(f"v_lshl_add_u32 v{vXo[0]}, v29, 4, v{vXo[0]}")
    e(f"s_lshl_b32 s{sXm}, s{sW}, 10")
    e("v_lshrrev_b32 v30, 4, v1")
    e(f"v_lshlrev_b32 v{vWq}, 13, v30")
    e("v_and_b32 v30, 15, v1")
    e(f"v_lshl_add_u32 v{vWq}, v30, 4, v{vWq}")
    e(f"s_lshl_b32 s{sWq}, s{sH}, 8")
    e(f"s_lshl_b32 s{sT1}, s{sW}, 18")
    e(f"s_add_u32 s{sWq}, s{sWq}, s{sT1}")
    xs = {}; wqs = {}
    def xl(ch, m):
        if m == 0:
            e(f"s_add_u32 s{sXc}, s{sR1}, {ch}")
            e(f"s_and_b32 s{sXc}, s{sXc}, {3 if ROT else 0}" if ROT else f"s_mov_b32 s{sXc}, {ch}")
            e(f"s_lshl_b32 s{sWc}, s{sXc}, 20")
            e(f"s_add_u32 s{sWc}, s{sWc}, s{sWq}")
            e(f"s_lshl_b32 s{sXc}, s{sXc}, 8")
            e(f"s_add_u32 s{sXc}, s{sXc}, s{sXB}")
        e(f"s_add_u32 m0, s{sXm}, {XOFF + ch*24576 + m*4096}")
        e(f"s_add_u32 s{sXs}, s{sXc}, {m*16384}")
        xs[ch] = vm(f"buffer_load_dwordx4 v{vXo[0]}, {srd(SX)}, s{sXs} offen lds")
    def wl(ch, i):
        k = ch*8 + i
        e(f"s_add_u32 s{sXs}, s{sWc}, {i*4*8192}")
        wqs[ch] = vm(f"buffer_load_dwordx4 {ar(128+4*k,4)}, v{vWq}, {srd(SWQ)}, s{sXs} offen")
    seqs = [[(xl,ch,m) for m in range(6)] + [(wl,ch,i) for i in range(8)] for ch in range(4)]
    def issue(q, n):
        for _ in range(n):
            if q: it = q.pop(0); it[0](it[1], it[2])
    c("WG0 wave0 publishes the launch tag")
    e(f"s_or_b32 s{sT0}, s2, s{sW}")
    e(f"s_cmp_lg_u32 s{sT0}, 0")
    e("s_cbranch_scc1 L_notag")
    e(f"v_mov_b32 v{vTG}, s{sTAG}")
    e(f"v_mov_b32 v{vTG+1}, 0")
    e("s_mov_b64 exec, 1")
    e(f"buffer_store_dword v{vTG}, v{vTG+1}, {srd(SDBG)}, 0 offen sc1")
    e("s_mov_b64 exec, -1")
    lab("L_notag")
    issue(seqs[0], 99)
    e(f"v_mov_b32 v121, v{vXo[0]}")
    vXo[0] = 121
    addr_setup()
    issue(seqs[1], 99)
    done = [0]
    def piece():
        if done[0]: return
        done[0] = 1
        c("wo piece raw: rows (id>>3)*128 + 32w + 8i + lane/8, cols (id&7)*64")
        e(f"s_lshr_b32 s{sT0}, s2, 3")
        e(f"s_lshl_b32 s{sT0}, s{sT0}, 2")
        e(f"s_add_u32 s{sT0}, s{sT0}, s{sW}")
        e(f"s_lshl_b32 s{sT0}, s{sT0}, 15")
        e(f"s_and_b32 s{sT1}, s2, 7")
        e(f"s_lshl_b32 s{sT1}, s{sT1}, 7")
        e(f"s_add_u32 s{sT0}, s{sT0}, s{sT1}")
        for i in range(4):
            vm(f"buffer_load_dwordx4 {vr(vTmp+4*i,4)}, v{vWo}, {srd(SWO)}, s{sT0} offen")
            e(f"s_add_u32 s{sT0}, s{sT0}, 8192")
    if EARLY:
        issue(seqs[2], 99); issue(seqs[3], 99); piece()
        for _ in range(EARLY-1): k1()
    stamp("issued")
    def rd_frags(S_, buf):
        ch, s = S_//8, S_%8
        for u in range(2):
            e(f"ds_read_b64_tr_b16 {vr(WF+buf*4+u*2,2)}, v{vStR} offset:{(ch&1)*8192 + s*1024 + u*256}")
        for t3 in range(3):
            base = vXa[s] if ch < 2 else 112+s
            e(f"ds_read_b128 {vr(XF+buf*12+t3*4,4)}, v{base} offset:{(ch&1)*24576 + t3*8192}")
    def stage_w(ch, i):
        e(f"ds_write_b128 v{vStW}, {ar(128+(ch*8+i)*4,4)} offset:{(ch&1)*8192 + i*256}")
    wait_for(max(wqs[0], xs[0]))
    for i in range(8): stage_w(0, i)
    for ch in range(4):
        e("s_waitcnt lgkmcnt(0)")
        e("s_barrier")
        if ch == 0: stamp("x_ready")
        rd_frags(ch*8, 0); rd_frags(ch*8+1, 1)
        pend = 10
        q = [5, 5]
        for s in range(8):
            S_ = ch*8 + s; buf = s % 3
            if s < 6: rd_frags(S_+2, (s+2)%3); q.append(5)
            q.pop(0)
            e(f"s_waitcnt lgkmcnt({min(15, sum(q))})")
            for t3 in range(3):
                cin = "0" if S_ == 0 else vr(ACC+t3*16,16)
                e(f"v_mfma_f32_32x32x16_bf16 {vr(ACC+t3*16,16)}, {vr(WF+buf*4,4)}, {vr(XF+buf*12+t3*4,4)}, {cin}")
                if ch == 0: issue(seqs[2] if seqs[2] else seqs[3], 1)
                if (ch == 1 or (EARLY and ch == 0)) and t3 != 1 and kn[0] < K1: k1()
                if ch == 2 and t3 != 1 and kn[0] < K2: k1()
                if ch == 3 and t3 != 1 and kn[0] < K3: k1()
            if ch == 0 and s == 7:
                issue(seqs[2], 99); issue(seqs[3], 99)
                piece()
            if ch < 3 and s >= 4:
                if s == 4: wait_for(max(wqs[ch+1], xs[ch+1]))
                stage_w(ch+1, (s-4)*2); stage_w(ch+1, (s-4)*2+1)
                if q: q[-1] += 2
                else: q.append(2)
    e("s_barrier")
    stamp("qproj_done")
    nop(12)
    for t3 in range(3):
        for t in range(2):
            b0 = ACC + t3*16 + t*8
            for k in range(4):
                e(f"v_cvt_pk_bf16_f32 v{XF+(t3*2+t)*4+k}, v{b0+2*k}, v{b0+2*k+1}")
            e(f"ds_write_b128 v{vQw}, {vr(XF+(t3*2+t)*4,4)} offset:{t3*8192 + t*512}")
    for _ in range(KB):
        if kn[0] < 32: k1()
        else: v1()
    e("s_waitcnt lgkmcnt(0)")
    e("s_barrier")
    e(f"v_add_u32 v30, {QOFF}, v{vL16}")
    for j in range(6):
        for s in range(4):
            e(f"ds_read_b128 {ar(128+(j*4+s)*4,4)}, v30 offset:{(j*4+s)*1024}")

def xreduce(base, op):
    for sw in ("v_permlane32_swap_b32", "v_permlane16_swap_b32"):
        for j in range(6): e(f"v_mov_b32 v{vTmp+j}, v{base+j}")
        nop(2)
        for j in range(6): e(f"{sw} v{base+j}, v{vTmp+j}")
        nop(2)
        for j in range(6): e(f"{op} v{base+j}, v{base+j}, v{vTmp+j}")
def stat_read(off):
    for j in range(5):
        e(f"ds_read_b128 {vr(vTmp+j*4,4)}, v{vStr} offset:{off + j*256}")
    e(f"ds_read_b128 {vr(vXa[1],4)}, v{vStr} offset:{off + 5*256}")
    e("s_waitcnt lgkmcnt(0)")

def poll_loop(lbl):
    e(f"s_mov_b32 s{sCNT}, 0")
    lab(lbl)
    e(f"buffer_load_dword v30, v31, {srd(SWS)}, s{sT0} offen sc1")
    e("s_waitcnt vmcnt(0)")
    e(f"v_cmp_ne_u32 vcc, s{sTAG}, v30")
    e(f"s_add_u32 s{sCNT}, s{sCNT}, 1")
    e("s_nop 3")
    e(f"s_cbranch_vccz {lbl}_done")
    e("s_sleep 2")
    e(f"s_cmp_lt_u32 s{sCNT}, 200000")
    e(f"s_cbranch_scc1 {lbl}")
    lab(lbl + "_done")
def flag_store():
    e(f"v_mov_b32 v30, s{sTAG}")
    e("v_mov_b32 v31, 0")
    e("s_mov_b64 exec, 1")
    e(f"buffer_store_dword v30, v31, {srd(SWS)}, s{sT0} offen sc1")
    e("s_mov_b64 exec, -1")
def attention():
    for a in range(8):
        wait_for(kseq[a], " lgkmcnt(0)" if a == 0 else "")
        if a == 0:
            e("v_mov_b32 v19, 0")
            vm(f"buffer_load_dword v7, v19, {srd(SDBG)}, 0 offen sc1")
            c("wo piece: raw -> LDS (own V half-1 region)")
            e("v_lshrrev_b32 v30, 4, v1")
            e("v_lshlrev_b32 v30, 1, v30")
            e("v_xor_b32 v30, v30, v1")
            e(f"v_lshl_add_u32 v30, v30, 4, s{sVl}")
            for i in range(4): e(f"ds_write_b128 v30, {vr(vTmp+4*i,4)} offset:{16384 + i*1024}")
        if a == 1:
            e("s_waitcnt lgkmcnt(0)")
            for g4 in range(4):
                for u in range(2):
                    e(f"ds_read_b64_tr_b16 {vr(vTmp+g4*4+2*u,2)}, v{vVr[g4]} offset:{16384 + u*2048}")
        if a == 2:
            c("store frags: WTOFF + ((id&7)*128 + (id>>3)*4 + w)*4096 + jj*1024")
            e(f"s_and_b32 s{sT0}, s2, 7")
            e(f"s_lshl_b32 s{sT0}, s{sT0}, 7")
            e(f"s_lshr_b32 s{sT1}, s2, 3")
            e(f"s_lshl_b32 s{sT1}, s{sT1}, 2")
            e(f"s_add_u32 s{sT0}, s{sT0}, s{sT1}")
            e(f"s_add_u32 s{sT0}, s{sT0}, s{sW}")
            e(f"s_lshl_b32 s{sT0}, s{sT0}, 12")
            e(f"s_add_u32 s{sT0}, s{sT0}, {WTOFF}")
            e(f"s_and_b32 s{sT1}, s{sW}, 1")
            e(f"s_lshl_b32 s{sT1}, s{sT1}, 11")
            e(f"s_add_u32 s{sT2}, s{sT0}, s{sT1}")
            e(f"s_xor_b32 s{sT1}, s{sT1}, 2048")
            e(f"s_add_u32 s{sT0}, s{sT0}, s{sT1}")
            e("s_waitcnt lgkmcnt(0)")
            for g4 in range(4):
                PST[0] = vm(f"buffer_store_dwordx4 {vr(vTmp+g4*4,4)}, v{vL16}, {srd(SWS)}, s{sT0 if g4 < 2 else sT2} offen offset:{(g4&1)*1024} sc1")
        for s in range(4):
            for j in range(6):
                cin = "0" if s == 0 else vr(S(a,j),4)
                e(f"v_mfma_f32_16x16x32_bf16 {vr(S(a,j),4)}, {ar((a*4+s)*4,4)}, {ar(128+(j*4+s)*4,4)}, {cin}")
                if j == 2:
                    if kn[0] < 32: k1()
                    elif s < VS: v1()
                if a > 0 and s in (1,2):
                    p = S(a-1,j) + (s-1)*2
                    if a == 1 and s == 1: e(f"v_max_f32 v{vM+j}, v{p}, v{p+1}")
                    else: e(f"v_max3_f32 v{vM+j}, v{vM+j}, v{p}, v{p+1}")
    nop(8)
    stamp("S_done")
    for j in range(6):
        e(f"v_max3_f32 v{vM+j}, v{vM+j}, v{S(7,j)}, v{S(7,j)+1}")
        e(f"v_max3_f32 v{vM+j}, v{vM+j}, v{S(7,j)+2}, v{S(7,j)+3}")
    xreduce(vM, "v_max_f32")
    for j in range(6): e(f"ds_write_b32 v{vSt}, v{vM+j} offset:{j*256}")
    e("s_waitcnt lgkmcnt(0)")
    if kseq[7] < PST[0]: wait_for(PST[0])
    e("s_barrier")
    c("launch tag (fallback: poll until published)")
    e(f"v_readfirstlane_b32 s{sTAG}, v7")
    e(f"s_mov_b32 s{sCNT}, 0")
    lab("L_tagpoll")
    e(f"s_cmp_lg_u32 s{sTAG}, 0")
    e("s_cbranch_scc1 L_tagok")
    e(f"buffer_load_dword v7, v19, {srd(SDBG)}, 0 offen sc1")
    e("s_waitcnt vmcnt(0)")
    e(f"v_readfirstlane_b32 s{sTAG}, v7")
    e(f"s_add_u32 s{sCNT}, s{sCNT}, 1")
    e(f"s_cmp_lt_u32 s{sCNT}, 200000")
    e("s_cbranch_scc1 L_tagpoll")
    lab("L_tagok")
    e(f"s_cmp_lg_u32 s{sW}, 0")
    e("s_cbranch_scc1 L_sigw")
    e(f"s_and_b32 s{sT0}, s2, 7")
    e(f"s_lshl_b32 s{sT0}, s{sT0}, 7")
    e(f"s_lshr_b32 s{sT1}, s2, 3")
    e(f"s_lshl_b32 s{sT1}, s{sT1}, 2")
    e(f"s_add_u32 s{sT0}, s{sT0}, s{sT1}")
    e(f"s_add_u32 s{sT0}, s{sT0}, {FOFF + 4096}")
    flag_store()
    lab("L_sigw")
    stat_read(0)
    for j in range(6):
        b0 = vTmp + j*4 if j < 5 else vXa[1]
        e(f"v_max3_f32 v{b0}, v{b0}, v{b0+1}, v{b0+2}")
        e(f"v_max_f32 v{b0}, v{b0}, v{b0+3}")
        e(f"v_mul_f32 v{224+2*j}, s{sC}, v{b0}")
        e(f"v_mul_f32 v{225+2*j}, s{sC}, v{b0}")
    e(f"s_mov_b32 s66, s{sC}"); e(f"s_mov_b32 s67, s{sC}")
    e("v_mov_b32 v30, 0x3f803f80")
    for i in range(4): e(f"v_accvgpr_write_b32 a{96+i}, v30")
    pend = None
    def summ(p):
        j_, s_ = p
        cin = "0" if s_ == 0 else ar(112+4*j_,4)
        e(f"v_mfma_f32_16x16x32_bf16 {ar(112+4*j_,4)}, a[96:99], {vr(S(2*s_,j_),4)}, {cin}")
    for j in range(6):
        for s in range(4):
            regs8 = [S(2*s,j)+i for i in range(4)] + [S(2*s+1,j)+i for i in range(4)]
            for r in regs8[::2]: e(f"v_pk_fma_f32 {vr(r,2)}, {vr(r,2)}, s[66:67], {vr(224+2*j,2)} neg_lo:[0,0,1] neg_hi:[0,0,1]")
            if pend: summ(pend)
            if vn[0] < 16 or (j*4+s) % VD == 0: v1()
            for r in regs8: e(f"v_exp_f32 v{r}, v{r}")
            e("s_nop 0")
            for k in range(4):
                e(f"v_cvt_pk_bf16_f32 v{S(2*s,j)+k}, v{regs8[2*k]}, v{regs8[2*k+1]}")
            pend = (j, s)
    nop(2)
    summ(pend)
    nop(8)
    for j in range(6): e(f"v_accvgpr_read_b32 v{vTmp+j}, a{112+4*j}")
    for j in range(6): e(f"ds_write_b32 v{vSt}, v{vTmp+j} offset:{SUMOFF - MAXOFF + j*256}")
    e("s_waitcnt lgkmcnt(0)")
    e("s_barrier")
    stat_read(SUMOFF - MAXOFF)
    for j in range(6):
        b0 = vTmp + j*4 if j < 5 else vXa[1]
        e(f"v_add_f32 v{b0}, v{b0}, v{b0+1}")
        e(f"v_add_f32 v{b0+2}, v{b0+2}, v{b0+3}")
        e(f"v_add_f32 v{b0}, v{b0}, v{b0+2}")
        e(f"v_rcp_f32 v{224+2*j}, v{b0}")
        e(f"v_rcp_f32 v{225+2*j}, v{b0}")
    stamp("softmax_done")
    def vfr(hf, s, buf):
        for g4 in range(4):
            for u in range(2):
                e(f"ds_read_b64_tr_b16 {ar(VA+buf*16+g4*4+2*u,2)}, v{vVr[g4]} offset:{hf*16384 + s*4096 + u*2048}")
    def phase(hf, cinit):
        wait_for(vseq[(hf,0)])
        vfr(hf, 0, 0)
        for s in range(4):
            if s < 3:
                wait_for(vseq[(hf,s+1)])
                if s == 2 and hf == 1: stamp("V3_ready")
                vfr(hf, s+1, (s+1)&1)
                if hf == 1:
                    if s == 0:
                        e(f"v_cmp_ne_u32 vcc, s{sTAG}, v7")
                        e("s_nop 4")
                        e("s_cbranch_vccz L_pollw_done")
                        e(f"s_mov_b32 s{sT0}, s{sXc}")
                        e("v_mov_b32 v31, v19")
                        poll_loop("L_pollw")
                    for _ in range(WP): w1()
                e("s_waitcnt lgkmcnt(8)")
            else: e("s_waitcnt lgkmcnt(0)")
            for g4 in range(4):
                for j in range(6):
                    d = ACCT(g4*6 + j)
                    cin = "0" if (s == 0 and not (cinit and g4 >= 2)) else vr(d,4)
                    e(f"v_mfma_f32_16x16x32_bf16 {vr(d,4)}, {ar(VA+(s&1)*16+g4*4,4)}, {vr(S(2*s,j),4)}, {cin}")
                    if j == 3: v1()
    while vn[0] < 16: v1()
    c("PV phase I: groups w^3 (tiles 0..11), w^2 (tiles 12..23)")
    phase(0, False)
    while vn[0] < 32: v1()
    stamp("f2_pv1")
    nop(4)
    for tt in range(24):
        if tt < 16: e(f"ds_write_b128 v{vSl[0]}, {vr(ACCT(tt),4)} offset:{tt*1024}")
        else: e(f"ds_write_b128 v{vSl[1]}, {vr(ACCT(tt),4)} offset:{(tt-16)*1024}")
    e("s_waitcnt lgkmcnt(0)")
    e("s_barrier")
    stamp("f2_bar1")
    c("own group init = partial(w^3 tiles 0..11) + partial(w^2 tiles 12..23)")
    for t in range(12):
        e(f"ds_read_b128 {vr(ACCT(12+t),4)}, v{vSr[0]} offset:{t*1024}")
        if t < 4: e(f"ds_read_b128 {vr(ACCT(t),4)}, v{vSr[1]} offset:{(12+t)*1024}")
        else: e(f"ds_read_b128 {vr(ACCT(t),4)}, v{vSr[2]} offset:{(t-4)*1024}")
    e("s_waitcnt lgkmcnt(0)")
    for t in range(12):
        for i in (0,2): e(f"v_pk_add_f32 {vr(ACCT(12+t)+i,2)}, {vr(ACCT(12+t)+i,2)}, {vr(ACCT(t)+i,2)}")
    nop(2)
    stamp("f2_init")
    c("PV phase II: groups w^1 (tiles 0..11, C=0), w (tiles 12..23)")
    for s in range(4):
        wait_for(vseq[(1,s)])
        if s == 3: stamp("V3_ready")
        vfr(1, s, s&1)
        if s == 1:
            e(f"v_cmp_ne_u32 vcc, s{sTAG}, v7")
            e("s_nop 4")
            e("s_cbranch_vccz L_pollw_done")
            e(f"s_mov_b32 s{sT0}, s{sXc}")
            e("v_mov_b32 v31, v19")
            poll_loop("L_pollw")
        e("s_waitcnt lgkmcnt(4)")
        for g4 in range(4):
            if g4 == 2: e("s_waitcnt lgkmcnt(0)" if s < 3 else "s_waitcnt lgkmcnt(0)")
            for j in range(6):
                d = ACCT(g4*6 + j)
                cin = "0" if (s == 0 and g4 < 2) else vr(d,4)
                e(f"v_mfma_f32_16x16x32_bf16 {vr(d,4)}, {ar(VA+(s&1)*16+g4*4,4)}, {vr(S(2*s,j),4)}, {cin}")
                if s == 3 and g4 >= 2:
                    t = (g4-2)*6 + j - 3
                    if t >= 0: e(f"ds_write_b128 v{vSl[0]}, {vr(ACCT(t),4)} offset:{16384 + t*1024}")
                elif s >= 1 and j in (1,4) and wn[0] < WP*s: w1()
    for t in range(9,12):
        e(f"ds_write_b128 v{vSl[0]}, {vr(ACCT(t),4)} offset:{16384 + t*1024}")
    for _ in range(WE): w1()
    e("s_waitcnt lgkmcnt(0)")
    e("s_barrier")
    for t in range(12):
        e(f"ds_read_b128 {vr(ACCT(t),4)}, v{vSr[3]} offset:{16384 + t*1024}")
    e("s_waitcnt lgkmcnt(0)")
    for t in range(12):
        for i in (0,2): e(f"v_pk_add_f32 {vr(ACCT(12+t)+i,2)}, {vr(ACCT(12+t)+i,2)}, {vr(ACCT(t)+i,2)}")
VA = 192
def ACCT(tt): return S(1 + 2*(tt//6), tt%6)
def outproj_g():
    f1p = [f"s_lshr_b32 s{sT0}, s{sH}, 4", f"s_lshl_b32 s{sT1}, s{sB}, 1", f"s_add_u32 s{sT0}, s{sT0}, s{sT1}", f"s_lshl_b32 s{sT0}, s{sT0}, 2"]
    f1c = [f"s_lshl_b32 s{sT1}, s{sB2}, 1", f"s_add_u32 s{sT0}, s{sKH}, s{sT1}", f"s_lshl_b32 s{sT0}, s{sT0}, 2"]
    stamp("f2_sum")
    c("normalize, pack, store O frags")
    e(f"s_lshl_b32 s{sT0}, s{sB}, 5")
    e(f"s_add_u32 s{sT0}, s{sT0}, s{sH}")
    e(f"s_lshl_b32 s{sT0}, s{sT0}, 2")
    e(f"s_add_u32 s{sT0}, s{sT0}, s{sW}")
    e(f"s_mul_i32 s{sT0}, s{sT0}, 6144")
    for j in range(6):
        for j2 in range(2):
            b0 = ACCT(12+j2*6+j)
            for i in (0,2): e(f"v_pk_mul_f32 {vr(b0+i,2)}, {vr(b0+i,2)}, {vr(224+2*j,2)}")
        d = ACCT(j)
        for j2 in range(2):
            b0 = ACCT(12+j2*6+j)
            e(f"v_cvt_pk_bf16_f32 v{d+2*j2}, v{b0}, v{b0+1}")
            e(f"v_cvt_pk_bf16_f32 v{d+2*j2+1}, v{b0+2}, v{b0+3}")
        if j == 4: e(f"s_add_u32 s{sT0}, s{sT0}, 4096")
        ost = vm(f"buffer_store_dwordx4 {vr(d,4)}, v{vL16}, {srd(SWS)}, s{sT0} offen offset:{(j%4)*1024} sc1")
    stamp("f2_stissued")
    WCAP[0] = 64
    for _ in range(WA): w1()
    wait_for(ost)
    e("s_barrier")
    stamp("O_stored")
    e(f"s_cmp_lg_u32 s{sW}, 0")
    e("s_cbranch_scc1 L_sig1")
    e(f"s_lshr_b32 s{sT0}, s{sH}, 4")
    e(f"s_lshl_b32 s{sT1}, s{sB}, 1")
    e(f"s_add_u32 s{sT0}, s{sT0}, s{sT1}")
    e(f"s_lshl_b32 s{sT0}, s{sT0}, 7")
    e(f"s_and_b32 s{sT1}, s{sH}, 15")
    e(f"s_lshl_b32 s{sT1}, s{sT1}, 2")
    e(f"s_add_u32 s{sT0}, s{sT0}, s{sT1}")
    e(f"s_add_u32 s{sT0}, s{sT0}, {FOFF}")
    flag_store()
    lab("L_sig1")
    WCAP[0] = 64
    while wn[0] < 64: w1()
    def FRG(ks, jj): return WR(ks*4 + jj)
    e(f"s_cmp_lg_u32 s{sW}, 0")
    e("s_cbranch_scc1 L_poll1_done")
    e(f"s_lshl_b32 s{sT0}, s{sB2}, 1")
    e(f"s_add_u32 s{sT0}, s{sT0}, s{sKH}")
    e(f"s_lshl_b32 s{sT0}, s{sT0}, 7")
    e(f"s_add_u32 s{sT0}, s{sT0}, {FOFF}")
    e("v_and_b32 v31, 15, v1")
    e("v_lshlrev_b32 v31, 2, v31")
    poll_loop("L_poll1")
    e("s_barrier")
    stamp("poll_done")
    e(f"s_lshl_b32 s{sOB}, s{sB2}, 5")
    e(f"s_lshl_b32 s{sT0}, s{sKH}, 4")
    e(f"s_add_u32 s{sOB}, s{sOB}, s{sT0}")
    e(f"s_lshl_b32 s{sT0}, s{sW}, 2")
    e(f"s_add_u32 s{sOB}, s{sOB}, s{sT0}")
    e(f"s_mul_i32 s{sOB}, s{sOB}, 24576")
    e(f"s_mul_i32 s{sT0}, s{sQH}, 3072")
    e(f"s_add_u32 s{sOB}, s{sOB}, s{sT0}")
    OA = 200; oseq = {}; RING = 14
    def oload(ks):
        e(f"s_add_u32 s{sT0}, s{sROT}, {ks}")
        e(f"s_and_b32 s{sT0}, s{sT0}, 15")
        e(f"s_mul_i32 s{sT0}, s{sT0}, 6144")
        e(f"s_add_u32 s{sT0}, s{sT0}, s{sOB}")
        for jq in range(3):
            oseq[ks] = vm(f"buffer_load_dwordx4 {vr(32 + ((ks%RING)*3+jq)*4,4)}, v{vL16}, {srd(SWS)}, s{sT0} offen offset:{jq*1024} sc1")
    for ks in range(OPRE): oload(ks)
    for ks in range(16):
        wait_for(oseq[ks])
        for jq in range(3):
            for jj in range(4):
                d = OA + (jj*3+jq)*4
                cin = "0" if ks == 0 else vr(d,4)
                e(f"v_mfma_f32_16x16x32_bf16 {vr(d,4)}, {ar(FRG(ks,jj),4)}, {vr(32+((ks%RING)*3+jq)*4,4)}, {cin}")
            if jq == 0 and ks + OPRE < 16: oload(ks+OPRE)
    nop(8)
    stamp("oproj_done")
    c("cross-wave reduce: wave w sums n16 tile jj=w (3 q tiles)")
    e(f"s_mul_i32 s{sT1}, s{sW}, 12288")
    e(f"v_add_u32 v30, s{sT1}, v{vL16}")
    for t in range(12):
        e(f"ds_write_b128 v30, {vr(OA+t*4,4)} offset:{t*1024}")
    e("s_waitcnt lgkmcnt(0)")
    e("s_barrier")
    e(f"s_mul_i32 s{sT1}, s{sW}, 3072")
    e(f"v_add_u32 v30, s{sT1}, v{vL16}")
    for ww in range(4):
        for jq in range(3):
            e(f"ds_read_b128 {vr(32+(ww*3+jq)*4,4)}, v30 offset:{ww*12288 + jq*1024}")
    e("s_waitcnt lgkmcnt(0)")
    for r in range(0,12,2):
        e(f"v_pk_add_f32 {vr(32+r,2)}, {vr(32+r,2)}, {vr(44+r,2)}")
        e(f"v_pk_add_f32 {vr(56+r,2)}, {vr(56+r,2)}, {vr(68+r,2)}")
        e(f"v_pk_add_f32 {vr(32+r,2)}, {vr(32+r,2)}, {vr(56+r,2)}")
    c("waves with (w>>1) != kh send their tile to the partner; others receive")
    e(f"s_lshr_b32 s{sT0}, s{sW}, 1")
    e(f"s_and_b32 s{sT2}, s{sW}, 1")
    e(f"s_lshl_b32 s{sT2}, s{sT2}, 12")
    e(f"s_cmp_eq_u32 s{sT0}, s{sKH}")
    e("s_cbranch_scc1 L_recv")
    e(f"s_lshl_b32 s{sT1}, s2, 13")
    e(f"s_add_u32 s{sT1}, s{sT1}, s{sT2}")
    e(f"s_add_u32 s{sT1}, s{sT1}, {POFF}")
    for g_ in range(4):
        for i in range(3): e(f"v_mov_b32 v{80+g_*4+i}, v{32+g_*3+i}")
        e(f"v_mov_b32 v{83+g_*4}, s{sTAG}")
        e(f"buffer_store_dwordx4 {vr(80+g_*4,4)}, v{vL16}, {srd(SWS)}, s{sT1} offen offset:{g_*1024} sc1")
    e("s_branch L_fin")
    lab("L_recv")
    e(f"s_xor_b32 s{sT3}, s2, 1")
    e(f"s_lshl_b32 s{sT3}, s{sT3}, 13")
    e(f"s_add_u32 s{sT3}, s{sT3}, s{sT2}")
    e(f"s_add_u32 s{sT3}, s{sT3}, {POFF}")
    c("out offset = ((b2*96 + 48qh + 16jq + q)*512 + 64ct + 16w + 4g')*2")
    e(f"s_mul_i32 s{sT0}, s{sB2}, 96")
    e(f"s_mul_i32 s{sT1}, s{sQH}, 48")
    e(f"s_add_u32 s{sT0}, s{sT0}, s{sT1}")
    e(f"s_lshl_b32 s{sT0}, s{sT0}, 10")
    e(f"s_lshl_b32 s{sT1}, s{sCT}, 7")
    e(f"s_add_u32 s{sT0}, s{sT0}, s{sT1}")
    e(f"s_lshl_b32 s{sT1}, s{sW}, 5")
    e(f"s_add_u32 s{sT0}, s{sT0}, s{sT1}")
    e("v_and_b32 v31, 15, v1")
    e("v_lshlrev_b32 v31, 10, v31")
    e("v_lshrrev_b32 v2, 4, v1")
    e("v_lshl_add_u32 v31, v2, 3, v31")
    e(f"s_mov_b32 s{sCNT}, 0")
    lab("L_poll2")
    for g_ in range(4):
        e(f"buffer_load_dwordx4 {vr(80+g_*4,4)}, v{vL16}, {srd(SWS)}, s{sT3} offen offset:{g_*1024} sc1")
    e("s_waitcnt vmcnt(0)")
    e("v_xor_b32 v2, v83, v87")
    e("v_xor_b32 v3, v91, v95")
    e(f"v_xor_b32 v4, s{sTAG}, v83")
    e("v_xor_b32 v5, v87, v91")
    e("v_or_b32 v2, v2, v3")
    e("v_or3_b32 v2, v2, v4, v5")
    e("v_cmp_ne_u32 vcc, 0, v2")
    e(f"s_add_u32 s{sCNT}, s{sCNT}, 1")
    e("s_nop 3")
    e("s_cbranch_vccz L_poll2_done")
    e("s_sleep 1")
    e(f"s_cmp_lt_u32 s{sCNT}, 200000")
    e("s_cbranch_scc1 L_poll2")
    lab("L_poll2_done")
    for r in range(12): e(f"v_add_f32 v{32+r}, v{32+r}, v{80+(r//3)*4+r%3}")
    for jq in range(3):
        e(f"v_cvt_pk_bf16_f32 v{64+jq*2}, v{32+jq*4}, v{33+jq*4}")
        e(f"v_cvt_pk_bf16_f32 v{65+jq*2}, v{34+jq*4}, v{35+jq*4}")
        e(f"buffer_store_dwordx2 {vr(64+jq*2,2)}, v31, {srd(SOUT)}, s{sT0} offen")
        e(f"s_add_u32 s{sT0}, s{sT0}, 16384")
    lab("L_fin")

prologue(); qproj(); attention(); outproj_g()
stamp("end"); stamp_dump()
lab("L_end"); e("s_endpgm")
hdr = open("cdna_kernels/%s.s.ref" % NAME).read().split("; @launch")[0]
out = hdr + "; @launch grid=(256,1,1) block=(256,1,1) lds=163840\n"
out += f""".amdgcn_target "amdgcn-amd-amdhsa--gfx950"
.text
.globl {NAME}_kernel
.p2align 8
.type {NAME}_kernel,@function
{NAME}_kernel:
""" + "\n".join(L) + f"""
.section .rodata,"a"
.p2align 6
.amdhsa_kernel {NAME}_kernel
  .amdhsa_next_free_vgpr 512
  .amdhsa_next_free_sgpr 102
  .amdhsa_accum_offset 256
  .amdhsa_group_segment_fixed_size 0
  .amdhsa_kernarg_size 64
  .amdhsa_user_sgpr_count 2
  .amdhsa_user_sgpr_kernarg_segment_ptr 1
  .amdhsa_system_sgpr_workgroup_id_x 1
.end_amdhsa_kernel
"""
dst = sys.argv[1] if len(sys.argv) > 1 else "cdna_kernels/%s.s" % NAME
open(dst, "w").write(out)
print("wrote", dst, len(L), "lines")
```

```python
import sys, os
L = []
def e(s): L.append("    " + s)
def lab(s): L.append(s + ":")
def c(s): L.append("    ; " + s)
def nop(n):
    while n > 0:
        k = min(n, 16); e(f"s_nop {k-1}"); n -= k
NAME = "standalone__gqa_block_cached__near_ridge"
STAMP = os.environ.get("STAMP")
VPRE = int(os.environ.get("VPRE", "4"))
NT = os.environ.get("NT", " nt")
K1 = int(os.environ.get("K1", "12"))
K2 = int(os.environ.get("K2", "12"))
K3 = int(os.environ.get("K3", "16"))
VS = int(os.environ.get("VS", "1"))
WP = int(os.environ.get("WP", "10"))
ROT = int(os.environ.get("ROT", "0"))
WE = int(os.environ.get("WE", "0"))
OPRE = int(os.environ.get("OPRE", "5"))
WA = int(os.environ.get("WA", "12"))
KB = int(os.environ.get("KB", "4"))
EARLY = int(os.environ.get("EARLY", "0"))
VD = int(os.environ.get("VD", "2"))
NTK = os.environ.get("NTK", " nt")
EW = int(os.environ.get("EW", "0"))
PW = int(os.environ.get("PW", "0"))
SLP = int(os.environ.get("SLP", "2"))
WS2 = int(os.environ.get("WS2", "0"))
KPRE = int(os.environ.get("KPRE", "4"))
XOFF = 0; STG = 98304; QOFF = 131072; EXTRA = 131072
MAXOFF = 155648; SUMOFF = 160*1024 - 2048
SX, SK, SV, SWQ, SWO, SOUT, SWS, SDBG = 8, 12, 16, 20, 24, 28, 32, 36
sW, sB, sH, sT0, sT1, sT2, sT3 = 40, 41, 42, 43, 44, 45, 46
sKV, sXB, sC, sB2, sQH, sCT, sOB, sWN, sCNT = 47, 48, 49, 50, 51, 52, 53, 54, 55
sVb, sVl, sWo = 56, 57, 58
sKH = 5
sROT = 4; sR1 = 7; sXc = 63; sWc = 64; sWk = 65
sXm, sXs, sWq = 59, 60, 61
POFF = 0x800000
FOFF = 0xA00000
WTOFF = 0xC00000
sTAG = 6
vTG = 122
def srd(r): return f"s[{r}:{r+3}]"
vKo = 2; vXo = [31]; vWq = 7; vL16 = 8; vStW = 9; vStR = 10
vXa = list(range(11,19)); vQw = 19; vVo = 20; vVr = [21,22,23,24]; vSl = [25,26]; vSr = [3,4,5,6]
vSt = 27; vStr = 28; vWo = 29
def S(a,j): return 32 + (a*6+j)*4
vM = 224; vLs = 230; vTmp = 236
def vr(b,n): return f"v[{b}:{b+n-1}]"
def ar(b,n): return f"a[{b}:{b+n-1}]"
stamps = []
def stamp(name):
    if STAMP is None: return
    if os.environ.get("FINE2") and name in ("issued","x_ready","qproj_done","S_done"): return
    if name.startswith("f2") and not os.environ.get("FINE2"): return
    if os.environ.get("FINE") and name in ("softmax_done","V3_ready","O_stored","poll_done","oproj_done"): return
    k = len(stamps); stamps.append(name)
    e(f"s_memrealtime s[{74+2*k}:{75+2*k}]")
    e("s_waitcnt lgkmcnt(0)")
def stamp_dump():
    if STAMP is None: return
    e(f"s_cmp_lg_u32 s{sW}, 0")
    e("s_cbranch_scc1 L_end")
    e("s_mov_b64 exec, 1")
    e(f"s_mov_b32 s{SWS+2}, 0x2000000")
    e(f"s_lshl_b32 s{sT1}, s2, 6")
    e(f"s_add_u32 s{sT1}, s{sT1}, 0x1800000")
    for k in range(len(stamps)):
        e(f"v_mov_b32 v30, s{74+2*k}")
        e(f"v_mov_b32 v31, {k*4}")
        e(f"buffer_store_dword v30, v31, {srd(SWS)}, s{sT1} offen")
        e("s_nop 1")
    L.append("; STAMPS " + ",".join(stamps))

class VM:
    n = 0
def vm(s):
    e(s); VM.n += 1; return VM.n
def wait_for(seq, extra=""):
    k = min(63, VM.n - seq)
    e(f"s_waitcnt vmcnt({k}){extra}")

def prologue():
    e("s_cmp_ge_u32 s2, 256")
    e("s_cbranch_scc1 L_end")
    stamp("start")
    e("s_load_dwordx16 s[56:71], s[0:1], 0")
    e("s_memrealtime s[6:7]")
    e("v_and_b32 v1, 63, v0")
    e("v_lshrrev_b32 v30, 6, v0")
    e("s_nop 0")
    e(f"v_readfirstlane_b32 s{sW}, v30")
    e(f"s_and_b32 s{sT0}, s2, 7")
    e(f"s_lshr_b32 s{sT1}, s2, 3")
    e(f"s_and_b32 s{sT2}, s{sT1}, 3")
    e(f"s_lshl_b32 s{sH}, s{sT0}, 2")
    e(f"s_add_u32 s{sH}, s{sH}, s{sT2}")
    e(f"s_lshr_b32 s{sB}, s{sT1}, 2")
    e(f"s_and_b32 s{sKH}, s{sT0}, 1")
    e(f"s_andn2_b32 s{sB2}, s{sT0}, 1")
    e(f"s_lshr_b32 s{sT3}, s{sT2}, 1")
    e(f"s_add_u32 s{sB2}, s{sB2}, s{sT3}")
    e(f"s_and_b32 s{sQH}, s{sT2}, 1")
    e(f"s_mov_b32 s{sCT}, s{sB}")
    e(f"s_lshl_b32 s{sROT}, s{sT2}, 1")
    e(f"s_add_u32 s{sROT}, s{sROT}, s{sCT}")
    e(f"s_lshl_b32 s{sROT}, s{sROT}, 1")
    e(f"s_and_b32 s{sROT}, s{sROT}, 15")
    e(f"s_lshl_b32 s{sKV}, s{sB}, 5")
    e(f"s_add_u32 s{sKV}, s{sKV}, s{sH}")
    e(f"s_lshl_b32 s{sKV}, s{sKV}, 17")
    e(f"s_lshl_b32 s{sT3}, s{sW}, 15")
    e(f"s_add_u32 s{sKV}, s{sKV}, s{sT3}")
    e(f"s_mul_i32 s{sXB}, s{sB}, 98304")
    e(f"s_add_u32 s{sWN}, s{sW}, 1")
    e(f"s_and_b32 s{sWN}, s{sWN}, 3")
    e(f"s_mov_b32 s{sC}, 0x3e0293ee")
    e("v_and_b32 v30, 15, v1")
    e("v_lshrrev_b32 v31, 4, v1")
    e(f"v_lshlrev_b32 v{vKo}, 8, v30")
    e(f"v_lshl_add_u32 v{vKo}, v31, 4, v{vKo}")
    e(f"v_lshlrev_b32 v{vL16}, 4, v1")
    e("s_waitcnt lgkmcnt(0)")
    e(f"s_or_b32 s{sTAG}, s{sTAG}, 1")
    e(f"s_add_u32 s{sR1}, s{sB}, s{sH}")
    sizes = [786432, 33554432, 33554432, 4194304, 4194304, 786432, 256, WTOFF + 0x400000]
    regs = [SX, SK, SV, SWQ, SWO, SOUT, SDBG, SWS]
    for i,(r,sz) in enumerate(zip(regs,sizes)):
        e(f"s_mov_b32 s{r}, s{56+2*i}")
        e(f"s_and_b32 s{r+1}, s{57+2*i}, 0xffff")
        e(f"s_mov_b32 s{r+2}, {sz}")
        e(f"s_mov_b32 s{r+3}, 0x00020000")

kseq = {}; kn = [0]; TAGSEQ = [0]; PST = [0]
def k1():
    if kn[0] >= 32: return
    a, s_ = kn[0]//4, kn[0]%4; kn[0] += 1
    if s_ == 0: e(f"s_add_u32 s{sCNT}, s{sKV}, {a*4096}")
    kseq[a] = vm(f"buffer_load_dwordx4 {ar((a*4+s_)*4,4)}, v{vKo}, {srd(SK)}, s{sCNT} offen offset:{s_*64}{NTK}")
vseq = {}; vn = [0]
def v1():
    if vn[0] >= 32: return
    hf, i = vn[0]//16, vn[0]%16; vn[0] += 1
    if hf == 1 and i == 4:
        e(f"s_lshl_b32 s{sWk}, s{sCT}, 7")
        e(f"s_lshl_b32 s{sCNT}, s{sKH}, 6")
        e(f"s_add_u32 s{sWk}, s{sWk}, s{sCNT}")
        e(f"s_add_u32 s{sXc}, s{sWk}, {FOFF + 4096}")
        e("v_and_b32 v19, 15, v1")
        e("v_lshlrev_b32 v19, 2, v19")
        vm(f"buffer_load_dword v7, v19, {srd(SWS)}, s{sXc} offen sc1")
    if i == 0:
        e(f"s_lshr_b32 s{sVb}, s{sW}, 1")
        if hf == 0: e(f"s_xor_b32 s{sVb}, s{sVb}, 1")
        e(f"s_lshl_b32 s{sVb}, s{sVb}, 7")
        e(f"s_add_u32 s{sVb}, s{sVb}, s{sKV}")
    e(f"s_add_u32 m0, s{sVl}, {hf*16384 + i*1024}")
    e(f"s_add_u32 s{sCNT}, s{sVb}, {i*2048}")
    vseq[(hf,i//4)] = vm(f"buffer_load_dwordx4 v{vVo}, {srd(SV)}, s{sCNT} offen{NT} lds")
wn = [0]; WCAP = [56]; WSEQ = {}
def WR(i): return 224 + 4*i if i < 8 else 4*(i-8)
def w1():
    if wn[0] >= WCAP[0]: return
    i = wn[0]; wn[0] += 1
    if i % 4 == 0:
        e(f"s_add_u32 s{sWk}, s{sROT}, {i//4}")
        e(f"s_and_b32 s{sWk}, s{sWk}, 15")
        e(f"s_lshl_b32 s{sWk}, s{sWk}, 12")
        e(f"s_add_u32 s{sWk}, s{sWk}, s{sWo}")
    WSEQ[i] = vm(f"buffer_load_dwordx4 {ar(WR(i),4)}, v{vL16}, {srd(SWS)}, s{sWk} offen offset:{(i%4)*1024} sc1")

def addr_setup():
    e(f"s_lshl_b32 s{sT1}, s{sW}, 14")
    e(f"s_add_u32 s{sT1}, s{sT1}, {STG}")
    c("staging write: cg*16384 + (32w + i/16)*64 + (i%4)*16")
    e("v_bfe_u32 v30, v1, 2, 2")
    e(f"v_lshlrev_b32 v{vStW}, 14, v30")
    e("v_lshrrev_b32 v30, 4, v1")
    e(f"v_lshl_add_u32 v{vStW}, v30, 6, v{vStW}")
    e("v_and_b32 v30, 3, v1")
    e(f"v_lshl_add_u32 v{vStW}, v30, 4, v{vStW}")
    e(f"s_lshl_b32 s{sT2}, s{sW}, 11")
    e(f"s_add_u32 s{sT2}, s{sT2}, {STG}")
    e(f"v_add_u32 v{vStW}, s{sT2}, v{vStW}")
    e("v_lshrrev_b32 v30, 5, v1")
    e("v_lshlrev_b32 v30, 3, v30")
    e("v_bfe_u32 v31, v1, 2, 2")
    e("v_add_u32 v30, v30, v31")
    e(f"v_lshlrev_b32 v{vStR}, 6, v30")
    e("v_bfe_u32 v30, v1, 4, 1")
    e(f"v_lshl_add_u32 v{vStR}, v30, 5, v{vStR}")
    e("v_and_b32 v30, 1, v1")
    e(f"v_lshl_add_u32 v{vStR}, v30, 4, v{vStR}")
    e("v_bfe_u32 v30, v1, 1, 1")
    e(f"v_lshl_add_u32 v{vStR}, v30, 3, v{vStR}")
    e(f"v_add_u32 v{vStR}, s{sT1}, v{vStR}")
    e("v_and_b32 v30, 31, v1")
    e("v_lshlrev_b32 v30, 8, v30")
    e("v_lshrrev_b32 v31, 5, v1")
    for lo in range(8):
        e(f"v_add_u32 v{vXa[lo]}, {2*lo}, v31")
        e(f"v_xor_b32 v{vXa[lo]}, v{vXa[lo]}, v1")
        e(f"v_and_b32 v{vXa[lo]}, 15, v{vXa[lo]}")
        e(f"v_lshl_add_u32 v{vXa[lo]}, v{vXa[lo]}, 4, v30")
        e(f"v_add_u32 v{112+lo}, 0xc000, v{vXa[lo]}")
    e("v_bfe_u32 v30, v1, 4, 1")
    e(f"v_lshlrev_b32 v{vQw}, 12, v30")
    e("v_and_b32 v30, 15, v1")
    e(f"v_lshl_add_u32 v{vQw}, v30, 4, v{vQw}")
    e("v_lshrrev_b32 v30, 5, v1")
    e(f"v_lshl_add_u32 v{vQw}, v30, 8, v{vQw}")
    e(f"s_lshl_b32 s{sT1}, s{sW}, 10")
    e(f"s_add_u32 s{sT1}, s{sT1}, {QOFF}")
    e(f"v_add_u32 v{vQw}, s{sT1}, v{vQw}")
    c("V dma: (i/8)*256 + (((i%8)/2 ^ ((i/16)&3))*2 + (i&1))*16 ; wo: (i/8)*1024 + (i%8)*16")
    e("v_lshrrev_b32 v30, 4, v1")
    e("v_lshlrev_b32 v30, 1, v30")
    e("v_xor_b32 v30, v30, v1")
    e("v_and_b32 v30, 7, v30")
    e("v_lshrrev_b32 v120, 3, v1")
    e(f"v_lshlrev_b32 v{vVo}, 8, v120")
    e(f"v_lshl_add_u32 v{vVo}, v30, 4, v{vVo}")
    e("v_and_b32 v30, 7, v1")
    e(f"v_lshlrev_b32 v{vWo}, 10, v120")
    e(f"v_lshl_add_u32 v{vWo}, v30, 4, v{vWo}")
    c("tr read base0: w*32768 + (lane>>2)*128 + (((lane>>3)&3)*32) + (lane&3)*8 ; blk b -> ^ b*32")
    e("v_lshrrev_b32 v30, 2, v1")
    e(f"v_lshlrev_b32 v{vVr[0]}, 7, v30")
    e("v_bfe_u32 v30, v1, 3, 2")
    e(f"v_lshl_add_u32 v{vVr[0]}, v30, 5, v{vVr[0]}")
    e("v_and_b32 v30, 3, v1")
    e(f"v_lshl_add_u32 v{vVr[0]}, v30, 3, v{vVr[0]}")
    e(f"s_lshl_b32 s{sVl}, s{sW}, 15")
    e(f"v_add_u32 v{vVr[0]}, s{sVl}, v{vVr[0]}")
    c("vVr[0..1]: group w^1|w^3 parity (blk 2*((w&1)^1)+j2); vVr[2..3]: own parity")
    e(f"s_and_b32 s{sT1}, s{sW}, 1")
    e(f"s_lshl_b32 s{sT1}, s{sT1}, 6")
    e(f"v_xor_b32 v{vVr[2]}, s{sT1}, v{vVr[0]}")
    e(f"v_xor_b32 v{vVr[3]}, 32, v{vVr[2]}")
    e(f"v_xor_b32 v{vVr[0]}, 64, v{vVr[2]}")
    e(f"v_xor_b32 v{vVr[1]}, 64, v{vVr[3]}")
    c("partial slots: own V region + extra")
    e(f"v_add_u32 v{vSl[0]}, s{sVl}, v{vL16}")
    e(f"s_lshl_b32 s{sT1}, s{sW}, 13")
    e(f"s_add_u32 s{sT1}, s{sT1}, {EXTRA}")
    e(f"v_add_u32 v{vSl[1]}, s{sT1}, v{vL16}")
    e(f"v_xor_b32 v{vSr[0]}, 0x18000, v{vSl[0]}")
    e(f"v_xor_b32 v{vSr[1]}, 0x10000, v{vSl[0]}")
    e(f"v_xor_b32 v{vSr[2]}, 0x4000, v{vSl[1]}")
    e(f"v_xor_b32 v{vSr[3]}, 0x8000, v{vSl[0]}")
    c("woT base: WTOFF + (ct*128 + kh*64 + w*16)*4096")
    e(f"s_lshl_b32 s{sWo}, s{sCT}, 3")
    e(f"s_lshl_b32 s{sT1}, s{sKH}, 2")
    e(f"s_add_u32 s{sWo}, s{sWo}, s{sT1}")
    e(f"s_add_u32 s{sWo}, s{sWo}, s{sW}")
    e(f"s_lshl_b32 s{sWo}, s{sWo}, 16")
    e(f"s_add_u32 s{sWo}, s{sWo}, {WTOFF}")
    e("v_and_b32 v30, 15, v1")
    e(f"v_lshlrev_b32 v{vStr}, 4, v30")
    e(f"v_add_u32 v{vStr}, {MAXOFF}, v{vStr}")
    e(f"s_lshl_b32 s{sT1}, s{sW}, 2")
    e(f"v_add_u32 v{vSt}, s{sT1}, v{vStr}")

ACC = 32; XF = 128; WF = 164
def qproj():
    c("x voffset: (4w+i/16)*1024 + ((i%16)^(4w+i/16))*16")
    e(f"s_lshl_b32 s{sT1}, s{sW}, 2")
    e("v_lshrrev_b32 v30, 4, v1")
    e(f"v_add_u32 v30, s{sT1}, v30")
    e("v_xor_b32 v29, v30, v1")
    e("v_and_b32 v29, 15, v29")
    e(f"v_lshlrev_b32 v{vXo[0]}, 10, v30")
    e(f"v_lshl_add_u32 v{vXo[0]}, v29, 4, v{vXo[0]}")
    e(f"s_lshl_b32 s{sXm}, s{sW}, 10")
    e("v_lshrrev_b32 v30, 4, v1")
    e(f"v_lshlrev_b32 v{vWq}, 13, v30")
    e("v_and_b32 v30, 15, v1")
    e(f"v_lshl_add_u32 v{vWq}, v30, 4, v{vWq}")
    e(f"s_lshl_b32 s{sWq}, s{sH}, 8")
    e(f"s_lshl_b32 s{sT1}, s{sW}, 18")
    e(f"s_add_u32 s{sWq}, s{sWq}, s{sT1}")
    xs = {}; wqs = {}
    def xl(ch, m):
        if m == 0:
            e(f"s_add_u32 s{sXc}, s{sR1}, {ch}")
            e(f"s_and_b32 s{sXc}, s{sXc}, {3 if ROT else 0}" if ROT else f"s_mov_b32 s{sXc}, {ch}")
            e(f"s_lshl_b32 s{sWc}, s{sXc}, 20")
            e(f"s_add_u32 s{sWc}, s{sWc}, s{sWq}")
            e(f"s_lshl_b32 s{sXc}, s{sXc}, 8")
            e(f"s_add_u32 s{sXc}, s{sXc}, s{sXB}")
        e(f"s_add_u32 m0, s{sXm}, {XOFF + ch*24576 + m*4096}")
        e(f"s_add_u32 s{sXs}, s{sXc}, {m*16384}")
        xs[ch] = vm(f"buffer_load_dwordx4 v{vXo[0]}, {srd(SX)}, s{sXs} offen lds")
    def wl(ch, i):
        k = ch*8 + i
        e(f"s_add_u32 s{sXs}, s{sWc}, {i*4*8192}")
        wqs[ch] = vm(f"buffer_load_dwordx4 {ar(128+4*k,4)}, v{vWq}, {srd(SWQ)}, s{sXs} offen")
    seqs = [[(xl,ch,m) for m in range(6)] + [(wl,ch,i) for i in range(8)] for ch in range(4)]
    def issue(q, n):
        for _ in range(n):
            if q: it = q.pop(0); it[0](it[1], it[2])
    c("WG0 wave0 publishes the launch tag")
    e(f"s_or_b32 s{sT0}, s2, s{sW}")
    e(f"s_cmp_lg_u32 s{sT0}, 0")
    e("s_cbranch_scc1 L_notag")
    e(f"v_mov_b32 v{vTG}, s{sTAG}")
    e(f"v_mov_b32 v{vTG+1}, 0")
    e("s_mov_b64 exec, 1")
    e(f"buffer_store_dword v{vTG}, v{vTG+1}, {srd(SDBG)}, 0 offen sc1")
    e("s_mov_b64 exec, -1")
    lab("L_notag")
    issue(seqs[0], 99)
    e(f"v_mov_b32 v121, v{vXo[0]}")
    vXo[0] = 121
    addr_setup()
    issue(seqs[1], 99)
    done = [0]
    def piece():
        if done[0]: return
        done[0] = 1
        c("wo piece raw: rows (id>>3)*128 + 32w + 8i + lane/8, cols (id&7)*64")
        e(f"s_lshr_b32 s{sT0}, s2, 3")
        e(f"s_lshl_b32 s{sT0}, s{sT0}, 2")
        e(f"s_add_u32 s{sT0}, s{sT0}, s{sW}")
        e(f"s_lshl_b32 s{sT0}, s{sT0}, 15")
        e(f"s_and_b32 s{sT1}, s2, 7")
        e(f"s_lshl_b32 s{sT1}, s{sT1}, 7")
        e(f"s_add_u32 s{sT0}, s{sT0}, s{sT1}")
        for i in range(4):
            vm(f"buffer_load_dwordx4 {vr(vTmp+4*i,4)}, v{vWo}, {srd(SWO)}, s{sT0} offen")
            e(f"s_add_u32 s{sT0}, s{sT0}, 8192")
    if EARLY:
        issue(seqs[2], 99); issue(seqs[3], 99); piece()
        for _ in range(EARLY-1): k1()
    stamp("issued")
    def rd_frags(S_, buf):
        ch, s = S_//8, S_%8
        for u in range(2):
            e(f"ds_read_b64_tr_b16 {vr(WF+buf*4+u*2,2)}, v{vStR} offset:{(ch&1)*8192 + s*1024 + u*256}")
        for t3 in range(3):
            base = vXa[s] if ch < 2 else 112+s
            e(f"ds_read_b128 {vr(XF+buf*12+t3*4,4)}, v{base} offset:{(ch&1)*24576 + t3*8192}")
    def stage_w(ch, i):
        e(f"ds_write_b128 v{vStW}, {ar(128+(ch*8+i)*4,4)} offset:{(ch&1)*8192 + i*256}")
    wait_for(max(wqs[0], xs[0]))
    for i in range(8): stage_w(0, i)
    for ch in range(4):
        e("s_waitcnt lgkmcnt(0)")
        e("s_barrier")
        if ch == 0: stamp("x_ready")
        rd_frags(ch*8, 0); rd_frags(ch*8+1, 1)
        pend = 10
        q = [5, 5]
        for s in range(8):
            S_ = ch*8 + s; buf = s % 3
            if s < 6: rd_frags(S_+2, (s+2)%3); q.append(5)
            q.pop(0)
            e(f"s_waitcnt lgkmcnt({min(15, sum(q))})")
            for t3 in range(3):
                cin = "0" if S_ == 0 else vr(ACC+t3*16,16)
                e(f"v_mfma_f32_32x32x16_bf16 {vr(ACC+t3*16,16)}, {vr(WF+buf*4,4)}, {vr(XF+buf*12+t3*4,4)}, {cin}")
                if ch == 0: issue(seqs[2] if seqs[2] else seqs[3], 1)
                if (ch == 1 or (EARLY and ch == 0)) and t3 != 1 and kn[0] < K1: k1()
                if ch == 2 and t3 != 1 and kn[0] < K2: k1()
                if ch == 3 and t3 != 1 and kn[0] < K3: k1()
            if ch == 0 and s == 7:
                issue(seqs[2], 99); issue(seqs[3], 99)
                piece()
            if ch < 3 and s >= 4:
                if s == 4: wait_for(max(wqs[ch+1], xs[ch+1]))
                stage_w(ch+1, (s-4)*2); stage_w(ch+1, (s-4)*2+1)
                if q: q[-1] += 2
                else: q.append(2)
    e("s_barrier")
    stamp("qproj_done")
    nop(12)
    for t3 in range(3):
        for t in range(2):
            b0 = ACC + t3*16 + t*8
            for k in range(4):
                e(f"v_cvt_pk_bf16_f32 v{XF+(t3*2+t)*4+k}, v{b0+2*k}, v{b0+2*k+1}")
            e(f"ds_write_b128 v{vQw}, {vr(XF+(t3*2+t)*4,4)} offset:{t3*8192 + t*512}")
    for _ in range(KB):
        if kn[0] < 32: k1()
        else: v1()
    e("s_waitcnt lgkmcnt(0)")
    e("s_barrier")
    e(f"v_add_u32 v30, {QOFF}, v{vL16}")
    for j in range(6):
        for s in range(4):
            e(f"ds_read_b128 {ar(128+(j*4+s)*4,4)}, v30 offset:{(j*4+s)*1024}")

def xreduce(base, op):
    for sw in ("v_permlane32_swap_b32", "v_permlane16_swap_b32"):
        for j in range(6): e(f"v_mov_b32 v{vTmp+j}, v{base+j}")
        nop(2)
        for j in range(6): e(f"{sw} v{base+j}, v{vTmp+j}")
        nop(2)
        for j in range(6): e(f"{op} v{base+j}, v{base+j}, v{vTmp+j}")
def stat_read(off):
    for j in range(5):
        e(f"ds_read_b128 {vr(vTmp+j*4,4)}, v{vStr} offset:{off + j*256}")
    e(f"ds_read_b128 {vr(vXa[1],4)}, v{vStr} offset:{off + 5*256}")
    e("s_waitcnt lgkmcnt(0)")

def poll_loop(lbl):
    e(f"s_mov_b32 s{sCNT}, 0")
    lab(lbl)
    e(f"buffer_load_dword v30, v31, {srd(SWS)}, s{sT0} offen sc1")
    e("s_waitcnt vmcnt(0)")
    e(f"v_cmp_ne_u32 vcc, s{sTAG}, v30")
    e(f"s_add_u32 s{sCNT}, s{sCNT}, 1")
    e("s_nop 3")
    e(f"s_cbranch_vccz {lbl}_done")
    e(f"s_sleep {SLP}")
    e(f"s_cmp_lt_u32 s{sCNT}, 200000")
    e(f"s_cbranch_scc1 {lbl}")
    lab(lbl + "_done")
def flag_store():
    e(f"v_mov_b32 v30, s{sTAG}")
    e("v_mov_b32 v31, 0")
    e("s_mov_b64 exec, 1")
    e(f"buffer_store_dword v30, v31, {srd(SWS)}, s{sT0} offen sc1")
    e("s_mov_b64 exec, -1")
def attention():
    for a in range(8):
        wait_for(kseq[a], " lgkmcnt(0)" if a == 0 else "")
        if a == 0:
            e("v_mov_b32 v19, 0")
            vm(f"buffer_load_dword v7, v19, {srd(SDBG)}, 0 offen sc1")
            c("wo piece: raw -> LDS (own V half-1 region)")
            e("v_lshrrev_b32 v30, 4, v1")
            e("v_lshlrev_b32 v30, 1, v30")
            e("v_xor_b32 v30, v30, v1")
            e(f"v_lshl_add_u32 v30, v30, 4, s{sVl}")
            for i in range(4): e(f"ds_write_b128 v30, {vr(vTmp+4*i,4)} offset:{16384 + i*1024}")
        if a == 1:
            e("s_waitcnt lgkmcnt(0)")
            for g4 in range(4):
                for u in range(2):
                    e(f"ds_read_b64_tr_b16 {vr(vTmp+g4*4+2*u,2)}, v{vVr[g4]} offset:{16384 + u*2048}")
        if a == 2:
            c("store frags: WTOFF + ((id&7)*128 + (id>>3)*4 + w)*4096 + jj*1024")
            e(f"s_and_b32 s{sT0}, s2, 7")
            e(f"s_lshl_b32 s{sT0}, s{sT0}, 7")
            e(f"s_lshr_b32 s{sT1}, s2, 3")
            e(f"s_lshl_b32 s{sT1}, s{sT1}, 2")
            e(f"s_add_u32 s{sT0}, s{sT0}, s{sT1}")
            e(f"s_add_u32 s{sT0}, s{sT0}, s{sW}")
            e(f"s_lshl_b32 s{sT0}, s{sT0}, 12")
            e(f"s_add_u32 s{sT0}, s{sT0}, {WTOFF}")
            e(f"s_and_b32 s{sT1}, s{sW}, 1")
            e(f"s_lshl_b32 s{sT1}, s{sT1}, 11")
            e(f"s_add_u32 s{sT2}, s{sT0}, s{sT1}")
            e(f"s_xor_b32 s{sT1}, s{sT1}, 2048")
            e(f"s_add_u32 s{sT0}, s{sT0}, s{sT1}")
            e("s_waitcnt lgkmcnt(0)")
            for g4 in range(4):
                PST[0] = vm(f"buffer_store_dwordx4 {vr(vTmp+g4*4,4)}, v{vL16}, {srd(SWS)}, s{sT0 if g4 < 2 else sT2} offen offset:{(g4&1)*1024} sc1")
        for s in range(4):
            for j in range(6):
                cin = "0" if s == 0 else vr(S(a,j),4)
                e(f"v_mfma_f32_16x16x32_bf16 {vr(S(a,j),4)}, {ar((a*4+s)*4,4)}, {ar(128+(j*4+s)*4,4)}, {cin}")
                if j == 2:
                    if kn[0] < 32: k1()
                    elif s < VS: v1()
                if a > 0 and s in (1,2):
                    p = S(a-1,j) + (s-1)*2
                    if a == 1 and s == 1: e(f"v_max_f32 v{vM+j}, v{p}, v{p+1}")
                    else: e(f"v_max3_f32 v{vM+j}, v{vM+j}, v{p}, v{p+1}")
    nop(8)
    stamp("S_done")
    for j in range(6):
        e(f"v_max3_f32 v{vM+j}, v{vM+j}, v{S(7,j)}, v{S(7,j)+1}")
        e(f"v_max3_f32 v{vM+j}, v{vM+j}, v{S(7,j)+2}, v{S(7,j)+3}")
    xreduce(vM, "v_max_f32")
    for j in range(6): e(f"ds_write_b32 v{vSt}, v{vM+j} offset:{j*256}")
    e("s_waitcnt lgkmcnt(0)")
    if kseq[7] < PST[0]: wait_for(PST[0])
    e("s_barrier")
    c("launch tag (fallback: poll until published)")
    e(f"v_readfirstlane_b32 s{sTAG}, v7")
    e(f"s_mov_b32 s{sCNT}, 0")
    lab("L_tagpoll")
    e(f"s_cmp_lg_u32 s{sTAG}, 0")
    e("s_cbranch_scc1 L_tagok")
    e(f"buffer_load_dword v7, v19, {srd(SDBG)}, 0 offen sc1")
    e("s_waitcnt vmcnt(0)")
    e(f"v_readfirstlane_b32 s{sTAG}, v7")
    e(f"s_add_u32 s{sCNT}, s{sCNT}, 1")
    e(f"s_cmp_lt_u32 s{sCNT}, 200000")
    e("s_cbranch_scc1 L_tagpoll")
    lab("L_tagok")
    e(f"s_cmp_lg_u32 s{sW}, 0")
    e("s_cbranch_scc1 L_sigw")
    e(f"s_and_b32 s{sT0}, s2, 7")
    e(f"s_lshl_b32 s{sT0}, s{sT0}, 7")
    e(f"s_lshr_b32 s{sT1}, s2, 3")
    e(f"s_lshl_b32 s{sT1}, s{sT1}, 2")
    e(f"s_add_u32 s{sT0}, s{sT0}, s{sT1}")
    e(f"s_add_u32 s{sT0}, s{sT0}, {FOFF + 4096}")
    flag_store()
    lab("L_sigw")
    stat_read(0)
    for j in range(6):
        b0 = vTmp + j*4 if j < 5 else vXa[1]
        e(f"v_max3_f32 v{b0}, v{b0}, v{b0+1}, v{b0+2}")
        e(f"v_max_f32 v{b0}, v{b0}, v{b0+3}")
        e(f"v_mul_f32 v{224+2*j}, s{sC}, v{b0}")
        e(f"v_mul_f32 v{225+2*j}, s{sC}, v{b0}")
    e(f"s_mov_b32 s66, s{sC}"); e(f"s_mov_b32 s67, s{sC}")
    e("v_mov_b32 v30, 0x3f803f80")
    for i in range(4): e(f"v_accvgpr_write_b32 a{96+i}, v30")
    pend = None
    def summ(p):
        j_, s_ = p
        cin = "0" if s_ == 0 else ar(112+4*j_,4)
        e(f"v_mfma_f32_16x16x32_bf16 {ar(112+4*j_,4)}, a[96:99], {vr(S(2*s_,j_),4)}, {cin}")
    for j in range(6):
        for s in range(4):
            regs8 = [S(2*s,j)+i for i in range(4)] + [S(2*s+1,j)+i for i in range(4)]
            for r in regs8[::2]: e(f"v_pk_fma_f32 {vr(r,2)}, {vr(r,2)}, s[66:67], {vr(224+2*j,2)} neg_lo:[0,0,1] neg_hi:[0,0,1]")
            if pend: summ(pend)
            if vn[0] < 16 or (j*4+s) % VD == 0: v1()
            for r in regs8: e(f"v_exp_f32 v{r}, v{r}")
            e("s_nop 0")
            for k in range(4):
                e(f"v_cvt_pk_bf16_f32 v{S(2*s,j)+k}, v{regs8[2*k]}, v{regs8[2*k+1]}")
            pend = (j, s)
    nop(2)
    summ(pend)
    nop(8)
    for j in range(6): e(f"v_accvgpr_read_b32 v{vTmp+j}, a{112+4*j}")
    for j in range(6): e(f"ds_write_b32 v{vSt}, v{vTmp+j} offset:{SUMOFF - MAXOFF + j*256}")
    e("s_waitcnt lgkmcnt(0)")
    e("s_barrier")
    stat_read(SUMOFF - MAXOFF)
    for j in range(6):
        b0 = vTmp + j*4 if j < 5 else vXa[1]
        e(f"v_add_f32 v{b0}, v{b0}, v{b0+1}")
        e(f"v_add_f32 v{b0+2}, v{b0+2}, v{b0+3}")
        e(f"v_add_f32 v{b0}, v{b0}, v{b0+2}")
        e(f"v_rcp_f32 v{224+2*j}, v{b0}")
        e(f"v_rcp_f32 v{225+2*j}, v{b0}")
    stamp("softmax_done")
    def vfr(hf, s, buf):
        for g4 in range(4):
            for u in range(2):
                e(f"ds_read_b64_tr_b16 {ar(VA+buf*16+g4*4+2*u,2)}, v{vVr[g4]} offset:{hf*16384 + s*4096 + u*2048}")
    def phase(hf, cinit):
        wait_for(vseq[(hf,0)])
        vfr(hf, 0, 0)
        for s in range(4):
            if s < 3:
                wait_for(vseq[(hf,s+1)])
                if s == 2 and hf == 1: stamp("V3_ready")
                vfr(hf, s+1, (s+1)&1)
                if hf == 1:
                    if s == 0:
                        e(f"v_cmp_ne_u32 vcc, s{sTAG}, v7")
                        e("s_nop 4")
                        e("s_cbranch_vccz L_pollw_done")
                        e(f"s_mov_b32 s{sT0}, s{sXc}")
                        e("v_mov_b32 v31, v19")
                        poll_loop("L_pollw")
                    for _ in range(WP): w1()
                e("s_waitcnt lgkmcnt(8)")
            else: e("s_waitcnt lgkmcnt(0)")
            for g4 in range(4):
                for j in range(6):
                    d = ACCT(g4*6 + j)
                    cin = "0" if (s == 0 and not (cinit and g4 >= 2)) else vr(d,4)
                    e(f"v_mfma_f32_16x16x32_bf16 {vr(d,4)}, {ar(VA+(s&1)*16+g4*4,4)}, {vr(S(2*s,j),4)}, {cin}")
                    if j == 3: v1()
                    if j == 0 and s >= 2 and wn[0] < EW: w1()
    while vn[0] < 16: v1()
    c("PV phase I: groups w^3 (tiles 0..11), w^2 (tiles 12..23)")
    phase(0, False)
    while vn[0] < 32: v1()
    stamp("f2_pv1")
    nop(4)
    for tt in range(24):
        if tt < 16: e(f"ds_write_b128 v{vSl[0]}, {vr(ACCT(tt),4)} offset:{tt*1024}")
        else: e(f"ds_write_b128 v{vSl[1]}, {vr(ACCT(tt),4)} offset:{(tt-16)*1024}")
    e("s_waitcnt lgkmcnt(0)")
    e("s_barrier")
    while wn[0] < EW: w1()
    stamp("f2_bar1")
    c("own group init = partial(w^3 tiles 0..11) + partial(w^2 tiles 12..23)")
    for t in range(12):
        e(f"ds_read_b128 {vr(ACCT(12+t),4)}, v{vSr[0]} offset:{t*1024}")
        if t < 4: e(f"ds_read_b128 {vr(ACCT(t),4)}, v{vSr[1]} offset:{(12+t)*1024}")
        else: e(f"ds_read_b128 {vr(ACCT(t),4)}, v{vSr[2]} offset:{(t-4)*1024}")
    e("s_waitcnt lgkmcnt(0)")
    for t in range(12):
        for i in (0,2): e(f"v_pk_add_f32 {vr(ACCT(12+t)+i,2)}, {vr(ACCT(12+t)+i,2)}, {vr(ACCT(t)+i,2)}")
    nop(2)
    stamp("f2_init")
    c("PV phase II: groups w^1 (tiles 0..11, C=0), w (tiles 12..23)")
    for s in range(4):
        wait_for(vseq[(1,s)])
        if s == 3: stamp("V3_ready")
        vfr(1, s, s&1)
        if s == 1:
            e(f"v_cmp_ne_u32 vcc, s{sTAG}, v7")
            e("s_nop 4")
            e("s_cbranch_vccz L_pollw_done")
            e(f"s_mov_b32 s{sT0}, s{sXc}")
            e("v_mov_b32 v31, v19")
            poll_loop("L_pollw")
        e("s_waitcnt lgkmcnt(4)")
        for g4 in range(4):
            if g4 == 2: e("s_waitcnt lgkmcnt(0)" if s < 3 else "s_waitcnt lgkmcnt(0)")
            for j in range(6):
                d = ACCT(g4*6 + j)
                cin = "0" if (s == 0 and g4 < 2) else vr(d,4)
                e(f"v_mfma_f32_16x16x32_bf16 {vr(d,4)}, {ar(VA+(s&1)*16+g4*4,4)}, {vr(S(2*s,j),4)}, {cin}")
                if s == 3 and g4 >= 2:
                    t = (g4-2)*6 + j - 3
                    if t >= 0: e(f"ds_write_b128 v{vSl[0]}, {vr(ACCT(t),4)} offset:{16384 + t*1024}")
                elif s >= 1 and j in (1,4) and wn[0] < EW + WP*s: w1()
    for t in range(9,12):
        e(f"ds_write_b128 v{vSl[0]}, {vr(ACCT(t),4)} offset:{16384 + t*1024}")
    for _ in range(WE): w1()
    e("s_waitcnt lgkmcnt(0)")
    e("s_barrier")
    for t in range(12):
        e(f"ds_read_b128 {vr(ACCT(t),4)}, v{vSr[3]} offset:{16384 + t*1024}")
    e("s_waitcnt lgkmcnt(0)")
    for t in range(12):
        for i in (0,2): e(f"v_pk_add_f32 {vr(ACCT(12+t)+i,2)}, {vr(ACCT(12+t)+i,2)}, {vr(ACCT(t)+i,2)}")
VA = 192
def ACCT(tt): return S(1 + 2*(tt//6), tt%6)
def outproj_g():
    f1p = [f"s_lshr_b32 s{sT0}, s{sH}, 4", f"s_lshl_b32 s{sT1}, s{sB}, 1", f"s_add_u32 s{sT0}, s{sT0}, s{sT1}", f"s_lshl_b32 s{sT0}, s{sT0}, 2"]
    f1c = [f"s_lshl_b32 s{sT1}, s{sB2}, 1", f"s_add_u32 s{sT0}, s{sKH}, s{sT1}", f"s_lshl_b32 s{sT0}, s{sT0}, 2"]
    stamp("f2_sum")
    c("normalize, pack, store O frags")
    e(f"s_lshl_b32 s{sT0}, s{sB}, 5")
    e(f"s_add_u32 s{sT0}, s{sT0}, s{sH}")
    e(f"s_lshl_b32 s{sT0}, s{sT0}, 2")
    e(f"s_add_u32 s{sT0}, s{sT0}, s{sW}")
    e(f"s_mul_i32 s{sT0}, s{sT0}, 6144")
    for j in range(6):
        for j2 in range(2):
            b0 = ACCT(12+j2*6+j)
            for i in (0,2): e(f"v_pk_mul_f32 {vr(b0+i,2)}, {vr(b0+i,2)}, {vr(224+2*j,2)}")
        d = ACCT(j)
        for j2 in range(2):
            b0 = ACCT(12+j2*6+j)
            e(f"v_cvt_pk_bf16_f32 v{d+2*j2}, v{b0}, v{b0+1}")
            e(f"v_cvt_pk_bf16_f32 v{d+2*j2+1}, v{b0+2}, v{b0+3}")
        if j == 4: e(f"s_add_u32 s{sT0}, s{sT0}, 4096")
        ost = vm(f"buffer_store_dwordx4 {vr(d,4)}, v{vL16}, {srd(SWS)}, s{sT0} offen offset:{(j%4)*1024} sc1")
    stamp("f2_stissued")
    WCAP[0] = 64
    for _ in range(WA): w1()
    wait_for(ost)
    e("s_barrier")
    stamp("O_stored")
    e(f"s_cmp_lg_u32 s{sW}, 0")
    e("s_cbranch_scc1 L_sig1")
    e(f"s_lshr_b32 s{sT0}, s{sH}, 4")
    e(f"s_lshl_b32 s{sT1}, s{sB}, 1")
    e(f"s_add_u32 s{sT0}, s{sT0}, s{sT1}")
    e(f"s_lshl_b32 s{sT0}, s{sT0}, 7")
    e(f"s_and_b32 s{sT1}, s{sH}, 15")
    e(f"s_lshl_b32 s{sT1}, s{sT1}, 2")
    e(f"s_add_u32 s{sT0}, s{sT0}, s{sT1}")
    e(f"s_add_u32 s{sT0}, s{sT0}, {FOFF}")
    flag_store()
    lab("L_sig1")
    WCAP[0] = 64
    while wn[0] < 64: w1()
    def FRG(ks, jj): return WR(ks*4 + jj)
    e(f"s_cmp_lg_u32 s{sW}, {PW}")
    e("s_cbranch_scc1 L_poll1_done")
    e(f"s_lshl_b32 s{sT0}, s{sB2}, 1")
    e(f"s_add_u32 s{sT0}, s{sT0}, s{sKH}")
    e(f"s_lshl_b32 s{sT0}, s{sT0}, 7")
    e(f"s_add_u32 s{sT0}, s{sT0}, {FOFF}")
    e("v_and_b32 v31, 15, v1")
    e("v_lshlrev_b32 v31, 2, v31")
    poll_loop("L_poll1")
    e("s_barrier")
    stamp("poll_done")
    e(f"s_lshl_b32 s{sOB}, s{sB2}, 5")
    e(f"s_lshl_b32 s{sT0}, s{sKH}, 4")
    e(f"s_add_u32 s{sOB}, s{sOB}, s{sT0}")
    e(f"s_lshl_b32 s{sT0}, s{sW}, 2")
    e(f"s_add_u32 s{sOB}, s{sOB}, s{sT0}")
    e(f"s_mul_i32 s{sOB}, s{sOB}, 24576")
    e(f"s_mul_i32 s{sT0}, s{sQH}, 3072")
    e(f"s_add_u32 s{sOB}, s{sOB}, s{sT0}")
    OA = 200; oseq = {}; RING = 14
    def oload(ks):
        e(f"s_add_u32 s{sT0}, s{sROT}, {ks}")
        e(f"s_and_b32 s{sT0}, s{sT0}, 15")
        e(f"s_mul_i32 s{sT0}, s{sT0}, 6144")
        e(f"s_add_u32 s{sT0}, s{sT0}, s{sOB}")
        for jq in range(3):
            oseq[ks] = vm(f"buffer_load_dwordx4 {vr(32 + ((ks%RING)*3+jq)*4,4)}, v{vL16}, {srd(SWS)}, s{sT0} offen offset:{jq*1024} sc1")
    for ks in range(OPRE): oload(ks)
    for ks in range(16):
        wait_for(oseq[ks])
        for jq in range(3):
            for jj in range(4):
                d = OA + (jj*3+jq)*4
                cin = "0" if ks == 0 else vr(d,4)
                e(f"v_mfma_f32_16x16x32_bf16 {vr(d,4)}, {ar(FRG(ks,jj),4)}, {vr(32+((ks%RING)*3+jq)*4,4)}, {cin}")
            if jq == 0 and ks + OPRE < 16: oload(ks+OPRE)
    nop(8)
    stamp("oproj_done")
    c("cross-wave reduce: wave w sums n16 tile jj=w (3 q tiles)")
    e(f"s_mul_i32 s{sT1}, s{sW}, 12288")
    e(f"v_add_u32 v30, s{sT1}, v{vL16}")
    for t in range(12):
        e(f"ds_write_b128 v30, {vr(OA+t*4,4)} offset:{t*1024}")
    e("s_waitcnt lgkmcnt(0)")
    e("s_barrier")
    e(f"s_mul_i32 s{sT1}, s{sW}, 3072")
    e(f"v_add_u32 v30, s{sT1}, v{vL16}")
    for ww in range(4):
        for jq in range(3):
            e(f"ds_read_b128 {vr(32+(ww*3+jq)*4,4)}, v30 offset:{ww*12288 + jq*1024}")
    e("s_waitcnt lgkmcnt(0)")
    for r in range(0,12,2):
        e(f"v_pk_add_f32 {vr(32+r,2)}, {vr(32+r,2)}, {vr(44+r,2)}")
        e(f"v_pk_add_f32 {vr(56+r,2)}, {vr(56+r,2)}, {vr(68+r,2)}")
        e(f"v_pk_add_f32 {vr(32+r,2)}, {vr(32+r,2)}, {vr(56+r,2)}")
    c("waves with (w>>1) != kh send their tile to the partner; others receive")
    e(f"s_lshr_b32 s{sT0}, s{sW}, 1")
    e(f"s_and_b32 s{sT2}, s{sW}, 1")
    e(f"s_lshl_b32 s{sT2}, s{sT2}, 12")
    e(f"s_cmp_eq_u32 s{sT0}, s{sKH}")
    e("s_cbranch_scc1 L_recv")
    e(f"s_lshl_b32 s{sT1}, s2, 13")
    e(f"s_add_u32 s{sT1}, s{sT1}, s{sT2}")
    e(f"s_add_u32 s{sT1}, s{sT1}, {POFF}")
    for g_ in range(4):
        for i in range(3): e(f"v_mov_b32 v{80+g_*4+i}, v{32+g_*3+i}")
        e(f"v_mov_b32 v{83+g_*4}, s{sTAG}")
        e(f"buffer_store_dwordx4 {vr(80+g_*4,4)}, v{vL16}, {srd(SWS)}, s{sT1} offen offset:{g_*1024} sc1")
    e("s_branch L_fin")
    lab("L_recv")
    e(f"s_xor_b32 s{sT3}, s2, 1")
    e(f"s_lshl_b32 s{sT3}, s{sT3}, 13")
    e(f"s_add_u32 s{sT3}, s{sT3}, s{sT2}")
    e(f"s_add_u32 s{sT3}, s{sT3}, {POFF}")
    c("out offset = ((b2*96 + 48qh + 16jq + q)*512 + 64ct + 16w + 4g')*2")
    e(f"s_mul_i32 s{sT0}, s{sB2}, 96")
    e(f"s_mul_i32 s{sT1}, s{sQH}, 48")
    e(f"s_add_u32 s{sT0}, s{sT0}, s{sT1}")
    e(f"s_lshl_b32 s{sT0}, s{sT0}, 10")
    e(f"s_lshl_b32 s{sT1}, s{sCT}, 7")
    e(f"s_add_u32 s{sT0}, s{sT0}, s{sT1}")
    e(f"s_lshl_b32 s{sT1}, s{sW}, 5")
    e(f"s_add_u32 s{sT0}, s{sT0}, s{sT1}")
    e("v_and_b32 v31, 15, v1")
    e("v_lshlrev_b32 v31, 10, v31")
    e("v_lshrrev_b32 v2, 4, v1")
    e("v_lshl_add_u32 v31, v2, 3, v31")
    e(f"s_mov_b32 s{sCNT}, 0")
    lab("L_poll2")
    for g_ in range(4):
        e(f"buffer_load_dwordx4 {vr(80+g_*4,4)}, v{vL16}, {srd(SWS)}, s{sT3} offen offset:{g_*1024} sc1")
    e("s_waitcnt vmcnt(0)")
    e("v_xor_b32 v2, v83, v87")
    e("v_xor_b32 v3, v91, v95")
    e(f"v_xor_b32 v4, s{sTAG}, v83")
    e("v_xor_b32 v5, v87, v91")
    e("v_or_b32 v2, v2, v3")
    e("v_or3_b32 v2, v2, v4, v5")
    e("v_cmp_ne_u32 vcc, 0, v2")
    e(f"s_add_u32 s{sCNT}, s{sCNT}, 1")
    e("s_nop 3")
    e("s_cbranch_vccz L_poll2_done")
    e("s_sleep 1")
    e(f"s_cmp_lt_u32 s{sCNT}, 200000")
    e("s_cbranch_scc1 L_poll2")
    lab("L_poll2_done")
    for r in range(12): e(f"v_add_f32 v{32+r}, v{32+r}, v{80+(r//3)*4+r%3}")
    for jq in range(3):
        e(f"v_cvt_pk_bf16_f32 v{64+jq*2}, v{32+jq*4}, v{33+jq*4}")
        e(f"v_cvt_pk_bf16_f32 v{65+jq*2}, v{34+jq*4}, v{35+jq*4}")
        e(f"buffer_store_dwordx2 {vr(64+jq*2,2)}, v31, {srd(SOUT)}, s{sT0} offen")
        e(f"s_add_u32 s{sT0}, s{sT0}, 16384")
    lab("L_fin")

prologue(); qproj(); attention(); outproj_g()
stamp("end"); stamp_dump()
lab("L_end"); e("s_endpgm")
hdr = open("cdna_kernels/%s.s.ref" % NAME).read().split("; @launch")[0]
out = hdr + "; @launch grid=(256,1,1) block=(256,1,1) lds=163840\n"
out += f""".amdgcn_target "amdgcn-amd-amdhsa--gfx950"
.text
.globl {NAME}_kernel
.p2align 8
.type {NAME}_kernel,@function
{NAME}_kernel:
""" + "\n".join(L) + f"""
.section .rodata,"a"
.p2align 6
.amdhsa_kernel {NAME}_kernel
  .amdhsa_next_free_vgpr 512
  .amdhsa_next_free_sgpr 102
  .amdhsa_accum_offset 256
  .amdhsa_group_segment_fixed_size 0
  .amdhsa_kernarg_size 64
  .amdhsa_user_sgpr_count 2
  .amdhsa_user_sgpr_kernarg_segment_ptr 1
  .amdhsa_system_sgpr_workgroup_id_x 1
.end_amdhsa_kernel
"""
dst = sys.argv[1] if len(sys.argv) > 1 else "cdna_kernels/%s.s" % NAME
open(dst, "w").write(out)
print("wrote", dst, len(L), "lines")
```
